```python
import torch

def _softmax(x, axis=-1):
    return torch.softmax(x, dim=axis)

def _gelu(x):
    return torch.nn.functional.gelu(x, approximate='tanh')

def _silu(x):
    return torch.nn.functional.silu(x)

def _sigmoid(x):
    return torch.sigmoid(x)

def _layernorm(x, axis=-1, eps=1e-05):
    m = x.mean(dim=axis, keepdim=True)
    v = x.var(dim=axis, keepdim=True, unbiased=False)
    return (x - m) / torch.sqrt(v + eps)

def _scatter_add(tgt, idx, src, axis=0):
    return tgt.clone().index_add_(axis, idx, src)

def _segment_sum(src, seg, n):
    out = torch.zeros((n,) + src.shape[1:], dtype=src.dtype)
    return out.index_add_(0, seg, src)

def _pad(x, pw):
    flat = tuple((v for pair in reversed(pw) for v in pair))
    return torch.nn.functional.pad(x, flat)
kernel_name = 'standalone__molecular_angular_painn__graph'

def setup_inputs():

    _w = lambda a: (lambda t: t.to(torch.bfloat16) if t.is_floating_point() else t)(torch.as_tensor(a))
    N, deg, D = (10000, 16, 256)
    n_rbf = max(0, 4)
    E = N * deg
    cutoff = 5.0
    freqs = (torch.arange(1, n_rbf + 1) * torch.pi / cutoff).to(float)
    return {'sv': _w((lambda *s: torch.randn(*s, dtype=torch.bfloat16) * 0.4)(N, 4, D) * 0.3), 'pos': _w((lambda *s: torch.randn(*s, dtype=torch.bfloat16) * 3.2)(N, 3) * 1.2), 'src': _w((lambda lo, hi, *s: torch.randint(lo, hi, s))(0, N, E).to(torch.int64)), 'dst': _w((lambda lo, hi, *s: torch.randint(lo, hi, s))(0, N, E).to(torch.int64)), 'freqs': _w(freqs), 'w_phi1': _w((lambda *s: torch.randn(*s, dtype=torch.bfloat16) * 3.2)(D, D) / D ** 0.5), 'w_phi2': _w((lambda *s: torch.randn(*s, dtype=torch.bfloat16) * 3.2)(D, 3 * D) / D ** 0.5), 'w_rbf': _w((lambda *s: torch.randn(*s, dtype=torch.bfloat16) * 3.2)(n_rbf, 3 * D) / n_rbf ** 0.5)}

def reference(sv, pos, src, dst, freqs, w_phi1, w_phi2, w_rbf):
    N, _, D = sv.shape
    E = src.shape[0]
    PI, cutoff = (3.141592653589793, 5.0)
    s, v = (sv[:, 0, :].clone(), sv[:, 1:, :].clone())
    r_vec = pos[src] - pos[dst]
    d = torch.sqrt((r_vec * r_vec).sum(-1) + 1e-08)
    r_hat = r_vec / d[:, None]
    rbf = torch.sin(d[:, None] * freqs[None, :]) / d[:, None]
    fcut = 0.5 * (torch.cos(PI * d / cutoff) + 1.0)
    fcut = torch.where(d < cutoff, fcut, 0.0 * d)
    Wf = rbf @ w_rbf * fcut[:, None]
    phi = (_silu(s @ w_phi1) @ w_phi2)[src]
    m = phi * Wf
    m_s, m_vv, m_vr = (m[:, :D].clone(), m[:, D:2 * D].clone(), m[:, 2 * D:].clone())
    ds = _segment_sum(m_s, dst, N)
    dv_e = m_vv[:, None, :] * v[src] + m_vr[:, None, :] * r_hat[:, :, None]
    dv = _segment_sum(dv_e.reshape(E, 3 * D), dst, N).reshape(N, 3, D)
    return sv + torch.concatenate([ds[:, None, :], dv], axis=1)
```

```python
class Asm:
    def __init__(self):
        self.lines = []
    def __call__(self, s):
        for l in s.split("\n"):
            self.lines.append("    " + l.strip())
    def label(self, l):
        self.lines.append(l + ":")
    def raw(self, s):
        self.lines.append(s)
    def c(self, s):
        self.lines.append("    ; " + s)
    def text(self):
        return "\n".join(self.lines) + "\n"

def v(i, n=1):
    return f"v{i}" if n == 1 else f"v[{i}:{i+n-1}]"
def s(i, n=1):
    return f"s{i}" if n == 1 else f"s[{i}:{i+n-1}]"

class Regs:
    def __init__(self, start, limit):
        self.cur = start; self.limit = limit; self.names = {}
    def alloc(self, n=1, align=1, name=None):
        self.cur = (self.cur + align - 1) // align * align
        r = self.cur
        self.cur += n
        assert self.cur <= self.limit, f"out of regs allocating {name} ({self.cur} > {self.limit})"
        if name: self.names[name] = (r, n)
        return r

def srd(a, dst, base, size, off=0, tmp=None):
    if off:
        a(f"s_add_u32 {s(dst)}, {s(base)}, {off}")
        a(f"s_addc_u32 {s(dst+1)}, {s(base+1)}, 0")
    else:
        a(f"s_mov_b32 {s(dst)}, {s(base)}")
        a(f"s_mov_b32 {s(dst+1)}, {s(base+1)}")
    a(f"s_mov_b32 {s(dst+2)}, {size}")
    a(f"s_mov_b32 {s(dst+3)}, 0x00020000")
```

```python
from asmlib import *

N = 10000; E = 160000
NCH = 40
CHUNK = 4000
NGEMM = 209
NBIN = 63; BINW = 160
HOTCAP = 1024
RECB = 20
PHI_OFF = 0
PHI_SIZE = N * 768 * 2
CNT_OFF = 15360000
CNT_SIZE = NCH * 256
REC_OFF = 16777216
HOT_SIZE = NBIN * HOTCAP * RECB
COLD_BIN = E * RECB
REC_SIZE = HOT_SIZE + NBIN * COLD_BIN
K1_LDS = 147456
NSLOT = 6
S_LDS = 0; H_LDS = 24576; RING_LDS = 49152

P_SV, P_POS, P_SRC, P_DST, P_FRQ, P_W1, P_W2, P_WR = 16, 18, 20, 22, 24, 26, 28, 30
P_OUT, P_DBG, P_WS = 32, 34, 36

def load_kernargs(a):
    a("s_load_dwordx16 s[16:31], s[0:1], 0")
    a("s_load_dwordx4 s[32:35], s[0:1], 64")
    a("s_load_dwordx2 s[36:37], s[0:1], 80")

def gemm_role(a, opt):
    SV, W1, W2, PHI = 40, 44, 48, 52
    sW, sN0, sT, sOff = 56, 57, 58, 59
    st = opt.get('phi_store_flags', '')
    a.c("===== GEMM role =====")
    a("s_sub_u32 s60, s2, %d" % NCH)
    a("s_mul_i32 s57, s60, 48")
    a("v_lshrrev_b32 v1, 6, v0")
    a("v_and_b32 v2, 63, v0")
    a("s_waitcnt lgkmcnt(0)")
    a("v_readfirstlane_b32 s56, v1")
    srd(a, SV, P_SV, N * 2048)
    srd(a, W1, P_W1, 256 * 512)
    srd(a, W2, P_W2, 256 * 1536)
    srd(a, PHI, P_WS, PHI_SIZE, PHI_OFF)
    a("v_lshrrev_b32 v3, 5, v2")
    a("v_and_b32 v4, 31, v2")
    a("s_mul_i32 s58, s56, 3")
    for i in range(3):
        a(f"s_add_u32 s59, s58, {i}")
        a("s_lshl_b32 s61, s59, 1")
        a("v_add_u32 v5, s61, v3")
        a("v_and_b32 v6, 15, v5")
        a("v_xor_b32 v6, v6, v4")
        a("v_add_u32 v5, s57, v5")
        a("v_lshlrev_b32 v5, 11, v5")
        a("v_lshl_add_u32 v5, v6, 4, v5")
        a("s_lshl_b32 s61, s59, 10")
        a("s_mov_b32 m0, s61")
        a("s_nop 0")
        a(f"buffer_load_dwordx4 v5, {s(SV,4)}, 0 offen lds")
    a("s_cmp_ge_u32 s56, 4")
    a("s_cbranch_scc0 L_gemm_main")
    a.c("helper waves: warm L2 with a 16KB piece of W1|W2")
    a("s_lshr_b32 s58, s2, 3")
    a("s_and_b32 s58, s58, 31")
    a("s_sub_u32 s59, s56, 4")
    a("s_lshl_b32 s59, s59, 12")
    a("s_lshl_b32 s61, s58, 14")
    a("s_add_u32 s61, s61, s59")
    a("v_lshlrev_b32 v5, 4, v2")
    a("s_cmp_lt_u32 s61, 131072")
    a("s_cbranch_scc0 L_warm_w2")
    for i in range(4):
        a(f"buffer_load_dwordx4 v[{8+4*i}:{11+4*i}], v5, {s(W1,4)}, s61 offen offset:{1024*i}")
    a("s_branch L_warm_done")
    a.label("L_warm_w2")
    a("s_sub_u32 s61, s61, 131072")
    for i in range(4):
        a(f"buffer_load_dwordx4 v[{8+4*i}:{11+4*i}], v5, {s(W2,4)}, s61 offen offset:{1024*i}")
    a.label("L_warm_done")
    a("s_waitcnt vmcnt(4)")
    a("s_barrier")
    a("s_endpgm")
    a.label("L_gemm_main")
    R = Regs(8, 256)
    vW1 = R.alloc(4); vW2 = R.alloc(4)
    vTR = R.alloc(4)
    vB = R.alloc(4)
    vHW = R.alloc(1)
    vST = R.alloc(3)
    vT = R.alloc(12, 4)
    vA = [R.alloc(16, 4), R.alloc(16, 4)]
    vBF = R.alloc(96, 4)
    vAcc = R.alloc(48, 4)
    vPk = R.alloc(16, 4)
    def acc(rt, t): return vAcc + (rt * 3 + t) * 4
    def bf(t, ks): return vBF + (t * 8 + ks) * 4
    a(f"v_lshrrev_b32 {v(vT)}, 3, v2")
    a(f"v_and_b32 {v(vT+1)}, 7, v2")
    a(f"v_bfe_u32 {v(vT+2)}, v2, 4, 1")
    a(f"v_lshlrev_b32 {v(vT+2)}, 1, {v(vT+2)}")
    a(f"s_lshl_b32 s58, s56, 7")
    a(f"s_mul_i32 s59, s56, 384")
    for q in range(4):
        a(f"v_xor_b32 {v(vT+3)}, {v(vT+1)}, {v(vT+2)}")
        if q & 1:
            a(f"v_xor_b32 {v(vT+3)}, 4, {v(vT+3)}")
        a(f"v_lshlrev_b32 {v(vT+3)}, 4, {v(vT+3)}")
        a(f"v_lshl_add_u32 {v(vW1+q)}, {v(vT)}, 9, {v(vT+3)}")
        a(f"v_add_u32 {v(vW1+q)}, s58, {v(vW1+q)}")
        a(f"v_add_u32 {v(vW1+q)}, {q*4096 - q*1024}, {v(vW1+q)}")
        a(f"v_mul_u32_u24 {v(vW2+q)}, 1536, {v(vT)}")
        a(f"v_add_u32 {v(vW2+q)}, {v(vW2+q)}, {v(vT+3)}")
        a(f"v_add_u32 {v(vW2+q)}, s59, {v(vW2+q)}")
        a(f"v_add_u32 {v(vW2+q)}, {q*12288 - q*1024}, {v(vW2+q)}")
    a(f"s_mul_i32 s62, s56, {NSLOT*4096}")
    a(f"s_add_u32 s62, s62, {RING_LDS}")
    chunks = []
    for b in range(4):
        for ks in range(8):
            chunks.append((b, ks))
    vm = []
    for i in range(3): vm.append(('S', i))
    def issue_chunk(n):
        b, ks = chunks[n]
        slot = n % NSLOT
        a(f"s_add_u32 s61, s62, {slot*4096}")
        a(f"s_mov_b32 m0, s61")
        if b == 0:
            a(f"s_mov_b32 s63, {ks*16384}")
        else:
            a(f"s_mov_b32 s63, {ks*49152 + (b-1)*128}")
        for q in range(4):
            if b == 0:
                yield f"buffer_load_dwordx4 {v(vW1+q)}, {s(W1,4)}, s63 offen offset:{q*1024} lds"
            else:
                yield f"buffer_load_dwordx4 {v(vW2+q)}, {s(W2,4)}, s63 offen offset:{q*1024} lds"
            vm.append(('C', n))
    def vm_wait_for(tag):
        idx = max(i for i, t in enumerate(vm) if t == tag)
        return len(vm) - 1 - idx
    for n in range(NSLOT):
        for ins in issue_chunk(n): a(ins)
    a(f"v_lshrrev_b32 {v(vT)}, 4, v2")
    a(f"v_bfe_u32 {v(vT+1)}, v2, 2, 2")
    a(f"v_and_b32 {v(vT+2)}, 3, v2")
    a(f"v_lshl_add_u32 {v(vT+3)}, {v(vT)}, 3, {v(vT+1)}")
    a(f"v_lshlrev_b32 {v(vT+3)}, 7, {v(vT+3)}")
    a(f"v_lshl_add_u32 {v(vT+3)}, {v(vT+2)}, 3, {v(vT+3)}")
    a(f"v_bfe_u32 {v(vT+4)}, v2, 3, 1")
    a(f"v_bfe_u32 {v(vT+5)}, v2, 4, 1")
    a(f"v_lshl_or_b32 {v(vT+4)}, {v(vT+5)}, 1, {v(vT+4)}")
    a(f"v_lshl_add_u32 {v(vT+3)}, {v(vT+4)}, 5, {v(vT+3)}")
    a(f"v_add_u32 {v(vT+3)}, s62, {v(vT+3)}")
    for rt in range(4):
        a(f"v_xor_b32 {v(vTR+rt)}, {rt<<5}, {v(vT+3)}")
    a(f"v_and_b32 {v(vT+1)}, 15, v2")
    a(f"v_and_b32 {v(vT+2)}, 3, v2")
    a(f"v_xor_b32 {v(vT+2)}, {v(vT+2)}, {v(vT)}")
    a(f"v_lshlrev_b32 {v(vT+2)}, 4, {v(vT+2)}")
    a(f"v_lshl_add_u32 {v(vT+2)}, {v(vT+1)}, 9, {v(vT+2)}")
    a(f"v_bfe_u32 {v(vT+3)}, v2, 2, 2")
    a(f"v_lshl_add_u32 {v(vT+2)}, {v(vT+3)}, 6, {v(vT+2)}")
    for j in range(4):
        a(f"v_xor_b32 {v(vB+j)}, {j<<6}, {v(vT+2)}")
    a(f"v_lshrrev_b32 {v(vT+3)}, 1, {v(vT)}")
    a(f"s_lshl_b32 s58, s56, 3")
    a(f"v_add_u32 {v(vT+3)}, s58, {v(vT+3)}")
    a(f"v_xor_b32 {v(vT+3)}, {v(vT+3)}, {v(vT+1)}")
    a(f"v_lshlrev_b32 {v(vT+3)}, 4, {v(vT+3)}")
    a(f"v_lshl_add_u32 {v(vT+3)}, {v(vT+1)}, 9, {v(vT+3)}")
    a(f"v_and_b32 {v(vT+4)}, 1, {v(vT)}")
    a(f"v_lshl_add_u32 {v(vHW)}, {v(vT+4)}, 3, {v(vT+3)}")
    a(f"v_add_u32 {v(vHW)}, {H_LDS}, {v(vHW)}")
    a(f"v_and_b32 {v(vT+3)}, 1, {v(vT)}")
    a(f"v_lshlrev_b32 {v(vT+3)}, 5, {v(vT+3)}")
    a(f"v_lshrrev_b32 {v(vT+4)}, 1, {v(vT)}")
    a(f"v_lshl_add_u32 {v(vT+3)}, {v(vT+4)}, 4, {v(vT+3)}")
    a(f"v_add_u32 {v(vT+3)}, s59, {v(vT+3)}")
    a(f"v_add_u32 {v(vT+4)}, s57, {v(vT+1)}")
    a(f"v_mul_u32_u24 {v(vT+4)}, 1536, {v(vT+4)}")
    a(f"v_add_u32 {v(vST)}, {v(vT+3)}, {v(vT+4)}")
    a(f"v_add_u32 {v(vST+1)}, {16*1536}, {v(vST)}")
    a(f"v_add_u32 {v(vST+2)}, {32*1536}, {v(vST)}")
    a(f"s_waitcnt vmcnt({vm_wait_for(('S',2))})")
    a("s_barrier")
    def read_bfrags(base):
        for ks in range(8):
            for t in range(3):
                a(f"ds_read_b128 {v(bf(t,ks),4)}, {v(vB+(ks&3))} offset:{base + t*8192 + (ks>>2)*256}")
    def tr_reads(n):
        slot = n % NSLOT
        buf = vA[n & 1]
        out = []
        for rt in range(4):
            out.append(f"ds_read_b64_tr_b16 {v(buf+rt*4,2)}, {v(vTR+rt)} offset:{slot*4096}")
            out.append(f"ds_read_b64_tr_b16 {v(buf+rt*4+2,2)}, {v(vTR+rt)} offset:{slot*4096+512}")
        return out
    read_bfrags(S_LDS)
    a(f"s_waitcnt vmcnt({vm_wait_for(('C',0))})")
    for ins in tr_reads(0): a(ins)
    for n in range(32):
        b, ks = chunks[n]
        buf = vA[n & 1]
        a.c(f"--- chunk {n} (block {b}, ks {ks})")
        a("s_waitcnt lgkmcnt(0)")
        side = []
        if n + NSLOT < 32:
            gen = issue_chunk(n + NSLOT)
            side_dma = []
            side_dma = list(_collect(a, gen))
            side += side_dma
        if n + 1 < 32:
            side.append(f"s_waitcnt vmcnt({vm_wait_for(('C', n+1))})")
            side += tr_reads(n + 1)
        mf = []
        for rt in range(4):
            for t in range(3):
                cc = "0" if ks == 0 else v(acc(rt, t), 4)
                mf.append(f"v_mfma_f32_16x16x32_bf16 {v(acc(rt,t),4)}, {v(buf+rt*4,4)}, {v(bf(t,ks),4)}, {cc}")
        si = 0
        for m in mf:
            a(m)
            if si < len(side):
                a(side[si]); si += 1
        while si < len(side):
            a(side[si]); si += 1
        if ks == 7:
            a("s_nop 7")
            a("s_nop 1")
            if b == 0:
                a.c("silu + write H")
                for rt in range(4):
                    for t in range(3):
                        A = acc(rt, t)
                        T = vPk + ((rt * 3 + t) & 1) * 8
                        for r in range(4):
                            a(f"v_mul_f32 {v(T+r)}, 0xbfb8aa3b, {v(A+r)}")
                        for r in range(4):
                            a(f"v_exp_f32 {v(T+r)}, {v(T+r)}")
                        a("s_nop 0")
                        for r in range(4):
                            a(f"v_add_f32 {v(T+r)}, 1.0, {v(T+r)}")
                        for r in range(4):
                            a(f"v_rcp_f32 {v(T+r)}, {v(T+r)}")
                        a("s_nop 0")
                        for r in range(4):
                            a(f"v_mul_f32 {v(T+r)}, {v(T+r)}, {v(A+r)}")
                        a(f"v_cvt_pk_bf16_f32 {v(T+4)}, {v(T)}, {v(T+1)}")
                        a(f"v_cvt_pk_bf16_f32 {v(T+5)}, {v(T+2)}, {v(T+3)}")
                        a(f"v_xor_b32 {v(T+6)}, {rt<<5}, {v(vHW)}")
                        a(f"ds_write_b64 {v(T+6)}, {v(T+4,2)} offset:{t*8192}")
                a("s_waitcnt lgkmcnt(0)")
                a("s_barrier")
                read_bfrags(H_LDS)
            else:
                a.c("epilogue: pack + store phi")
                k = 0
                for p in range(2):
                    for t in range(3):
                        X = acc(2*p, t); Y = acc(2*p+1, t)
                        T = vPk + (k & 3) * 4; k += 1
                        a(f"v_cvt_pk_bf16_f32 {v(T)}, {v(X)}, {v(X+1)}")
                        a(f"v_cvt_pk_bf16_f32 {v(T+1)}, {v(X+2)}, {v(X+3)}")
                        a(f"v_cvt_pk_bf16_f32 {v(T+2)}, {v(Y)}, {v(Y+1)}")
                        a(f"v_cvt_pk_bf16_f32 {v(T+3)}, {v(Y+2)}, {v(Y+3)}")
                        a("s_nop 1")
                        a(f"v_permlane16_swap_b32 {v(T)}, {v(T+2)}")
                        a(f"v_permlane16_swap_b32 {v(T+1)}, {v(T+3)}")
                        a(f"buffer_store_dwordx4 {v(T,4)}, {v(vST+t)}, {s(PHI,4)}, 0 offen offset:{(b-1)*128 + p*64} {st}")
                        vm.append(('ST', n, p, t))
    a("s_endpgm")

def _collect(a, gen):
    for ins in gen:
        yield ins
```

```python
from asmlib import *
from k1 import *

BINC_LDS = 0
BASE_LDS = 256
LCNT_LDS = 512
LIST_LDS = 1024
POS_LDS = 33792

def rnd2(a, x, y, t):
    a(f"v_cvt_pk_bf16_f32 {v(t)}, {v(x)}, {v(y)}")
    a(f"v_lshlrev_b32 {v(x)}, 16, {v(t)}")
    a(f"v_and_b32 {v(y)}, 0xffff0000, {v(t)}")
def rnd1(a, x, t):
    a(f"v_cvt_pk_bf16_f32 {v(t)}, {v(x)}, {v(x)}")
    a(f"v_lshlrev_b32 {v(x)}, 16, {v(t)}")

def pos_addr(a, dst_addr, dst_sh, node):
    a(f"v_mul_u32_u24 {v(dst_addr)}, 6, {v(node)}")
    a(f"v_and_b32 {v(dst_addr)}, -4, {v(dst_addr)}")
    a(f"v_add_u32 {v(dst_addr)}, {POS_LDS}, {v(dst_addr)}")
    a(f"v_and_b32 {v(dst_sh)}, 1, {v(node)}")
    a(f"v_lshlrev_b32 {v(dst_sh)}, 4, {v(dst_sh)}")

def pos_unpack(a, d0, d1, sh, x, y, z):
    a(f"v_alignbit_b32 {v(d0)}, {v(d1)}, {v(d0)}, {v(sh)}")
    a(f"v_lshrrev_b32 {v(d1)}, {v(sh)}, {v(d1)}")
    a(f"v_lshlrev_b32 {v(x)}, 16, {v(d0)}")
    a(f"v_and_b32 {v(y)}, 0xffff0000, {v(d0)}")
    a(f"v_lshlrev_b32 {v(z)}, 16, {v(d1)}")

def dist(a, p, q, r, d, t):
    for i in range(3):
        a(f"v_sub_f32 {v(r+i)}, {v(p+i)}, {v(q+i)}")
    rnd2(a, r, r+1, t); rnd1(a, r+2, t)
    for i in range(3):
        a(f"v_mul_f32 {v(t+1+i)}, {v(r+i)}, {v(r+i)}")
    rnd2(a, t+1, t+2, t); rnd1(a, t+3, t)
    a(f"v_add_f32 {v(d)}, {v(t+1)}, {v(t+2)}")
    a(f"v_add_f32 {v(d)}, {v(d)}, {v(t+3)}")
    rnd1(a, d, t)
    a(f"v_add_f32 {v(d)}, 0x322bcc77, {v(d)}")
    rnd1(a, d, t)
    a(f"v_sqrt_f32 {v(d)}, {v(d)}")
    a("s_nop 0")
    rnd1(a, d, t)

def edge_role(a, opt):
    SPOS, SSRC, SDST, SDBG, SCNT, SREC = 40, 44, 48, 52, 56, 60
    sW = 64; sF = 66
    a.c("===== EDGE role =====")
    a("v_lshrrev_b32 v1, 6, v0")
    a("v_and_b32 v2, 63, v0")
    a("s_waitcnt lgkmcnt(0)")
    a("v_readfirstlane_b32 s64, v1")
    a(f"s_load_dwordx2 s[66:67], s[{P_FRQ}:{P_FRQ+1}], 0")
    srd(a, SPOS, P_POS, N * 6)
    srd(a, SSRC, P_SRC, E * 4)
    srd(a, SDST, P_DST, E * 4)
    srd(a, SDBG, P_DBG, 256)
    srd(a, SCNT, P_WS, CNT_SIZE, CNT_OFF)
    srd(a, SREC, P_WS, REC_SIZE, REC_OFF)
    a(f"s_mul_i32 s65, s2, {CHUNK*4}")
    a("v_lshlrev_b32 v3, 5, v0")
    a("v_add_u32 v3, s65, v3")
    vS, vD = 8, 16
    a("v_cmp_gt_u32 vcc, 500, v0")
    a("s_and_saveexec_b64 s[72:73], vcc")
    a("s_cbranch_execz L_e_noload")
    a(f"buffer_load_dwordx4 v[8:11], v3, {s(SSRC,4)}, 0 offen")
    a(f"buffer_load_dwordx4 v[12:15], v3, {s(SSRC,4)}, 0 offen offset:16")
    a(f"buffer_load_dwordx4 v[16:19], v3, {s(SDST,4)}, 0 offen")
    a(f"buffer_load_dwordx4 v[20:23], v3, {s(SDST,4)}, 0 offen offset:16")
    a.label("L_e_noload")
    a("s_mov_b64 exec, s[72:73]")
    a("v_lshlrev_b32 v4, 4, v2")
    for i in range(8):
        a(f"s_lshl_b32 s65, s64, 13")
        a(f"s_add_u32 s65, s65, {i*1024}")
        a(f"s_add_u32 s78, s65, {POS_LDS}")
        a("s_mov_b32 m0, s78")
        a("s_nop 0")
        a(f"buffer_load_dwordx4 v4, {s(SPOS,4)}, s65 offen lds")
    a("s_cmp_eq_u32 s64, 0")
    a("s_cbranch_scc0 L_e_nozero")
    a("v_mov_b32 v5, 0")
    a("v_lshlrev_b32 v6, 2, v2")
    a(f"ds_write_b32 v6, v5 offset:{BINC_LDS}")
    a(f"v_mov_b32 v6, {LCNT_LDS}")
    a("ds_write_b32 v6, v5")
    a.label("L_e_nozero")
    a("s_waitcnt vmcnt(0) lgkmcnt(0)")
    a("s_lshl_b32 s68, s66, 16")
    a("s_and_b32 s69, s66, 0xffff0000")
    a("s_lshl_b32 s70, s67, 16")
    a("s_and_b32 s71, s67, 0xffff0000")
    a("s_barrier")
    a("v_cmp_gt_u32 vcc, 500, v0")
    a("s_and_saveexec_b64 s[72:73], vcc")
    a("s_cbranch_execz L_e_pass1_done")
    vPA = 24
    vSH = 40
    vRAW = 56
    for e in range(8):
        pos_addr(a, vPA+2*e, vSH+2*e, vS+e)
        pos_addr(a, vPA+2*e+1, vSH+2*e+1, vD+e)
    for e in range(8):
        a(f"ds_read2_b32 {v(vRAW+4*e,2)}, {v(vPA+2*e)} offset0:0 offset1:1")
        a(f"ds_read2_b32 {v(vRAW+4*e+2,2)}, {v(vPA+2*e+1)} offset0:0 offset1:1")
    P, Q, Rr, Dd, T = 88, 91, 94, 97, 98
    vOne = 103; vBin = 104; vRank = 105; vLp = 106; vKey = 108
    a(f"v_mov_b32 {v(vOne)}, 1")
    for e in range(8):
        a(f"s_waitcnt lgkmcnt({min(15, 2*(7-e))})")
        pos_unpack(a, vRAW+4*e, vRAW+4*e+1, vSH+2*e, P, P+1, P+2)
        pos_unpack(a, vRAW+4*e+2, vRAW+4*e+3, vSH+2*e+1, Q, Q+1, Q+2)
        dist(a, P, Q, Rr, Dd, T)
        a(f"v_cmp_gt_f32 vcc, 0x40a00000, {v(Dd)}")
        a("s_and_saveexec_b64 s[74:75], vcc")
        a(f"s_cbranch_execz L_e_na{e}")
        a(f"v_mul_u32_u24 {v(vBin)}, 52429, {v(vD+e)}")
        a(f"v_lshrrev_b32 {v(vBin)}, 23, {v(vBin)}")
        a(f"v_lshlrev_b32 {v(vLp)}, 2, {v(vBin)}")
        a(f"ds_add_rtn_u32 {v(vRank)}, {v(vLp)}, {v(vOne)} offset:{BINC_LDS}")
        a(f"v_mov_b32 {v(vLp)}, {LCNT_LDS}")
        a(f"ds_add_rtn_u32 {v(vLp)}, {v(vLp)}, {v(vOne)}")
        a(f"v_lshl_or_b32 {v(vKey)}, {v(vD+e)}, 14, {v(vS+e)}")
        a("s_waitcnt lgkmcnt(0)")
        a(f"v_mov_b32 {v(vKey+1)}, {v(vRank)}")
        a(f"v_lshlrev_b32 {v(vLp)}, 3, {v(vLp)}")
        a(f"ds_write_b64 {v(vLp)}, {v(vKey,2)} offset:{LIST_LDS}")
        a.label(f"L_e_na{e}")
        a("s_mov_b64 exec, s[74:75]")
    a.label("L_e_pass1_done")
    a("s_mov_b64 exec, s[72:73]")
    a("s_waitcnt lgkmcnt(0)")
    a("s_barrier")
    vCnt = 24; vOld = 25; vOff = 26
    a("s_cmp_eq_u32 s64, 0")
    a("s_cbranch_scc0 L_e_noatom")
    a(f"v_lshlrev_b32 {v(vOff)}, 2, v2")
    a(f"ds_read_b32 {v(vCnt)}, {v(vOff)} offset:{BINC_LDS}")
    a("s_waitcnt lgkmcnt(0)")
    a(f"v_mov_b32 {v(vOld)}, {v(vCnt)}")
    a(f"buffer_atomic_add {v(vOld)}, {v(vOff)}, {s(SDBG,4)}, 0 offen sc0")
    a(f"s_lshl_b32 s65, s2, 8")
    a(f"buffer_store_dword {v(vCnt)}, {v(vOff)}, {s(SCNT,4)}, s65 offen")
    a.label("L_e_noatom")
    a(f"v_mov_b32 v28, {LCNT_LDS}")
    a("ds_read_b32 v28, v28")
    a("s_waitcnt lgkmcnt(0)")
    a("v_readfirstlane_b32 s76, v28")
    a("v_mov_b32 v29, v0")
    a("s_mov_b32 s77, 0")
    a.label("L_e_loop")
    a("v_cmp_gt_u32 vcc, s76, v29")
    a("s_and_saveexec_b64 s[72:73], vcc")
    a("s_cbranch_execz L_e_geo_done")
    vE = 30
    a("v_lshlrev_b32 v32, 3, v29")
    a(f"ds_read_b64 v[30:31], v32 offset:{LIST_LDS}")
    a("s_waitcnt lgkmcnt(0)")
    vSrc, vDst = 33, 34
    a(f"v_and_b32 {v(vSrc)}, 0x3fff, v30")
    a(f"v_lshrrev_b32 {v(vDst)}, 14, v30")
    pos_addr(a, 36, 38, vSrc)
    pos_addr(a, 37, 39, vDst)
    a("ds_read2_b32 v[40:41], v36 offset0:0 offset1:1")
    a("ds_read2_b32 v[42:43], v37 offset0:0 offset1:1")
    a(f"v_mul_u32_u24 {v(vBin)}, 52429, {v(vDst)}")
    a(f"v_lshrrev_b32 {v(vBin)}, 23, {v(vBin)}")
    a("s_waitcnt lgkmcnt(0)")
    pos_unpack(a, 40, 41, 38, P, P+1, P+2)
    pos_unpack(a, 42, 43, 39, Q, Q+1, Q+2)
    dist(a, P, Q, Rr, Dd, T)
    vInv = 44; vG = 46; vFc = 45
    a(f"v_rcp_f32 {v(vInv)}, {v(Dd)}")
    for k in range(4):
        a(f"v_mul_f32 {v(vG+k)}, s{68+k}, {v(Dd)}")
    rnd2(a, vG, vG+1, T); rnd2(a, vG+2, vG+3, T)
    for k in range(4):
        a(f"v_mul_f32 {v(vG+k)}, 0.15915494, {v(vG+k)}")
    for k in range(4):
        a(f"v_sin_f32 {v(vG+k)}, {v(vG+k)}")
    a(f"v_mul_f32 {v(vFc)}, 0x40490fdb, {v(Dd)}")
    rnd2(a, vG, vG+1, T); rnd2(a, vG+2, vG+3, T)
    rnd1(a, vFc, T)
    a(f"v_mul_f32 {v(vFc)}, 0x3e4ccccd, {v(vFc)}")
    rnd1(a, vFc, T)
    a(f"v_mul_f32 {v(vFc)}, 0.15915494, {v(vFc)}")
    a(f"v_cos_f32 {v(vFc)}, {v(vFc)}")
    for k in range(4):
        a(f"v_mul_f32 {v(vG+k)}, {v(vG+k)}, {v(vInv)}")
    rnd1(a, vFc, T)
    rnd2(a, vG, vG+1, T); rnd2(a, vG+2, vG+3, T)
    a(f"v_add_f32 {v(vFc)}, 1.0, {v(vFc)}")
    rnd1(a, vFc, T)
    a(f"v_mul_f32 {v(vFc)}, 0.5, {v(vFc)}")
    for i in range(3):
        a(f"v_mul_f32 {v(Rr+i)}, {v(Rr+i)}, {v(vInv)}")
    for k in range(4):
        a(f"v_mul_f32 {v(vG+k)}, {v(vG+k)}, {v(vFc)}")
    a(f"v_cvt_pk_bf16_f32 v53, {v(vG)}, {v(vG+1)}")
    a(f"v_cvt_pk_bf16_f32 v54, {v(vG+2)}, {v(vG+3)}")
    a(f"v_cvt_pk_bf16_f32 v55, {v(Rr)}, {v(Rr+1)}")
    a(f"v_cvt_pk_bf16_f32 v56, {v(Rr+2)}, {v(Rr+2)}")
    a(f"v_mul_u32_u24 v57, {BINW}, {v(vBin)}")
    a(f"v_sub_u32 v57, {v(vDst)}, v57")
    a(f"v_lshl_or_b32 v52, v57, 14, {v(vSrc)}")
    a.label("L_e_geo_done")
    a("s_mov_b64 exec, s[72:73]")
    a("s_cmp_eq_u32 s77, 0")
    a("s_cbranch_scc0 L_e_store")
    a("s_mov_b32 s77, 1")
    a("s_cmp_eq_u32 s64, 0")
    a("s_cbranch_scc0 L_e_nobase")
    a("s_waitcnt vmcnt(0)")
    a(f"ds_write_b32 {v(vOff)}, {v(vOld)} offset:{BASE_LDS}")
    a.label("L_e_nobase")
    a("s_waitcnt lgkmcnt(0)")
    a("s_barrier")
    a.label("L_e_store")
    a("v_cmp_gt_u32 vcc, s76, v29")
    a("s_and_saveexec_b64 s[72:73], vcc")
    a("s_cbranch_execz L_e_st_done")
    a(f"v_lshlrev_b32 v58, 2, {v(vBin)}")
    a(f"ds_read_b32 v58, v58 offset:{BASE_LDS}")
    a("s_waitcnt lgkmcnt(0)")
    a("v_add_u32 v58, v58, v31")
    a(f"v_lshl_add_u32 v59, {v(vBin)}, 10, v58")
    a(f"v_mul_u32_u24 v59, {RECB}, v59")
    a(f"s_mov_b32 s78, {COLD_BIN}")
    a(f"v_mul_lo_u32 v60, {v(vBin)}, s78")
    a(f"v_mul_u32_u24 v61, {RECB}, v58")
    a(f"v_add_u32 v60, v60, v61")
    a(f"v_add_u32 v60, {HOT_SIZE}, v60")
    a(f"v_cmp_gt_u32 vcc, {HOTCAP}, v58")
    a("s_nop 1")
    a("v_cndmask_b32 v59, v60, v59, vcc")
    a(f"buffer_store_dwordx4 v[52:55], v59, {s(SREC,4)}, 0 offen")
    a(f"buffer_store_dword v56, v59, {s(SREC,4)}, 0 offen offset:16")
    a.label("L_e_st_done")
    a("s_mov_b64 exec, s[72:73]")
    a("v_add_u32 v29, 512, v29")
    a("s_nop 0")
    a("v_readfirstlane_b32 s79, v29")
    a("s_and_b32 s79, s79, 0xfffffe00")
    a("s_cmp_lt_u32 s79, s76")
    a("s_cbranch_scc1 L_e_loop")
    stamp_k1_end(a, opt, 'e')
    a("s_endpgm")
```

```python
from asmlib import *
from k1 import *

K2_NWG = 250
NPW = 40
CAP = 24
SLOTB = 32
CTR_LDS = 0
WORK_LDS = 256
OVF_LDS = 260
SLOT_LDS = 512
RES_LDS = 31744
K2_LDS = RES_LDS + NPW * 2048

def k2x(a, opt):
    SV, PHI, OUT, REC, CNT, WR = 40, 44, 48, 52, 56, 60
    ost = opt.get('out_store_flags', '')
    a(f"s_cmp_ge_u32 s2, {K2_NWG}")
    a("s_cbranch_scc1 L_k2_exit")
    load_kernargs(a)
    a("v_lshrrev_b32 v1, 6, v0")
    a("v_and_b32 v2, 63, v0")
    a("s_lshr_b32 s65, s2, 2")
    a("s_and_b32 s66, s2, 3")
    a("s_mul_i32 s66, s66, 40")
    a("s_mul_i32 s67, s2, 40")
    a("s_waitcnt lgkmcnt(0)")
    a("v_readfirstlane_b32 s64, v1")
    srd(a, SV, P_SV, N * 2048)
    srd(a, PHI, P_WS, PHI_SIZE, PHI_OFF)
    srd(a, OUT, P_OUT, N * 2048)
    srd(a, REC, P_WS, REC_SIZE, REC_OFF)
    srd(a, CNT, P_WS, CNT_SIZE, CNT_OFF)
    srd(a, WR, P_WR, 4 * 1536)
    a("s_lshl_b32 s68, s65, 10")
    a("v_add_u32 v3, s68, v0")
    a(f"v_mul_u32_u24 v3, {RECB}, v3")
    a(f"buffer_load_dwordx4 v[8:11], v3, {s(REC,4)}, 0 offen")
    a(f"buffer_load_dword v12, v3, {s(REC,4)}, 0 offen offset:16")
    a("v_lshlrev_b32 v4, 8, v2")
    a("s_lshl_b32 s68, s65, 2")
    a(f"buffer_load_dword v13, v4, {s(CNT,4)}, s68 offen")
    vWraw = 64
    a("v_lshlrev_b32 v5, 3, v2")
    for k in range(4):
        for p in range(3):
            a(f"buffer_load_dwordx2 {v(vWraw+(k*3+p)*2,2)}, v5, {s(WR,4)}, 0 offen offset:{k*1536+p*512}" if k*1536+p*512 < 4096 else
              f"buffer_load_dwordx2 {v(vWraw+(k*3+p)*2,2)}, v5, {s(WR,4)}, s69 offen offset:{k*1536+p*512-4096}") if False else None
    a("s_movk_i32 s69, 3072")
    for k in range(4):
        for p in range(3):
            off = k*1536 + p*512
            if off < 3072:
                a(f"buffer_load_dwordx2 {v(vWraw+(k*3+p)*2,2)}, v5, {s(WR,4)}, 0 offen offset:{off}")
            else:
                a(f"buffer_load_dwordx2 {v(vWraw+(k*3+p)*2,2)}, v5, {s(WR,4)}, s69 offen offset:{off-3072}")
    a("v_lshlrev_b32 v6, 4, v2")
    a("s_lshl_b32 s70, s67, 11")
    for i in range(5):
        a("s_mul_i32 s68, s64, 5120")
        a(f"s_add_u32 s68, s68, {i*1024}")
        a(f"s_add_u32 s71, s68, {RES_LDS}")
        a("s_mov_b32 m0, s71")
        a("s_add_u32 s71, s70, s68")
        a(f"buffer_load_dwordx4 v6, {s(SV,4)}, s71 offen lds")
    a("s_cmp_eq_u32 s64, 0")
    a("s_cbranch_scc0 L_k2_nozero")
    a("v_mov_b32 v7, 0")
    a("v_lshlrev_b32 v14, 2, v2")
    a(f"ds_write_b32 v14, v7 offset:{CTR_LDS}")
    a(f"v_mov_b32 v14, {WORK_LDS}")
    a("ds_write_b32 v14, v7")
    a("ds_write_b32 v14, v7 offset:4")
    a("s_waitcnt lgkmcnt(0)")
    a.label("L_k2_nozero")
    a("s_barrier")
    a("s_waitcnt vmcnt(17)")
    a("v_add_u32_dpp v13, v13, v13 row_shr:1 row_mask:0xf bank_mask:0xf bound_ctrl:0" if False else "s_nop 1")
    a("v_mov_b32 v14, v13")
    a("s_nop 1")
    a("v_add_u32_dpp v14, v14, v14 row_shr:1 row_mask:0xf bank_mask:0xf bound_ctrl:0")
    a("s_nop 1")
    a("v_add_u32_dpp v14, v14, v14 row_shr:2 row_mask:0xf bank_mask:0xf bound_ctrl:0")
    a("s_nop 1")
    a("v_add_u32_dpp v14, v14, v14 row_shr:4 row_mask:0xf bank_mask:0xf bound_ctrl:0")
    a("s_nop 1")
    a("v_add_u32_dpp v14, v14, v14 row_shr:8 row_mask:0xf bank_mask:0xf bound_ctrl:0")
    a("s_nop 1")
    a("v_readlane_b32 s72, v14, 15")
    a("v_readlane_b32 s73, v14, 31")
    a("v_readlane_b32 s74, v14, 47")
    a("s_add_u32 s72, s72, s73")
    a("s_add_u32 s72, s72, s74")
    a("v_lshrrev_b32 v15, 14, v8")
    a("v_subrev_u32 v15, s66, v15")
    a("v_cmp_gt_u32 vcc, s72, v0")
    a("v_cmp_gt_u32 s[74:75], 40, v15")
    a("s_and_b64 vcc, vcc, s[74:75]")
    a("s_and_saveexec_b64 s[76:77], vcc")
    a("s_cbranch_execz L_k2_noins")
    a("v_lshlrev_b32 v16, 2, v15")
    a("v_mov_b32 v17, 1")
    a(f"ds_add_rtn_u32 v17, v16, v17 offset:{CTR_LDS}")
    a("v_and_b32 v20, 0x3fff, v8")
    a("v_mov_b32 v21, v9")
    a("v_mov_b32 v22, v10")
    a("v_lshlrev_b32 v23, 16, v11")
    a("v_and_b32 v24, 0xffff0000, v11")
    a("v_lshlrev_b32 v25, 16, v12")
    a("s_waitcnt lgkmcnt(0)")
    a(f"v_cmp_gt_u32 vcc, {CAP}, v17")
    a(f"v_mul_u32_u24 v18, {CAP}, v15")
    a("v_add_u32 v18, v18, v17")
    a("v_lshlrev_b32 v18, 5, v18")
    a("s_and_saveexec_b64 s[78:79], vcc")
    a(f"ds_write_b128 v18, v[20:23] offset:{SLOT_LDS}")
    a(f"ds_write_b64 v18, v[24:25] offset:{SLOT_LDS+16}")
    a("s_andn2_b64 exec, s[78:79], exec")
    a("s_cbranch_execz L_k2_noovf")
    a(f"v_mov_b32 v18, {OVF_LDS}")
    a("v_mov_b32 v19, 1")
    a("ds_write_b32 v18, v19")
    a.label("L_k2_noovf")
    a.label("L_k2_noins")
    a("s_mov_b64 exec, s[76:77]")
    vW = 96
    a("s_waitcnt vmcnt(5)")
    a("s_mov_b32 s68, 0x05040100")
    a("s_mov_b32 s69, 0x07060302")
    for p in range(3):
        for ch in range(4):
            d = ch >> 1
            sel = "s68" if (ch & 1) == 0 else "s69"
            for h in range(2):
                k0 = 2*h; k1 = 2*h+1
                r0 = vWraw + (k0*3+p)*2 + d; r1 = vWraw + (k1*3+p)*2 + d
                a(f"v_perm_b32 {v(vW+(p*4+ch)*2+h)}, {v(r1)}, {v(r0)}, {sel}")
    a("s_waitcnt vmcnt(0) lgkmcnt(0)")
    a("s_barrier")
    a(f"v_mov_b32 v14, {OVF_LDS}")
    a("ds_read_b32 v14, v14")
    a("s_waitcnt lgkmcnt(0)")
    a("v_readfirstlane_b32 s73, v14")
    a(f"s_cmp_gt_u32 s72, {HOTCAP}")
    a("s_cselect_b32 s74, 1, 0")
    a("s_or_b32 s73, s73, s74")
    a("s_cmp_lg_u32 s73, 0")
    a("s_cbranch_scc1 L_k2_slow")

    vAcc = 8
    vRaw = 24
    vRec = 72
    vWf = 80
    vU = 120
    vLane8 = 5
    vOffP = 6; vOffS = 7
    vTmp = 3

    def init_acc(nodeLdsOffReg):
        a(f"v_add_u32 {v(vTmp)}, {nodeLdsOffReg}, {v(vLane8)}")
        for c in range(4):
            a(f"ds_read_b64 {v(vRaw+2*c,2)}, {v(vTmp)} offset:{RES_LDS + c*512}")
        a("s_waitcnt lgkmcnt(0)")
        for c in range(4):
            for d in range(2):
                a(f"v_lshlrev_b32 {v(vAcc+c*4+2*d)}, 16, {v(vRaw+2*c+d)}")
                a(f"v_and_b32 {v(vAcc+c*4+2*d+1)}, 0xffff0000, {v(vRaw+2*c+d)}")

    def issue_rows(k, srcReg):
        a(f"v_mul_u32_u24 {v(vOffP)}, 1536, {v(srcReg)}")
        a(f"v_add_u32 {v(vOffP)}, {v(vOffP)}, {v(vLane8)}")
        a(f"v_lshl_add_u32 {v(vOffS)}, {v(srcReg)}, 11, {v(vLane8)}")
        R = vRaw + k*12
        for p in range(3):
            a(f"buffer_load_dwordx2 {v(R+2*p,2)}, {v(vOffP)}, {s(PHI,4)}, 0 offen offset:{p*512}")
        for j in range(3):
            a(f"buffer_load_dwordx2 {v(R+6+2*j,2)}, {v(vOffS)}, {s(SV,4)}, 0 offen offset:{512+j*512}")

    def compute(k):
        R = vRaw + k*12
        for p in range(3):
            for ch in range(4):
                a(f"v_dot2_f32_bf16 {v(vWf+p*4+ch)}, {v(vW+(p*4+ch)*2+1)}, {v(vRec+2)}, 0")
        for p in range(3):
            for ch in range(4):
                a(f"v_dot2_f32_bf16 {v(vWf+p*4+ch)}, {v(vW+(p*4+ch)*2)}, {v(vRec+1)}, {v(vWf+p*4+ch)}")
        for d in range(2):
            a(f"v_lshlrev_b32 {v(vU)}, 16, {v(R+d)}")
            a(f"v_and_b32 {v(vU+1)}, 0xffff0000, {v(R+d)}")
            a(f"v_fmac_f32 {v(vAcc+2*d)}, {v(vU)}, {v(vWf+2*d)}")
            a(f"v_fmac_f32 {v(vAcc+2*d+1)}, {v(vU+1)}, {v(vWf+2*d+1)}")
        for p in (1, 2):
            for d in range(2):
                a(f"v_lshlrev_b32 {v(vU)}, 16, {v(R+2*p+d)}")
                a(f"v_and_b32 {v(vU+1)}, 0xffff0000, {v(R+2*p+d)}")
                a(f"v_mul_f32 {v(vWf+p*4+2*d)}, {v(vU)}, {v(vWf+p*4+2*d)}")
                a(f"v_mul_f32 {v(vWf+p*4+2*d+1)}, {v(vU+1)}, {v(vWf+p*4+2*d+1)}")
        for j in range(3):
            for d in range(2):
                a(f"v_lshlrev_b32 {v(vU+2)}, 16, {v(R+6+2*j+d)}")
                a(f"v_and_b32 {v(vU+3)}, 0xffff0000, {v(R+6+2*j+d)}")
                A = vAcc + 4 + j*4 + 2*d
                a(f"v_fmac_f32 {v(A)}, {v(vU+2)}, {v(vWf+4+2*d)}")
                a(f"v_fmac_f32 {v(A+1)}, {v(vU+3)}, {v(vWf+4+2*d+1)}")
                a(f"v_fmac_f32 {v(A)}, {v(vRec+3+j)}, {v(vWf+8+2*d)}")
                a(f"v_fmac_f32 {v(A+1)}, {v(vRec+3+j)}, {v(vWf+8+2*d+1)}")

    def store_node(nodeReg):
        for c in range(4):
            for d in range(2):
                a(f"v_cvt_pk_bf16_f32 {v(vRaw+2*c+d)}, {v(vAcc+c*4+2*d)}, {v(vAcc+c*4+2*d+1)}")
        for c in range(4):
            a(f"buffer_store_dwordx2 {v(vRaw+2*c,2)}, {v(vLane8)}, {s(OUT,4)}, {nodeReg} offen offset:{c*512} {ost}")

    a.label("L_k2_next")
    a("s_mov_b64 exec, 1")
    a(f"v_mov_b32 {v(vTmp)}, {WORK_LDS}")
    a(f"v_mov_b32 {v(vU)}, 1")
    a(f"ds_add_rtn_u32 {v(vTmp)}, {v(vTmp)}, {v(vU)}")
    a("s_waitcnt lgkmcnt(0)")
    a(f"v_readfirstlane_b32 s80, {v(vTmp)}")
    a("s_mov_b64 exec, -1")
    a(f"s_cmp_ge_u32 s80, {NPW}")
    a("s_cbranch_scc1 L_k2_exit")
    a("s_lshl_b32 s81, s80, 2")
    a(f"v_mov_b32 {v(vTmp)}, s81")
    a(f"ds_read_b32 {v(vU)}, {v(vTmp)} offset:{CTR_LDS}")
    a(f"s_mul_i32 s82, s80, {CAP*SLOTB}")
    a("s_lshl_b32 s83, s80, 11")
    a("s_waitcnt lgkmcnt(0)")
    a(f"v_readfirstlane_b32 s84, {v(vU)}")
    a("s_mov_b32 s85, 0")
    init_acc("s83")
    a.label("L_k2_batch")
    a("s_sub_u32 s86, s84, s85")
    a("s_cmp_eq_u32 s86, 0")
    a("s_cbranch_scc1 L_k2_fin")
    a(f"s_lshl_b32 s87, s85, 5")
    a(f"s_add_u32 s87, s87, s82")
    a(f"v_mov_b32 {v(vTmp)}, s87")
    a(f"ds_read2_b32 {v(vU,2)}, {v(vTmp)} offset0:{0} offset1:{8}" .replace("offset0:0 ", "") if False else f"v_add_u32 {v(vTmp)}, {SLOT_LDS}, {v(vTmp)}")
    a(f"ds_read2_b32 {v(vU,2)}, {v(vTmp)} offset0:0 offset1:8")
    a(f"ds_read2_b32 {v(vU+2,2)}, {v(vTmp)} offset0:16 offset1:24")
    a("s_waitcnt lgkmcnt(0)")
    for k in range(4):
        if k > 0:
            a(f"s_cmp_le_u32 s86, {k}")
            a("s_cbranch_scc1 L_k2_issued")
        issue_rows(k, vU+k)
    a.label("L_k2_issued")
    a("s_waitcnt vmcnt(0)")
    for k in range(4):
        if k > 0:
            a(f"s_cmp_le_u32 s86, {k}")
            a("s_cbranch_scc1 L_k2_bdone")
        a(f"ds_read_b128 {v(vRec,4)}, {v(vTmp)} offset:{k*32}")
        a(f"ds_read_b64 {v(vRec+4,2)}, {v(vTmp)} offset:{k*32+16}")
        a("s_waitcnt lgkmcnt(0)")
        compute(k)
    a.label("L_k2_bdone")
    a("s_min_u32 s86, s86, 4")
    a("s_add_u32 s85, s85, s86")
    a("s_branch L_k2_batch")
    a.label("L_k2_fin")
    a("s_add_u32 s88, s67, s80")
    a("s_lshl_b32 s88, s88, 11")
    store_node("s88")
    a("s_branch L_k2_next")

    a.label("L_k2_slow")
    a("s_mov_b32 s80, s64")
    a.label("L_k2_snext")
    a(f"s_cmp_ge_u32 s80, {NPW}")
    a("s_cbranch_scc1 L_k2_exit")
    a("s_lshl_b32 s83, s80, 11")
    init_acc("s83")
    a("s_add_u32 s89, s66, s80")
    a("s_mov_b32 s85, 0")
    a(f"s_mul_i32 s90, s65, {COLD_BIN}")
    a(f"s_add_u32 s90, s90, {HOT_SIZE}")
    a("s_lshl_b32 s91, s65, 10")
    a.label("L_k2_sscan")
    a("s_cmp_ge_u32 s85, s72")
    a("s_cbranch_scc1 L_k2_sfin")
    a(f"v_add_u32 {v(vU)}, s85, v2")
    a(f"v_add_u32 {v(vU+1)}, s91, {v(vU)}")
    a(f"v_mul_u32_u24 {v(vU+1)}, {RECB}, {v(vU+1)}")
    a(f"v_mul_u32_u24 {v(vU+2)}, {RECB}, {v(vU)}")
    a(f"v_add_u32 {v(vU+2)}, s90, {v(vU+2)}")
    a(f"v_cmp_gt_u32 vcc, {HOTCAP}, {v(vU)}")
    a("s_nop 1")
    a(f"v_cndmask_b32 {v(vU+4)}, {v(vU+2)}, {v(vU+1)}, vcc")
    a(f"buffer_load_dword {v(vU+5)}, {v(vU+4)}, {s(REC,4)}, 0 offen")
    a("s_waitcnt vmcnt(0)")
    a(f"v_lshrrev_b32 {v(vU+5)}, 14, {v(vU+5)}")
    a(f"v_cmp_eq_u32 vcc, s89, {v(vU+5)}")
    a(f"v_cmp_gt_u32 s[92:93], s72, {v(vU)}")
    a("s_and_b64 s[92:93], s[92:93], vcc")
    a.label("L_k2_smatch")
    a("s_cmp_eq_u64 s[92:93], 0")
    a("s_cbranch_scc1 L_k2_sadv")
    a("s_ff1_i32_b64 s94, s[92:93]")
    a("s_bitset0_b64 s[92:93], s94")
    a(f"v_readlane_b32 s95, {v(vU+4)}, s94")
    a("s_nop 3")
    a(f"v_mov_b32 {v(vTmp)}, s95")
    a(f"buffer_load_dwordx4 {v(vRec,4)}, {v(vTmp)}, {s(REC,4)}, 0 offen")
    a(f"buffer_load_dword {v(vRec+5)}, {v(vTmp)}, {s(REC,4)}, 0 offen offset:16")
    a("s_waitcnt vmcnt(0)")
    a(f"v_and_b32 {v(vRec)}, 0x3fff, {v(vRec)}")
    a(f"v_and_b32 {v(vRec+4)}, 0xffff0000, {v(vRec+3)}")
    a(f"v_lshlrev_b32 {v(vRec+3)}, 16, {v(vRec+3)}")
    a(f"v_lshlrev_b32 {v(vRec+5)}, 16, {v(vRec+5)}")
    issue_rows(0, vRec)
    a("s_waitcnt vmcnt(0)")
    compute(0)
    a("s_branch L_k2_smatch")
    a.label("L_k2_sadv")
    a("s_add_u32 s85, s85, 64")
    a("s_branch L_k2_sscan")
    a.label("L_k2_sfin")
    a("s_add_u32 s88, s67, s80")
    a("s_lshl_b32 s88, s88, 11")
    store_node("s88")
    a("s_add_u32 s80, s80, 16")
    a("s_branch L_k2_snext")
    a.label("L_k2_exit")
    a("s_endpgm")
```

```python
import sys
from asmlib import *
import k1, k1edge, k2x

HDR = open("standalone__molecular_angular_painn__graph.s.ref").read().split("; Override launch")[0]

def kernel_desc(name, vgpr, sgpr):
    acc = (vgpr + 3)//4*4
    return f""".amdhsa_kernel {name}
  .amdhsa_next_free_vgpr {vgpr}
  .amdhsa_next_free_sgpr {sgpr}
  .amdhsa_accum_offset {acc}
  .amdhsa_group_segment_fixed_size 0
  .amdhsa_kernarg_size 88
  .amdhsa_user_sgpr_count 2
  .amdhsa_user_sgpr_kernarg_segment_ptr 1
  .amdhsa_system_sgpr_workgroup_id_x 1
  .amdhsa_float_denorm_mode_32 3
  .amdhsa_float_denorm_mode_16_64 3
.end_amdhsa_kernel
"""

def gen(opt):
    a = Asm()
    a.raw(HDR.rstrip("\n"))
    a.raw(f"; @launch kernel=painn_k1_kernel grid=({k1.NCH + k1.NGEMM},1,1) block=(512,1,1) lds={k1.K1_LDS}")
    a.raw(f"; @launch kernel=painn_k2_kernel grid=({k2x.K2_NWG},1,1) block=(1024,1,1) lds={k2x.K2_LDS}")
    a.raw('.amdgcn_target "amdgcn-amd-amdhsa--gfx950"')
    a.raw(".text")
    for name in ("painn_k1_kernel", "painn_k2_kernel"):
        a.raw(f".globl {name}")
        a.raw(".p2align 8")
        a.raw(f".type {name},@function")
        a.label(name)
        if name == "painn_k1_kernel":
            a(f"s_cmp_ge_u32 s2, {k1.NCH + k1.NGEMM}")
            a("s_cbranch_scc1 L_k1_exit")
            k1.load_kernargs(a)
            a(f"s_cmp_lt_u32 s2, {k1.NCH}")
            a("s_cbranch_scc1 L_k1_edge")
            k1.gemm_role(a, opt)
            a.label("L_k1_edge")
            k1edge.edge_role(a, opt)
            a.label("L_k1_exit")
            a("s_endpgm")
        else:
            k2x.k2x(a, opt)
    a.raw('.section .rodata,"a"')
    a.raw(".p2align 6")
    a.raw(kernel_desc("painn_k1_kernel", 256, 96))
    a.raw(".p2align 6")
    a.raw(kernel_desc("painn_k2_kernel", 128, 96))
    return a.text()

if __name__ == "__main__":
    out = sys.argv[1] if len(sys.argv) > 1 else "standalone__molecular_angular_painn__graph.s"
    opt = {}
    for kv in sys.argv[2:]:
        k, val = kv.split("=", 1); opt[k] = val
    open(out, "w").write(gen(opt))
    print("wrote", out)
```

```python
from asmlib import *

N = 10000; E = 160000
NCH = 40
CHUNK = 4000
NGEMM = 209
NBIN = 63; BINW = 160
HOTCAP = 1024
RECB = 20
PHI_OFF = 0
PHI_SIZE = N * 768 * 2
CNT_OFF = 15360000
CNT_SIZE = NCH * 256
REC_OFF = 16777216
HOT_SIZE = NBIN * HOTCAP * RECB
COLD_BIN = E * RECB
REC_SIZE = HOT_SIZE + NBIN * COLD_BIN
K1_LDS = 147456
NSLOT = 6
S_LDS = 0; H_LDS = 24576; RING_LDS = 49152

P_SV, P_POS, P_SRC, P_DST, P_FRQ, P_W1, P_W2, P_WR = 16, 18, 20, 22, 24, 26, 28, 30
P_OUT, P_DBG, P_WS = 32, 34, 36

def load_kernargs(a):
    a("s_load_dwordx16 s[16:31], s[0:1], 0")
    a("s_load_dwordx4 s[32:35], s[0:1], 64")
    a("s_load_dwordx2 s[36:37], s[0:1], 80")

STAMP_OFF = 15400000
def stamp_begin(a, opt):
    if opt.get('stamps'):
        a("s_memrealtime s[98:99]")
def stamp_k1_end(a, opt, tag):
    if not opt.get('stamps'): return
    a("s_waitcnt vmcnt(0) lgkmcnt(0)")
    a("s_memrealtime s[96:97]")
    a(f"s_add_u32 s94, s{P_WS}, {STAMP_OFF}")
    a(f"s_addc_u32 s95, s{P_WS+1}, 0")
    a("v_lshrrev_b32 v1, 6, v0")
    a("s_lshl_b32 s93, s2, 6")
    a("v_lshlrev_b32 v1, 3, v1")
    a("v_add_u32 v1, s93, v1")
    a("s_waitcnt lgkmcnt(0)")
    a("v_mov_b32 v2, s98")
    a("v_mov_b32 v3, s96")
    a("global_store_dwordx2 v1, v[2:3], s[94:95]")

def gemm_role(a, opt):
    SV, W1, W2, PHI = 40, 44, 48, 52
    sW, sN0, sT, sOff = 56, 57, 58, 59
    st = opt.get('phi_store_flags', '')
    a.c("===== GEMM role =====")
    a("s_sub_u32 s60, s2, %d" % NCH)
    a("s_mul_i32 s57, s60, 48")
    a("v_lshrrev_b32 v1, 6, v0")
    a("v_and_b32 v2, 63, v0")
    a("s_waitcnt lgkmcnt(0)")
    a("v_readfirstlane_b32 s56, v1")
    srd(a, SV, P_SV, N * 2048)
    srd(a, W1, P_W1, 256 * 512)
    srd(a, W2, P_W2, 256 * 1536)
    srd(a, PHI, P_WS, PHI_SIZE, PHI_OFF)
    a("v_lshrrev_b32 v3, 5, v2")
    a("v_and_b32 v4, 31, v2")
    a("s_mul_i32 s58, s56, 3")
    for i in range(3):
        a(f"s_add_u32 s59, s58, {i}")
        a("s_lshl_b32 s61, s59, 1")
        a("v_add_u32 v5, s61, v3")
        a("v_and_b32 v6, 15, v5")
        a("v_xor_b32 v6, v6, v4")
        a("v_add_u32 v5, s57, v5")
        a("v_lshlrev_b32 v5, 11, v5")
        a("v_lshl_add_u32 v5, v6, 4, v5")
        a("s_lshl_b32 s61, s59, 10")
        a("s_mov_b32 m0, s61")
        a("s_nop 0")
        a(f"buffer_load_dwordx4 v5, {s(SV,4)}, 0 offen lds")
    a("s_cmp_ge_u32 s56, 4")
    a("s_cbranch_scc0 L_gemm_main")
    a.c("helper waves: warm L2 with a 16KB piece of W1|W2")
    a("s_lshr_b32 s58, s2, 3")
    a("s_and_b32 s58, s58, 31")
    a("s_sub_u32 s59, s56, 4")
    a("s_lshl_b32 s59, s59, 12")
    a("s_lshl_b32 s61, s58, 14")
    a("s_add_u32 s61, s61, s59")
    a("v_lshlrev_b32 v5, 4, v2")
    a("s_cmp_lt_u32 s61, 131072")
    a("s_cbranch_scc0 L_warm_w2")
    for i in range(4):
        a(f"buffer_load_dwordx4 v[{8+4*i}:{11+4*i}], v5, {s(W1,4)}, s61 offen offset:{1024*i}")
    a("s_branch L_warm_done")
    a.label("L_warm_w2")
    a("s_sub_u32 s61, s61, 131072")
    for i in range(4):
        a(f"buffer_load_dwordx4 v[{8+4*i}:{11+4*i}], v5, {s(W2,4)}, s61 offen offset:{1024*i}")
    a.label("L_warm_done")
    a("s_waitcnt vmcnt(4)")
    a("s_barrier")
    stamp_k1_end(a, opt, 'h')
    a("s_endpgm")
    a.label("L_gemm_main")
    R = Regs(8, 256)
    vW1 = R.alloc(4); vW2 = R.alloc(4)
    vTR = R.alloc(4)
    vB = R.alloc(4)
    vHW = R.alloc(1)
    vST = R.alloc(3)
    vT = R.alloc(12, 4)
    vA = [R.alloc(16, 4), R.alloc(16, 4)]
    vBF = R.alloc(96, 4)
    vAcc = R.alloc(48, 4)
    vPk = R.alloc(16, 4)
    def acc(rt, t): return vAcc + (rt * 3 + t) * 4
    def bf(t, ks): return vBF + (t * 8 + ks) * 4
    a(f"v_lshrrev_b32 {v(vT)}, 3, v2")
    a(f"v_and_b32 {v(vT+1)}, 7, v2")
    a(f"v_bfe_u32 {v(vT+2)}, v2, 4, 1")
    a(f"v_lshlrev_b32 {v(vT+2)}, 1, {v(vT+2)}")
    a(f"s_lshl_b32 s58, s56, 7")
    a(f"s_mul_i32 s59, s56, 384")
    for q in range(4):
        a(f"v_xor_b32 {v(vT+3)}, {v(vT+1)}, {v(vT+2)}")
        if q & 1:
            a(f"v_xor_b32 {v(vT+3)}, 4, {v(vT+3)}")
        a(f"v_lshlrev_b32 {v(vT+3)}, 4, {v(vT+3)}")
        a(f"v_lshl_add_u32 {v(vW1+q)}, {v(vT)}, 9, {v(vT+3)}")
        a(f"v_add_u32 {v(vW1+q)}, s58, {v(vW1+q)}")
        a(f"v_add_u32 {v(vW1+q)}, {q*4096 - q*1024}, {v(vW1+q)}")
        a(f"v_mul_u32_u24 {v(vW2+q)}, 1536, {v(vT)}")
        a(f"v_add_u32 {v(vW2+q)}, {v(vW2+q)}, {v(vT+3)}")
        a(f"v_add_u32 {v(vW2+q)}, s59, {v(vW2+q)}")
        a(f"v_add_u32 {v(vW2+q)}, {q*12288 - q*1024}, {v(vW2+q)}")
    a(f"s_mul_i32 s62, s56, {NSLOT*4096}")
    a(f"s_add_u32 s62, s62, {RING_LDS}")
    chunks = []
    for b in range(4):
        for ks in range(8):
            chunks.append((b, ks))
    vm = []
    for i in range(3): vm.append(('S', i))
    def issue_chunk(n):
        b, ks = chunks[n]
        slot = n % NSLOT
        a(f"s_add_u32 s61, s62, {slot*4096}")
        a(f"s_mov_b32 m0, s61")
        if b == 0:
            a(f"s_mov_b32 s63, {ks*16384}")
        else:
            a(f"s_mov_b32 s63, {ks*49152 + (b-1)*128}")
        for q in range(4):
            if b == 0:
                yield f"buffer_load_dwordx4 {v(vW1+q)}, {s(W1,4)}, s63 offen offset:{q*1024} lds"
            else:
                yield f"buffer_load_dwordx4 {v(vW2+q)}, {s(W2,4)}, s63 offen offset:{q*1024} lds"
            vm.append(('C', n))
    def vm_wait_for(tag):
        idx = max(i for i, t in enumerate(vm) if t == tag)
        return len(vm) - 1 - idx
    for n in range(NSLOT):
        for ins in issue_chunk(n): a(ins)
    a(f"v_lshrrev_b32 {v(vT)}, 4, v2")
    a(f"v_bfe_u32 {v(vT+1)}, v2, 2, 2")
    a(f"v_and_b32 {v(vT+2)}, 3, v2")
    a(f"v_lshl_add_u32 {v(vT+3)}, {v(vT)}, 3, {v(vT+1)}")
    a(f"v_lshlrev_b32 {v(vT+3)}, 7, {v(vT+3)}")
    a(f"v_lshl_add_u32 {v(vT+3)}, {v(vT+2)}, 3, {v(vT+3)}")
    a(f"v_bfe_u32 {v(vT+4)}, v2, 3, 1")
    a(f"v_bfe_u32 {v(vT+5)}, v2, 4, 1")
    a(f"v_lshl_or_b32 {v(vT+4)}, {v(vT+5)}, 1, {v(vT+4)}")
    a(f"v_lshl_add_u32 {v(vT+3)}, {v(vT+4)}, 5, {v(vT+3)}")
    a(f"v_add_u32 {v(vT+3)}, s62, {v(vT+3)}")
    for rt in range(4):
        a(f"v_xor_b32 {v(vTR+rt)}, {rt<<5}, {v(vT+3)}")
    a(f"v_and_b32 {v(vT+1)}, 15, v2")
    a(f"v_and_b32 {v(vT+2)}, 3, v2")
    a(f"v_xor_b32 {v(vT+2)}, {v(vT+2)}, {v(vT)}")
    a(f"v_lshlrev_b32 {v(vT+2)}, 4, {v(vT+2)}")
    a(f"v_lshl_add_u32 {v(vT+2)}, {v(vT+1)}, 9, {v(vT+2)}")
    a(f"v_bfe_u32 {v(vT+3)}, v2, 2, 2")
    a(f"v_lshl_add_u32 {v(vT+2)}, {v(vT+3)}, 6, {v(vT+2)}")
    for j in range(4):
        a(f"v_xor_b32 {v(vB+j)}, {j<<6}, {v(vT+2)}")
    a(f"v_lshrrev_b32 {v(vT+3)}, 1, {v(vT)}")
    a(f"s_lshl_b32 s58, s56, 3")
    a(f"v_add_u32 {v(vT+3)}, s58, {v(vT+3)}")
    a(f"v_xor_b32 {v(vT+3)}, {v(vT+3)}, {v(vT+1)}")
    a(f"v_lshlrev_b32 {v(vT+3)}, 4, {v(vT+3)}")
    a(f"v_lshl_add_u32 {v(vT+3)}, {v(vT+1)}, 9, {v(vT+3)}")
    a(f"v_and_b32 {v(vT+4)}, 1, {v(vT)}")
    a(f"v_lshl_add_u32 {v(vHW)}, {v(vT+4)}, 3, {v(vT+3)}")
    a(f"v_add_u32 {v(vHW)}, {H_LDS}, {v(vHW)}")
    a(f"v_and_b32 {v(vT+3)}, 1, {v(vT)}")
    a(f"v_lshlrev_b32 {v(vT+3)}, 5, {v(vT+3)}")
    a(f"v_lshrrev_b32 {v(vT+4)}, 1, {v(vT)}")
    a(f"v_lshl_add_u32 {v(vT+3)}, {v(vT+4)}, 4, {v(vT+3)}")
    a(f"v_add_u32 {v(vT+3)}, s59, {v(vT+3)}")
    a(f"v_add_u32 {v(vT+4)}, s57, {v(vT+1)}")
    a(f"v_mul_u32_u24 {v(vT+4)}, 1536, {v(vT+4)}")
    a(f"v_add_u32 {v(vST)}, {v(vT+3)}, {v(vT+4)}")
    a(f"v_add_u32 {v(vST+1)}, {16*1536}, {v(vST)}")
    a(f"v_add_u32 {v(vST+2)}, {32*1536}, {v(vST)}")
    a(f"s_waitcnt vmcnt({vm_wait_for(('S',2))})")
    a("s_barrier")
    def read_bfrags(base):
        for ks in range(8):
            for t in range(3):
                a(f"ds_read_b128 {v(bf(t,ks),4)}, {v(vB+(ks&3))} offset:{base + t*8192 + (ks>>2)*256}")
    def tr_reads(n):
        slot = n % NSLOT
        buf = vA[n & 1]
        out = []
        for rt in range(4):
            out.append(f"ds_read_b64_tr_b16 {v(buf+rt*4,2)}, {v(vTR+rt)} offset:{slot*4096}")
            out.append(f"ds_read_b64_tr_b16 {v(buf+rt*4+2,2)}, {v(vTR+rt)} offset:{slot*4096+512}")
        return out
    read_bfrags(S_LDS)
    a(f"s_waitcnt vmcnt({vm_wait_for(('C',0))})")
    for ins in tr_reads(0): a(ins)
    for n in range(32):
        b, ks = chunks[n]
        buf = vA[n & 1]
        a.c(f"--- chunk {n} (block {b}, ks {ks})")
        a("s_waitcnt lgkmcnt(0)")
        side = []
        if n + NSLOT < 32:
            gen = issue_chunk(n + NSLOT)
            side_dma = []
            side_dma = list(_collect(a, gen))
            side += side_dma
        if n + 1 < 32:
            side.append(f"s_waitcnt vmcnt({vm_wait_for(('C', n+1))})")
            side += tr_reads(n + 1)
        mf = []
        for rt in range(4):
            for t in range(3):
                cc = "0" if ks == 0 else v(acc(rt, t), 4)
                mf.append(f"v_mfma_f32_16x16x32_bf16 {v(acc(rt,t),4)}, {v(buf+rt*4,4)}, {v(bf(t,ks),4)}, {cc}")
        si = 0
        for m in mf:
            a(m)
            if si < len(side):
                a(side[si]); si += 1
        while si < len(side):
            a(side[si]); si += 1
        if ks == 7:
            a("s_nop 7")
            a("s_nop 1")
            if b == 0:
                a.c("silu + write H")
                for rt in range(4):
                    for t in range(3):
                        A = acc(rt, t)
                        T = vPk + ((rt * 3 + t) & 1) * 8
                        for r in range(4):
                            a(f"v_mul_f32 {v(T+r)}, 0xbfb8aa3b, {v(A+r)}")
                        for r in range(4):
                            a(f"v_exp_f32 {v(T+r)}, {v(T+r)}")
                        a("s_nop 0")
                        for r in range(4):
                            a(f"v_add_f32 {v(T+r)}, 1.0, {v(T+r)}")
                        for r in range(4):
                            a(f"v_rcp_f32 {v(T+r)}, {v(T+r)}")
                        a("s_nop 0")
                        for r in range(4):
                            a(f"v_mul_f32 {v(T+r)}, {v(T+r)}, {v(A+r)}")
                        a(f"v_cvt_pk_bf16_f32 {v(T+4)}, {v(T)}, {v(T+1)}")
                        a(f"v_cvt_pk_bf16_f32 {v(T+5)}, {v(T+2)}, {v(T+3)}")
                        a(f"v_xor_b32 {v(T+6)}, {rt<<5}, {v(vHW)}")
                        a(f"ds_write_b64 {v(T+6)}, {v(T+4,2)} offset:{t*8192}")
                a("s_waitcnt lgkmcnt(0)")
                a("s_barrier")
                read_bfrags(H_LDS)
            else:
                a.c("epilogue: pack + store phi")
                k = 0
                for p in range(2):
                    for t in range(3):
                        X = acc(2*p, t); Y = acc(2*p+1, t)
                        T = vPk + (k & 3) * 4; k += 1
                        a(f"v_cvt_pk_bf16_f32 {v(T)}, {v(X)}, {v(X+1)}")
                        a(f"v_cvt_pk_bf16_f32 {v(T+1)}, {v(X+2)}, {v(X+3)}")
                        a(f"v_cvt_pk_bf16_f32 {v(T+2)}, {v(Y)}, {v(Y+1)}")
                        a(f"v_cvt_pk_bf16_f32 {v(T+3)}, {v(Y+2)}, {v(Y+3)}")
                        a("s_nop 1")
                        a(f"v_permlane16_swap_b32 {v(T)}, {v(T+2)}")
                        a(f"v_permlane16_swap_b32 {v(T+1)}, {v(T+3)}")
                        a(f"buffer_store_dwordx4 {v(T,4)}, {v(vST+t)}, {s(PHI,4)}, 0 offen offset:{(b-1)*128 + p*64} {st}")
                        vm.append(('ST', n, p, t))
    stamp_k1_end(a, opt, 'g')
    a("s_endpgm")

def _collect(a, gen):
    for ins in gen:
        yield ins
```

```python
from asmlib import *
from k1 import *

K2_NWG = 250
NPW = 40
CAP = 24
SLOTB = 32
CTR_LDS = 0
WORK_LDS = 256
OVF_LDS = 260
SLOT_LDS = 512
RES_LDS = 31744
K2_LDS = RES_LDS + NPW * 2048

def k2x(a, opt):
    SV, PHI, OUT, REC, CNT, WR = 40, 44, 48, 52, 56, 60
    ost = opt.get('out_store_flags', '')
    a(f"s_cmp_ge_u32 s2, {K2_NWG}")
    a("s_cbranch_scc1 L_k2_exit")
    stamp_begin(a, opt)
    load_kernargs(a)
    a("v_lshrrev_b32 v1, 6, v0")
    a("v_and_b32 v2, 63, v0")
    a("s_lshr_b32 s65, s2, 2")
    a("s_and_b32 s66, s2, 3")
    a("s_mul_i32 s66, s66, 40")
    a("s_mul_i32 s67, s2, 40")
    a("s_waitcnt lgkmcnt(0)")
    a("v_readfirstlane_b32 s64, v1")
    srd(a, SV, P_SV, N * 2048)
    srd(a, PHI, P_WS, PHI_SIZE, PHI_OFF)
    srd(a, OUT, P_OUT, N * 2048)
    srd(a, REC, P_WS, REC_SIZE, REC_OFF)
    srd(a, CNT, P_WS, CNT_SIZE, CNT_OFF)
    srd(a, WR, P_WR, 4 * 1536)
    a("s_lshl_b32 s68, s65, 10")
    a("v_add_u32 v3, s68, v0")
    a(f"v_mul_u32_u24 v3, {RECB}, v3")
    a(f"buffer_load_dwordx4 v[8:11], v3, {s(REC,4)}, 0 offen")
    a(f"buffer_load_dword v12, v3, {s(REC,4)}, 0 offen offset:16")
    a("v_lshlrev_b32 v4, 8, v2")
    a("s_lshl_b32 s68, s65, 2")
    a(f"buffer_load_dword v13, v4, {s(CNT,4)}, s68 offen")
    vWraw = 64
    a("v_lshlrev_b32 v5, 3, v2")
    for k in range(4):
        for p in range(3):
            a(f"buffer_load_dwordx2 {v(vWraw+(k*3+p)*2,2)}, v5, {s(WR,4)}, 0 offen offset:{k*1536+p*512}" if k*1536+p*512 < 4096 else
              f"buffer_load_dwordx2 {v(vWraw+(k*3+p)*2,2)}, v5, {s(WR,4)}, s69 offen offset:{k*1536+p*512-4096}") if False else None
    a("s_movk_i32 s69, 3072")
    for k in range(4):
        for p in range(3):
            off = k*1536 + p*512
            if off < 3072:
                a(f"buffer_load_dwordx2 {v(vWraw+(k*3+p)*2,2)}, v5, {s(WR,4)}, 0 offen offset:{off}")
            else:
                a(f"buffer_load_dwordx2 {v(vWraw+(k*3+p)*2,2)}, v5, {s(WR,4)}, s69 offen offset:{off-3072}")
    a("v_lshlrev_b32 v6, 4, v2")
    a("s_lshl_b32 s70, s67, 11")
    for i in range(5):
        a("s_mul_i32 s68, s64, 5120")
        a(f"s_add_u32 s68, s68, {i*1024}")
        a(f"s_add_u32 s71, s68, {RES_LDS}")
        a("s_mov_b32 m0, s71")
        a("s_add_u32 s71, s70, s68")
        a(f"buffer_load_dwordx4 v6, {s(SV,4)}, s71 offen lds")
    a("s_cmp_eq_u32 s64, 0")
    a("s_cbranch_scc0 L_k2_nozero")
    a("v_mov_b32 v7, 0")
    a("v_lshlrev_b32 v14, 2, v2")
    a(f"ds_write_b32 v14, v7 offset:{CTR_LDS}")
    a(f"v_mov_b32 v14, {WORK_LDS}")
    a("ds_write_b32 v14, v7")
    a("ds_write_b32 v14, v7 offset:4")
    a("s_waitcnt lgkmcnt(0)")
    a.label("L_k2_nozero")
    a("s_barrier")
    a("s_waitcnt vmcnt(17)")
    a("v_add_u32_dpp v13, v13, v13 row_shr:1 row_mask:0xf bank_mask:0xf bound_ctrl:0" if False else "s_nop 1")
    a("v_mov_b32 v14, v13")
    a("s_nop 1")
    a("v_add_u32_dpp v14, v14, v14 row_shr:1 row_mask:0xf bank_mask:0xf bound_ctrl:0")
    a("s_nop 1")
    a("v_add_u32_dpp v14, v14, v14 row_shr:2 row_mask:0xf bank_mask:0xf bound_ctrl:0")
    a("s_nop 1")
    a("v_add_u32_dpp v14, v14, v14 row_shr:4 row_mask:0xf bank_mask:0xf bound_ctrl:0")
    a("s_nop 1")
    a("v_add_u32_dpp v14, v14, v14 row_shr:8 row_mask:0xf bank_mask:0xf bound_ctrl:0")
    a("s_nop 1")
    a("v_readlane_b32 s72, v14, 15")
    a("v_readlane_b32 s73, v14, 31")
    a("v_readlane_b32 s74, v14, 47")
    a("s_add_u32 s72, s72, s73")
    a("s_add_u32 s72, s72, s74")
    a("v_lshrrev_b32 v15, 14, v8")
    a("v_subrev_u32 v15, s66, v15")
    a("v_cmp_gt_u32 vcc, s72, v0")
    a("v_cmp_gt_u32 s[74:75], 40, v15")
    a("s_and_b64 vcc, vcc, s[74:75]")
    a("s_and_saveexec_b64 s[76:77], vcc")
    a("s_cbranch_execz L_k2_noins")
    a("v_lshlrev_b32 v16, 2, v15")
    a("v_mov_b32 v17, 1")
    a(f"ds_add_rtn_u32 v17, v16, v17 offset:{CTR_LDS}")
    a("v_and_b32 v20, 0x3fff, v8")
    a("v_mov_b32 v21, v9")
    a("v_mov_b32 v22, v10")
    a("v_lshlrev_b32 v23, 16, v11")
    a("v_and_b32 v24, 0xffff0000, v11")
    a("v_lshlrev_b32 v25, 16, v12")
    a("s_waitcnt lgkmcnt(0)")
    a(f"v_cmp_gt_u32 vcc, {CAP}, v17")
    a(f"v_mul_u32_u24 v18, {CAP}, v15")
    a("v_add_u32 v18, v18, v17")
    a("v_lshlrev_b32 v18, 5, v18")
    a("s_and_saveexec_b64 s[78:79], vcc")
    a(f"ds_write_b128 v18, v[20:23] offset:{SLOT_LDS}")
    a(f"ds_write_b64 v18, v[24:25] offset:{SLOT_LDS+16}")
    a("s_andn2_b64 exec, s[78:79], exec")
    a("s_cbranch_execz L_k2_noovf")
    a(f"v_mov_b32 v18, {OVF_LDS}")
    a("v_mov_b32 v19, 1")
    a("ds_write_b32 v18, v19")
    a.label("L_k2_noovf")
    a.label("L_k2_noins")
    a("s_mov_b64 exec, s[76:77]")
    vW = 96
    a("s_waitcnt vmcnt(5)")
    a("s_mov_b32 s68, 0x05040100")
    a("s_mov_b32 s69, 0x07060302")
    for p in range(3):
        for ch in range(4):
            d = ch >> 1
            sel = "s68" if (ch & 1) == 0 else "s69"
            for h in range(2):
                k0 = 2*h; k1 = 2*h+1
                r0 = vWraw + (k0*3+p)*2 + d; r1 = vWraw + (k1*3+p)*2 + d
                a(f"v_perm_b32 {v(vW+(p*4+ch)*2+h)}, {v(r1)}, {v(r0)}, {sel}")
    a("s_waitcnt vmcnt(0) lgkmcnt(0)")
    a("s_barrier")
    if opt.get('stamps'):
        a("s_memrealtime s[96:97]")
        a("s_waitcnt lgkmcnt(0)")
        a("v_mov_b32 v14, s96")
        a("v_mov_b32 v15, 20")
        a("s_mov_b64 exec, 1")
        a(f"global_atomic_umax v15, v14, s[{P_DBG}:{P_DBG+1}]")
        a("s_not_b32 s96, s98")
        a("v_mov_b32 v14, s96")
        a("v_mov_b32 v15, 12")
        a(f"global_atomic_umax v15, v14, s[{P_DBG}:{P_DBG+1}]")
        a("s_mov_b64 exec, -1")
        a("s_or_b32 s96, s2, s64")
        a("s_cmp_eq_u32 s96, 0")
        a("s_cbranch_scc0 L_k2_nored")
        a(f"s_add_u32 s94, s{P_WS}, {STAMP_OFF}")
        a(f"s_addc_u32 s95, s{P_WS+1}, 0")
        a("v_mov_b32 v20, -1")
        a("v_mov_b32 v21, 0")
        a("v_mov_b32 v22, 0")
        a("v_mov_b32 v23, 0")
        for i in range(4):
            a(f"v_add_u32 v14, {64*i}, v2")
            a(f"v_cmp_gt_u32 vcc, {NCH+NGEMM}, v14")
            a("s_and_saveexec_b64 s[92:93], vcc")
            a("v_lshlrev_b32 v15, 6, v14")
            for w in range(4):
                a(f"global_load_dwordx2 v[{24+2*w}:{25+2*w}], v15, s[94:95] offset:{8*w}")
            a("s_waitcnt vmcnt(0)")
            for w in range(4):
                a(f"v_min_u32 v20, v20, v{24+2*w}")
                a(f"v_max_u32 v23, v23, v{24+2*w}")
                a(f"v_cmp_gt_u32 vcc, {NCH}, v14")
                a("s_nop 1")
                a(f"v_cndmask_b32 v16, 0, v{25+2*w}, vcc")
                a(f"v_cndmask_b32 v17, v{25+2*w}, 0, vcc") if False else None
                a(f"v_max_u32 v21, v21, v16")
                a(f"v_mov_b32 v17, 0")
                a(f"v_cndmask_b32 v16, v{25+2*w}, v17, vcc")
                a(f"v_max_u32 v22, v22, v16")
            a("s_mov_b64 exec, s[92:93]")
        a("v_not_b32 v20, v20")
        a("v_mov_b32 v15, 0")
        a(f"global_atomic_umax v15, v20, s[{P_DBG}:{P_DBG+1}]")
        a("v_mov_b32 v15, 4")
        a(f"global_atomic_umax v15, v21, s[{P_DBG}:{P_DBG+1}]")
        a("v_mov_b32 v15, 8")
        a(f"global_atomic_umax v15, v22, s[{P_DBG}:{P_DBG+1}]")
        a("v_mov_b32 v15, 24")
        a(f"global_atomic_umax v15, v23, s[{P_DBG}:{P_DBG+1}]")
        a.label("L_k2_nored")
    a(f"v_mov_b32 v14, {OVF_LDS}")
    a("ds_read_b32 v14, v14")
    a("s_waitcnt lgkmcnt(0)")
    a("v_readfirstlane_b32 s73, v14")
    a(f"s_cmp_gt_u32 s72, {HOTCAP}")
    a("s_cselect_b32 s74, 1, 0")
    a("s_or_b32 s73, s73, s74")
    a("s_cmp_lg_u32 s73, 0")
    a("s_cbranch_scc1 L_k2_slow")

    vAcc = 8
    vRaw = 24
    vRec = 72
    vWf = 80
    vU = 120
    vLane8 = 5
    vOffP = 6; vOffS = 7
    vTmp = 3

    def init_acc(nodeLdsOffReg):
        a(f"v_add_u32 {v(vTmp)}, {nodeLdsOffReg}, {v(vLane8)}")
        for c in range(4):
            a(f"ds_read_b64 {v(vRaw+2*c,2)}, {v(vTmp)} offset:{RES_LDS + c*512}")
        a("s_waitcnt lgkmcnt(0)")
        for c in range(4):
            for d in range(2):
                a(f"v_lshlrev_b32 {v(vAcc+c*4+2*d)}, 16, {v(vRaw+2*c+d)}")
                a(f"v_and_b32 {v(vAcc+c*4+2*d+1)}, 0xffff0000, {v(vRaw+2*c+d)}")

    def issue_rows(k, srcReg):
        a(f"v_mul_u32_u24 {v(vOffP)}, 1536, {v(srcReg)}")
        a(f"v_add_u32 {v(vOffP)}, {v(vOffP)}, {v(vLane8)}")
        a(f"v_lshl_add_u32 {v(vOffS)}, {v(srcReg)}, 11, {v(vLane8)}")
        R = vRaw + k*12
        for p in range(3):
            a(f"buffer_load_dwordx2 {v(R+2*p,2)}, {v(vOffP)}, {s(PHI,4)}, 0 offen offset:{p*512}")
        for j in range(3):
            a(f"buffer_load_dwordx2 {v(R+6+2*j,2)}, {v(vOffS)}, {s(SV,4)}, 0 offen offset:{512+j*512}")

    def compute(k):
        R = vRaw + k*12
        for p in range(3):
            for ch in range(4):
                a(f"v_dot2_f32_bf16 {v(vWf+p*4+ch)}, {v(vW+(p*4+ch)*2+1)}, {v(vRec+2)}, 0")
        for p in range(3):
            for ch in range(4):
                a(f"v_dot2_f32_bf16 {v(vWf+p*4+ch)}, {v(vW+(p*4+ch)*2)}, {v(vRec+1)}, {v(vWf+p*4+ch)}")
        for d in range(2):
            a(f"v_lshlrev_b32 {v(vU)}, 16, {v(R+d)}")
            a(f"v_and_b32 {v(vU+1)}, 0xffff0000, {v(R+d)}")
            a(f"v_fmac_f32 {v(vAcc+2*d)}, {v(vU)}, {v(vWf+2*d)}")
            a(f"v_fmac_f32 {v(vAcc+2*d+1)}, {v(vU+1)}, {v(vWf+2*d+1)}")
        for p in (1, 2):
            for d in range(2):
                a(f"v_lshlrev_b32 {v(vU)}, 16, {v(R+2*p+d)}")
                a(f"v_and_b32 {v(vU+1)}, 0xffff0000, {v(R+2*p+d)}")
                a(f"v_mul_f32 {v(vWf+p*4+2*d)}, {v(vU)}, {v(vWf+p*4+2*d)}")
                a(f"v_mul_f32 {v(vWf+p*4+2*d+1)}, {v(vU+1)}, {v(vWf+p*4+2*d+1)}")
        for j in range(3):
            for d in range(2):
                a(f"v_lshlrev_b32 {v(vU+2)}, 16, {v(R+6+2*j+d)}")
                a(f"v_and_b32 {v(vU+3)}, 0xffff0000, {v(R+6+2*j+d)}")
                A = vAcc + 4 + j*4 + 2*d
                a(f"v_fmac_f32 {v(A)}, {v(vU+2)}, {v(vWf+4+2*d)}")
                a(f"v_fmac_f32 {v(A+1)}, {v(vU+3)}, {v(vWf+4+2*d+1)}")
                a(f"v_fmac_f32 {v(A)}, {v(vRec+3+j)}, {v(vWf+8+2*d)}")
                a(f"v_fmac_f32 {v(A+1)}, {v(vRec+3+j)}, {v(vWf+8+2*d+1)}")

    def store_node(nodeReg):
        for c in range(4):
            for d in range(2):
                a(f"v_cvt_pk_bf16_f32 {v(vRaw+2*c+d)}, {v(vAcc+c*4+2*d)}, {v(vAcc+c*4+2*d+1)}")
        for c in range(4):
            a(f"buffer_store_dwordx2 {v(vRaw+2*c,2)}, {v(vLane8)}, {s(OUT,4)}, {nodeReg} offen offset:{c*512} {ost}")

    a.label("L_k2_next")
    a("s_mov_b64 exec, 1")
    a(f"v_mov_b32 {v(vTmp)}, {WORK_LDS}")
    a(f"v_mov_b32 {v(vU)}, 1")
    a(f"ds_add_rtn_u32 {v(vTmp)}, {v(vTmp)}, {v(vU)}")
    a("s_waitcnt lgkmcnt(0)")
    a(f"v_readfirstlane_b32 s80, {v(vTmp)}")
    a("s_mov_b64 exec, -1")
    a(f"s_cmp_ge_u32 s80, {NPW}")
    a("s_cbranch_scc1 L_k2_exit")
    a("s_lshl_b32 s81, s80, 2")
    a(f"v_mov_b32 {v(vTmp)}, s81")
    a(f"ds_read_b32 {v(vU)}, {v(vTmp)} offset:{CTR_LDS}")
    a(f"s_mul_i32 s82, s80, {CAP*SLOTB}")
    a("s_lshl_b32 s83, s80, 11")
    a("s_waitcnt lgkmcnt(0)")
    a(f"v_readfirstlane_b32 s84, {v(vU)}")
    a("s_mov_b32 s85, 0")
    init_acc("s83")
    a.label("L_k2_batch")
    a("s_sub_u32 s86, s84, s85")
    a("s_cmp_eq_u32 s86, 0")
    a("s_cbranch_scc1 L_k2_fin")
    a(f"s_lshl_b32 s87, s85, 5")
    a(f"s_add_u32 s87, s87, s82")
    a(f"v_mov_b32 {v(vTmp)}, s87")
    a(f"ds_read2_b32 {v(vU,2)}, {v(vTmp)} offset0:{0} offset1:{8}" .replace("offset0:0 ", "") if False else f"v_add_u32 {v(vTmp)}, {SLOT_LDS}, {v(vTmp)}")
    a(f"ds_read2_b32 {v(vU,2)}, {v(vTmp)} offset0:0 offset1:8")
    a(f"ds_read2_b32 {v(vU+2,2)}, {v(vTmp)} offset0:16 offset1:24")
    a("s_waitcnt lgkmcnt(0)")
    for k in range(4):
        if k > 0:
            a(f"s_cmp_le_u32 s86, {k}")
            a("s_cbranch_scc1 L_k2_issued")
        issue_rows(k, vU+k)
    a.label("L_k2_issued")
    a("s_waitcnt vmcnt(0)")
    for k in range(4):
        if k > 0:
            a(f"s_cmp_le_u32 s86, {k}")
            a("s_cbranch_scc1 L_k2_bdone")
        a(f"ds_read_b128 {v(vRec,4)}, {v(vTmp)} offset:{k*32}")
        a(f"ds_read_b64 {v(vRec+4,2)}, {v(vTmp)} offset:{k*32+16}")
        a("s_waitcnt lgkmcnt(0)")
        compute(k)
    a.label("L_k2_bdone")
    a("s_min_u32 s86, s86, 4")
    a("s_add_u32 s85, s85, s86")
    a("s_branch L_k2_batch")
    a.label("L_k2_fin")
    a("s_add_u32 s88, s67, s80")
    a("s_lshl_b32 s88, s88, 11")
    store_node("s88")
    a("s_branch L_k2_next")

    a.label("L_k2_slow")
    a("s_mov_b32 s80, s64")
    a.label("L_k2_snext")
    a(f"s_cmp_ge_u32 s80, {NPW}")
    a("s_cbranch_scc1 L_k2_exit")
    a("s_lshl_b32 s83, s80, 11")
    init_acc("s83")
    a("s_add_u32 s89, s66, s80")
    a("s_mov_b32 s85, 0")
    a(f"s_mul_i32 s90, s65, {COLD_BIN}")
    a(f"s_add_u32 s90, s90, {HOT_SIZE}")
    a("s_lshl_b32 s91, s65, 10")
    a.label("L_k2_sscan")
    a("s_cmp_ge_u32 s85, s72")
    a("s_cbranch_scc1 L_k2_sfin")
    a(f"v_add_u32 {v(vU)}, s85, v2")
    a(f"v_add_u32 {v(vU+1)}, s91, {v(vU)}")
    a(f"v_mul_u32_u24 {v(vU+1)}, {RECB}, {v(vU+1)}")
    a(f"v_mul_u32_u24 {v(vU+2)}, {RECB}, {v(vU)}")
    a(f"v_add_u32 {v(vU+2)}, s90, {v(vU+2)}")
    a(f"v_cmp_gt_u32 vcc, {HOTCAP}, {v(vU)}")
    a("s_nop 1")
    a(f"v_cndmask_b32 {v(vU+4)}, {v(vU+2)}, {v(vU+1)}, vcc")
    a(f"buffer_load_dword {v(vU+5)}, {v(vU+4)}, {s(REC,4)}, 0 offen")
    a("s_waitcnt vmcnt(0)")
    a(f"v_lshrrev_b32 {v(vU+5)}, 14, {v(vU+5)}")
    a(f"v_cmp_eq_u32 vcc, s89, {v(vU+5)}")
    a(f"v_cmp_gt_u32 s[92:93], s72, {v(vU)}")
    a("s_and_b64 s[92:93], s[92:93], vcc")
    a.label("L_k2_smatch")
    a("s_cmp_eq_u64 s[92:93], 0")
    a("s_cbranch_scc1 L_k2_sadv")
    a("s_ff1_i32_b64 s94, s[92:93]")
    a("s_bitset0_b64 s[92:93], s94")
    a(f"v_readlane_b32 s95, {v(vU+4)}, s94")
    a("s_nop 3")
    a(f"v_mov_b32 {v(vTmp)}, s95")
    a(f"buffer_load_dwordx4 {v(vRec,4)}, {v(vTmp)}, {s(REC,4)}, 0 offen")
    a(f"buffer_load_dword {v(vRec+5)}, {v(vTmp)}, {s(REC,4)}, 0 offen offset:16")
    a("s_waitcnt vmcnt(0)")
    a(f"v_and_b32 {v(vRec)}, 0x3fff, {v(vRec)}")
    a(f"v_and_b32 {v(vRec+4)}, 0xffff0000, {v(vRec+3)}")
    a(f"v_lshlrev_b32 {v(vRec+3)}, 16, {v(vRec+3)}")
    a(f"v_lshlrev_b32 {v(vRec+5)}, 16, {v(vRec+5)}")
    issue_rows(0, vRec)
    a("s_waitcnt vmcnt(0)")
    compute(0)
    a("s_branch L_k2_smatch")
    a.label("L_k2_sadv")
    a("s_add_u32 s85, s85, 64")
    a("s_branch L_k2_sscan")
    a.label("L_k2_sfin")
    a("s_add_u32 s88, s67, s80")
    a("s_lshl_b32 s88, s88, 11")
    store_node("s88")
    a("s_add_u32 s80, s80, 16")
    a("s_branch L_k2_snext")
    a.label("L_k2_exit")
    if opt.get('stamps'):
        a(f"s_cmp_ge_u32 s2, {K2_NWG}")
        a("s_cbranch_scc1 L_k2_exit2")
        a("s_waitcnt vmcnt(0)")
        a("s_memrealtime s[96:97]")
        a("s_waitcnt lgkmcnt(0)")
        a("s_mov_b64 exec, 1")
        a("v_mov_b32 v14, s96")
        a("v_mov_b32 v15, 16")
        a(f"global_atomic_umax v15, v14, s[{P_DBG}:{P_DBG+1}]")
        a.label("L_k2_exit2")
    a("s_endpgm")
```

```python
import sys
from asmlib import *
import k1, k1edge, k2x

HDR = open("standalone__molecular_angular_painn__graph.s.ref").read().split("; Override launch")[0]

def kernel_desc(name, vgpr, sgpr):
    acc = (vgpr + 3)//4*4
    return f""".amdhsa_kernel {name}
  .amdhsa_next_free_vgpr {vgpr}
  .amdhsa_next_free_sgpr {sgpr}
  .amdhsa_accum_offset {acc}
  .amdhsa_group_segment_fixed_size 0
  .amdhsa_kernarg_size 88
  .amdhsa_user_sgpr_count 2
  .amdhsa_user_sgpr_kernarg_segment_ptr 1
  .amdhsa_system_sgpr_workgroup_id_x 1
  .amdhsa_float_denorm_mode_32 3
  .amdhsa_float_denorm_mode_16_64 3
.end_amdhsa_kernel
"""

def gen(opt):
    a = Asm()
    a.raw(HDR.rstrip("\n"))
    a.raw(f"; @launch kernel=painn_k1_kernel grid=({k1.NCH + k1.NGEMM},1,1) block=(512,1,1) lds={k1.K1_LDS}")
    a.raw(f"; @launch kernel=painn_k2_kernel grid=({k2x.K2_NWG},1,1) block=(1024,1,1) lds={k2x.K2_LDS}")
    a.raw('.amdgcn_target "amdgcn-amd-amdhsa--gfx950"')
    a.raw(".text")
    for name in ("painn_k1_kernel", "painn_k2_kernel"):
        a.raw(f".globl {name}")
        a.raw(".p2align 8")
        a.raw(f".type {name},@function")
        a.label(name)
        if name == "painn_k1_kernel":
            a(f"s_cmp_ge_u32 s2, {k1.NCH + k1.NGEMM}")
            a("s_cbranch_scc1 L_k1_exit")
            k1.stamp_begin(a, opt)
            k1.load_kernargs(a)
            a(f"s_cmp_lt_u32 s2, {k1.NCH}")
            a("s_cbranch_scc1 L_k1_edge")
            k1.gemm_role(a, opt)
            a.label("L_k1_edge")
            k1edge.edge_role(a, opt)
            a.label("L_k1_exit")
            a("s_endpgm")
        else:
            k2x.k2x(a, opt)
    a.raw('.section .rodata,"a"')
    a.raw(".p2align 6")
    a.raw(kernel_desc("painn_k1_kernel", 256, 102))
    a.raw(".p2align 6")
    a.raw(kernel_desc("painn_k2_kernel", 128, 102))
    return a.text()

if __name__ == "__main__":
    out = sys.argv[1] if len(sys.argv) > 1 else "standalone__molecular_angular_painn__graph.s"
    opt = {}
    for kv in sys.argv[2:]:
        k, val = kv.split("=", 1); opt[k] = val
    open(out, "w").write(gen(opt))
    print("wrote", out)
```

```python
from asmlib import *
from k1 import *

K2_NWG = 250
NPW = 40
CAP = 24
SLOTB = 32
CTR_LDS = 0
WORK_LDS = 256
OVF_LDS = 260
SLOT_LDS = 512
RES_LDS = 31744
K2_LDS = RES_LDS + NPW * 2048

def k2x(a, opt):
    SV, PHI, OUT, REC, CNT, WR = 40, 44, 48, 52, 56, 60
    ost = opt.get('out_store_flags', '')
    a(f"s_cmp_ge_u32 s2, {K2_NWG}")
    a("s_cbranch_scc1 L_k2_exit")
    stamp_begin(a, opt)
    load_kernargs(a)
    a("v_lshrrev_b32 v1, 6, v0")
    a("v_and_b32 v2, 63, v0")
    a("s_lshr_b32 s65, s2, 2")
    a("s_and_b32 s66, s2, 3")
    a("s_mul_i32 s66, s66, 40")
    a("s_mul_i32 s67, s2, 40")
    a("s_waitcnt lgkmcnt(0)")
    a("v_readfirstlane_b32 s64, v1")
    srd(a, SV, P_SV, N * 2048)
    srd(a, PHI, P_WS, PHI_SIZE, PHI_OFF)
    srd(a, OUT, P_OUT, N * 2048)
    srd(a, REC, P_WS, REC_SIZE, REC_OFF)
    srd(a, CNT, P_WS, CNT_SIZE, CNT_OFF)
    srd(a, WR, P_WR, 4 * 1536)
    a("s_lshl_b32 s68, s65, 10")
    a("v_add_u32 v3, s68, v0")
    a(f"v_mul_u32_u24 v3, {RECB}, v3")
    a(f"buffer_load_dwordx4 v[8:11], v3, {s(REC,4)}, 0 offen")
    a(f"buffer_load_dword v12, v3, {s(REC,4)}, 0 offen offset:16")
    a("v_lshlrev_b32 v4, 8, v2")
    a("s_lshl_b32 s68, s65, 2")
    a(f"buffer_load_dword v13, v4, {s(CNT,4)}, s68 offen")
    vWraw = 64
    a("v_lshlrev_b32 v5, 3, v2")
    for k in range(4):
        for p in range(3):
            a(f"buffer_load_dwordx2 {v(vWraw+(k*3+p)*2,2)}, v5, {s(WR,4)}, 0 offen offset:{k*1536+p*512}" if k*1536+p*512 < 4096 else
              f"buffer_load_dwordx2 {v(vWraw+(k*3+p)*2,2)}, v5, {s(WR,4)}, s69 offen offset:{k*1536+p*512-4096}") if False else None
    a("s_movk_i32 s69, 3072")
    for k in range(4):
        for p in range(3):
            off = k*1536 + p*512
            if off < 3072:
                a(f"buffer_load_dwordx2 {v(vWraw+(k*3+p)*2,2)}, v5, {s(WR,4)}, 0 offen offset:{off}")
            else:
                a(f"buffer_load_dwordx2 {v(vWraw+(k*3+p)*2,2)}, v5, {s(WR,4)}, s69 offen offset:{off-3072}")
    a("v_lshlrev_b32 v6, 4, v2")
    a("s_lshl_b32 s70, s67, 11")
    for i in range(5):
        a("s_mul_i32 s68, s64, 5120")
        a(f"s_add_u32 s68, s68, {i*1024}")
        a(f"s_add_u32 s71, s68, {RES_LDS}")
        a("s_mov_b32 m0, s71")
        a("s_add_u32 s71, s70, s68")
        a(f"buffer_load_dwordx4 v6, {s(SV,4)}, s71 offen lds")
    a("s_cmp_eq_u32 s64, 0")
    a("s_cbranch_scc0 L_k2_nozero")
    a("v_mov_b32 v7, 0")
    a("v_lshlrev_b32 v14, 2, v2")
    a(f"ds_write_b32 v14, v7 offset:{CTR_LDS}")
    a(f"v_mov_b32 v14, {WORK_LDS}")
    a("ds_write_b32 v14, v7")
    a("ds_write_b32 v14, v7 offset:4")
    a("ds_write_b32 v14, v7 offset:8")
    a("ds_write_b32 v14, v7 offset:12")
    a("s_waitcnt lgkmcnt(0)")
    a.label("L_k2_nozero")
    a("s_barrier")
    a("s_waitcnt vmcnt(17)")
    a("v_add_u32_dpp v13, v13, v13 row_shr:1 row_mask:0xf bank_mask:0xf bound_ctrl:0" if False else "s_nop 1")
    a("v_mov_b32 v14, v13")
    a("s_nop 1")
    a("v_add_u32_dpp v14, v14, v14 row_shr:1 row_mask:0xf bank_mask:0xf bound_ctrl:0")
    a("s_nop 1")
    a("v_add_u32_dpp v14, v14, v14 row_shr:2 row_mask:0xf bank_mask:0xf bound_ctrl:0")
    a("s_nop 1")
    a("v_add_u32_dpp v14, v14, v14 row_shr:4 row_mask:0xf bank_mask:0xf bound_ctrl:0")
    a("s_nop 1")
    a("v_add_u32_dpp v14, v14, v14 row_shr:8 row_mask:0xf bank_mask:0xf bound_ctrl:0")
    a("s_nop 1")
    a("v_readlane_b32 s72, v14, 15")
    a("v_readlane_b32 s73, v14, 31")
    a("v_readlane_b32 s74, v14, 47")
    a("s_add_u32 s72, s72, s73")
    a("s_add_u32 s72, s72, s74")
    a("v_lshrrev_b32 v15, 14, v8")
    a("v_subrev_u32 v15, s66, v15")
    a("v_cmp_gt_u32 vcc, s72, v0")
    a("v_cmp_gt_u32 s[74:75], 40, v15")
    a("s_and_b64 vcc, vcc, s[74:75]")
    a("s_and_saveexec_b64 s[76:77], vcc")
    a("s_cbranch_execz L_k2_noins")
    a("v_lshlrev_b32 v16, 2, v15")
    a("v_mov_b32 v17, 1")
    a(f"ds_add_rtn_u32 v17, v16, v17 offset:{CTR_LDS}")
    a("v_and_b32 v20, 0x3fff, v8")
    a("v_mov_b32 v21, v9")
    a("v_mov_b32 v22, v10")
    a("v_lshlrev_b32 v23, 16, v11")
    a("v_and_b32 v24, 0xffff0000, v11")
    a("v_lshlrev_b32 v25, 16, v12")
    a("s_waitcnt lgkmcnt(0)")
    a(f"v_cmp_gt_u32 vcc, {CAP}, v17")
    a(f"v_mul_u32_u24 v18, {CAP}, v15")
    a("v_add_u32 v18, v18, v17")
    a("v_lshlrev_b32 v18, 5, v18")
    a("s_and_saveexec_b64 s[78:79], vcc")
    a(f"ds_write_b128 v18, v[20:23] offset:{SLOT_LDS}")
    a(f"ds_write_b64 v18, v[24:25] offset:{SLOT_LDS+16}")
    a("s_andn2_b64 exec, s[78:79], exec")
    a("s_cbranch_execz L_k2_noovf")
    a(f"v_mov_b32 v18, {OVF_LDS}")
    a("v_mov_b32 v19, 1")
    a("ds_write_b32 v18, v19")
    a.label("L_k2_noovf")
    a.label("L_k2_noins")
    a("s_mov_b64 exec, s[76:77]")
    vW = 96
    a("s_waitcnt vmcnt(5)")
    a("s_mov_b32 s68, 0x05040100")
    a("s_mov_b32 s69, 0x07060302")
    for p in range(3):
        for ch in range(4):
            d = ch >> 1
            sel = "s68" if (ch & 1) == 0 else "s69"
            for h in range(2):
                k0 = 2*h; k1 = 2*h+1
                r0 = vWraw + (k0*3+p)*2 + d; r1 = vWraw + (k1*3+p)*2 + d
                a(f"v_perm_b32 {v(vW+(p*4+ch)*2+h)}, {v(r1)}, {v(r0)}, {sel}")
    a("s_waitcnt vmcnt(0) lgkmcnt(0)")
    a("s_barrier")
    if opt.get('stamps'):
        a("s_memrealtime s[96:97]")
        a("s_waitcnt lgkmcnt(0)")
        a("s_cmp_eq_u32 s64, 0")
        a("s_cbranch_scc0 L_k2_nored")
        a("v_mov_b32 v14, s96")
        a("v_mov_b32 v15, 20")
        a("s_mov_b64 exec, 1")
        a(f"global_atomic_umax v15, v14, s[{P_DBG}:{P_DBG+1}]")
        a("s_not_b32 s96, s98")
        a("v_mov_b32 v14, s96")
        a("v_mov_b32 v15, 12")
        a(f"global_atomic_umax v15, v14, s[{P_DBG}:{P_DBG+1}]")
        a("s_mov_b64 exec, -1")
        a("s_or_b32 s96, s2, s64")
        a("s_cmp_eq_u32 s96, 0")
        a("s_cbranch_scc0 L_k2_nored")
        a(f"s_add_u32 s94, s{P_WS}, {STAMP_OFF}")
        a(f"s_addc_u32 s95, s{P_WS+1}, 0")
        a("v_mov_b32 v20, -1")
        a("v_mov_b32 v21, 0")
        a("v_mov_b32 v22, 0")
        a("v_mov_b32 v23, 0")
        for i in range(4):
            a(f"v_add_u32 v14, {64*i}, v2")
            a(f"v_cmp_gt_u32 vcc, {NCH+NGEMM}, v14")
            a("s_and_saveexec_b64 s[92:93], vcc")
            a("v_lshlrev_b32 v15, 6, v14")
            for w in range(4):
                a(f"global_load_dwordx2 v[{24+2*w}:{25+2*w}], v15, s[94:95] offset:{8*w}")
            a("s_waitcnt vmcnt(0)")
            for w in range(4):
                a(f"v_min_u32 v20, v20, v{24+2*w}")
                a(f"v_max_u32 v23, v23, v{24+2*w}")
                a(f"v_cmp_gt_u32 vcc, {NCH}, v14")
                a("s_nop 1")
                a(f"v_cndmask_b32 v16, 0, v{25+2*w}, vcc")
                a(f"v_cndmask_b32 v17, v{25+2*w}, 0, vcc") if False else None
                a(f"v_max_u32 v21, v21, v16")
                a(f"v_mov_b32 v17, 0")
                a(f"v_cndmask_b32 v16, v{25+2*w}, v17, vcc")
                a(f"v_max_u32 v22, v22, v16")
            a("s_mov_b64 exec, s[92:93]")
        a("v_not_b32 v20, v20")
        a("v_mov_b32 v15, 0")
        a(f"global_atomic_umax v15, v20, s[{P_DBG}:{P_DBG+1}]")
        a("v_mov_b32 v15, 4")
        a(f"global_atomic_umax v15, v21, s[{P_DBG}:{P_DBG+1}]")
        a("v_mov_b32 v15, 8")
        a(f"global_atomic_umax v15, v22, s[{P_DBG}:{P_DBG+1}]")
        a("v_mov_b32 v15, 24")
        a(f"global_atomic_umax v15, v23, s[{P_DBG}:{P_DBG+1}]")
        a.label("L_k2_nored")
    a(f"v_mov_b32 v14, {OVF_LDS}")
    a("ds_read_b32 v14, v14")
    a("s_waitcnt lgkmcnt(0)")
    a("v_readfirstlane_b32 s73, v14")
    a(f"s_cmp_gt_u32 s72, {HOTCAP}")
    a("s_cselect_b32 s74, 1, 0")
    a("s_or_b32 s73, s73, s74")
    a("s_cmp_lg_u32 s73, 0")
    a("s_cbranch_scc1 L_k2_slow")

    vAcc = 8
    vRaw = 24
    vRec = 72
    vWf = 80
    vU = 120
    vLane8 = 5
    vOffP = 6; vOffS = 7
    vTmp = 3

    def init_acc(nodeLdsOffReg):
        a(f"v_add_u32 {v(vTmp)}, {nodeLdsOffReg}, {v(vLane8)}")
        for c in range(4):
            a(f"ds_read_b64 {v(vRaw+2*c,2)}, {v(vTmp)} offset:{RES_LDS + c*512}")
        a("s_waitcnt lgkmcnt(0)")
        for c in range(4):
            for d in range(2):
                a(f"v_lshlrev_b32 {v(vAcc+c*4+2*d)}, 16, {v(vRaw+2*c+d)}")
                a(f"v_and_b32 {v(vAcc+c*4+2*d+1)}, 0xffff0000, {v(vRaw+2*c+d)}")

    def issue_rows(k, srcReg):
        a(f"v_mul_u32_u24 {v(vOffP)}, 1536, {v(srcReg)}")
        a(f"v_add_u32 {v(vOffP)}, {v(vOffP)}, {v(vLane8)}")
        a(f"v_lshl_add_u32 {v(vOffS)}, {v(srcReg)}, 11, {v(vLane8)}")
        R = vRaw + k*12
        for p in range(3):
            a(f"buffer_load_dwordx2 {v(R+2*p,2)}, {v(vOffP)}, {s(PHI,4)}, 0 offen offset:{p*512}")
        for j in range(3):
            a(f"buffer_load_dwordx2 {v(R+6+2*j,2)}, {v(vOffS)}, {s(SV,4)}, 0 offen offset:{512+j*512}")

    def compute(k):
        R = vRaw + k*12
        for p in range(3):
            for ch in range(4):
                a(f"v_dot2_f32_bf16 {v(vWf+p*4+ch)}, {v(vW+(p*4+ch)*2+1)}, {v(vRec+2)}, 0")
        for p in range(3):
            for ch in range(4):
                a(f"v_dot2_f32_bf16 {v(vWf+p*4+ch)}, {v(vW+(p*4+ch)*2)}, {v(vRec+1)}, {v(vWf+p*4+ch)}")
        for d in range(2):
            a(f"v_lshlrev_b32 {v(vU)}, 16, {v(R+d)}")
            a(f"v_and_b32 {v(vU+1)}, 0xffff0000, {v(R+d)}")
            a(f"v_fmac_f32 {v(vAcc+2*d)}, {v(vU)}, {v(vWf+2*d)}")
            a(f"v_fmac_f32 {v(vAcc+2*d+1)}, {v(vU+1)}, {v(vWf+2*d+1)}")
        for p in (1, 2):
            for d in range(2):
                a(f"v_lshlrev_b32 {v(vU)}, 16, {v(R+2*p+d)}")
                a(f"v_and_b32 {v(vU+1)}, 0xffff0000, {v(R+2*p+d)}")
                a(f"v_mul_f32 {v(vWf+p*4+2*d)}, {v(vU)}, {v(vWf+p*4+2*d)}")
                a(f"v_mul_f32 {v(vWf+p*4+2*d+1)}, {v(vU+1)}, {v(vWf+p*4+2*d+1)}")
        for j in range(3):
            for d in range(2):
                a(f"v_lshlrev_b32 {v(vU+2)}, 16, {v(R+6+2*j+d)}")
                a(f"v_and_b32 {v(vU+3)}, 0xffff0000, {v(R+6+2*j+d)}")
                A = vAcc + 4 + j*4 + 2*d
                a(f"v_fmac_f32 {v(A)}, {v(vU+2)}, {v(vWf+4+2*d)}")
                a(f"v_fmac_f32 {v(A+1)}, {v(vU+3)}, {v(vWf+4+2*d+1)}")
                a(f"v_fmac_f32 {v(A)}, {v(vRec+3+j)}, {v(vWf+8+2*d)}")
                a(f"v_fmac_f32 {v(A+1)}, {v(vRec+3+j)}, {v(vWf+8+2*d+1)}")

    def store_node(nodeReg):
        for c in range(4):
            for d in range(2):
                a(f"v_cvt_pk_bf16_f32 {v(vRaw+2*c+d)}, {v(vAcc+c*4+2*d)}, {v(vAcc+c*4+2*d+1)}")
        for c in range(4):
            a(f"buffer_store_dwordx2 {v(vRaw+2*c,2)}, {v(vLane8)}, {s(OUT,4)}, {nodeReg} offen offset:{c*512} {ost}")

    a.label("L_k2_next")
    a("s_mov_b64 exec, 1")
    a(f"v_mov_b32 {v(vTmp)}, {WORK_LDS}")
    a(f"v_mov_b32 {v(vU)}, 1")
    a(f"ds_add_rtn_u32 {v(vTmp)}, {v(vTmp)}, {v(vU)}")
    a("s_waitcnt lgkmcnt(0)")
    a(f"v_readfirstlane_b32 s80, {v(vTmp)}")
    a("s_mov_b64 exec, -1")
    a(f"s_cmp_ge_u32 s80, {NPW}")
    a("s_cbranch_scc1 L_k2_exit")
    a("s_lshl_b32 s81, s80, 2")
    a(f"v_mov_b32 {v(vTmp)}, s81")
    a(f"ds_read_b32 {v(vU)}, {v(vTmp)} offset:{CTR_LDS}")
    a(f"s_mul_i32 s82, s80, {CAP*SLOTB}")
    a("s_lshl_b32 s83, s80, 11")
    a("s_waitcnt lgkmcnt(0)")
    a(f"v_readfirstlane_b32 s84, {v(vU)}")
    a("s_mov_b32 s85, 0")
    init_acc("s83")
    a.label("L_k2_batch")
    a("s_sub_u32 s86, s84, s85")
    a("s_cmp_eq_u32 s86, 0")
    a("s_cbranch_scc1 L_k2_fin")
    a(f"s_lshl_b32 s87, s85, 5")
    a(f"s_add_u32 s87, s87, s82")
    a(f"v_mov_b32 {v(vTmp)}, s87")
    a(f"ds_read2_b32 {v(vU,2)}, {v(vTmp)} offset0:{0} offset1:{8}" .replace("offset0:0 ", "") if False else f"v_add_u32 {v(vTmp)}, {SLOT_LDS}, {v(vTmp)}")
    a(f"ds_read2_b32 {v(vU,2)}, {v(vTmp)} offset0:0 offset1:8")
    a(f"ds_read2_b32 {v(vU+2,2)}, {v(vTmp)} offset0:16 offset1:24")
    a("s_waitcnt lgkmcnt(0)")
    for k in range(4):
        if k > 0:
            a(f"s_cmp_le_u32 s86, {k}")
            a("s_cbranch_scc1 L_k2_issued")
        issue_rows(k, vU+k)
    a.label("L_k2_issued")
    a("s_waitcnt vmcnt(0)")
    for k in range(4):
        if k > 0:
            a(f"s_cmp_le_u32 s86, {k}")
            a("s_cbranch_scc1 L_k2_bdone")
        a(f"ds_read_b128 {v(vRec,4)}, {v(vTmp)} offset:{k*32}")
        a(f"ds_read_b64 {v(vRec+4,2)}, {v(vTmp)} offset:{k*32+16}")
        a("s_waitcnt lgkmcnt(0)")
        compute(k)
    a.label("L_k2_bdone")
    a("s_min_u32 s86, s86, 4")
    a("s_add_u32 s85, s85, s86")
    a("s_branch L_k2_batch")
    a.label("L_k2_fin")
    a("s_add_u32 s88, s67, s80")
    a("s_lshl_b32 s88, s88, 11")
    store_node("s88")
    a("s_branch L_k2_next")

    a.label("L_k2_slow")
    a("s_mov_b32 s80, s64")
    a.label("L_k2_snext")
    a(f"s_cmp_ge_u32 s80, {NPW}")
    a("s_cbranch_scc1 L_k2_exit")
    a("s_lshl_b32 s83, s80, 11")
    init_acc("s83")
    a("s_add_u32 s89, s66, s80")
    a("s_mov_b32 s85, 0")
    a(f"s_mul_i32 s90, s65, {COLD_BIN}")
    a(f"s_add_u32 s90, s90, {HOT_SIZE}")
    a("s_lshl_b32 s91, s65, 10")
    a.label("L_k2_sscan")
    a("s_cmp_ge_u32 s85, s72")
    a("s_cbranch_scc1 L_k2_sfin")
    a(f"v_add_u32 {v(vU)}, s85, v2")
    a(f"v_add_u32 {v(vU+1)}, s91, {v(vU)}")
    a(f"v_mul_u32_u24 {v(vU+1)}, {RECB}, {v(vU+1)}")
    a(f"v_mul_u32_u24 {v(vU+2)}, {RECB}, {v(vU)}")
    a(f"v_add_u32 {v(vU+2)}, s90, {v(vU+2)}")
    a(f"v_cmp_gt_u32 vcc, {HOTCAP}, {v(vU)}")
    a("s_nop 1")
    a(f"v_cndmask_b32 {v(vU+4)}, {v(vU+2)}, {v(vU+1)}, vcc")
    a(f"buffer_load_dword {v(vU+5)}, {v(vU+4)}, {s(REC,4)}, 0 offen")
    a("s_waitcnt vmcnt(0)")
    a(f"v_lshrrev_b32 {v(vU+5)}, 14, {v(vU+5)}")
    a(f"v_cmp_eq_u32 vcc, s89, {v(vU+5)}")
    a(f"v_cmp_gt_u32 s[92:93], s72, {v(vU)}")
    a("s_and_b64 s[92:93], s[92:93], vcc")
    a.label("L_k2_smatch")
    a("s_cmp_eq_u64 s[92:93], 0")
    a("s_cbranch_scc1 L_k2_sadv")
    a("s_ff1_i32_b64 s94, s[92:93]")
    a("s_bitset0_b64 s[92:93], s94")
    a(f"v_readlane_b32 s95, {v(vU+4)}, s94")
    a("s_nop 3")
    a(f"v_mov_b32 {v(vTmp)}, s95")
    a(f"buffer_load_dwordx4 {v(vRec,4)}, {v(vTmp)}, {s(REC,4)}, 0 offen")
    a(f"buffer_load_dword {v(vRec+5)}, {v(vTmp)}, {s(REC,4)}, 0 offen offset:16")
    a("s_waitcnt vmcnt(0)")
    a(f"v_and_b32 {v(vRec)}, 0x3fff, {v(vRec)}")
    a(f"v_and_b32 {v(vRec+4)}, 0xffff0000, {v(vRec+3)}")
    a(f"v_lshlrev_b32 {v(vRec+3)}, 16, {v(vRec+3)}")
    a(f"v_lshlrev_b32 {v(vRec+5)}, 16, {v(vRec+5)}")
    issue_rows(0, vRec)
    a("s_waitcnt vmcnt(0)")
    compute(0)
    a("s_branch L_k2_smatch")
    a.label("L_k2_sadv")
    a("s_add_u32 s85, s85, 64")
    a("s_branch L_k2_sscan")
    a.label("L_k2_sfin")
    a("s_add_u32 s88, s67, s80")
    a("s_lshl_b32 s88, s88, 11")
    store_node("s88")
    a("s_add_u32 s80, s80, 16")
    a("s_branch L_k2_snext")
    a.label("L_k2_exit")
    if opt.get('stamps'):
        a(f"s_cmp_ge_u32 s2, {K2_NWG}")
        a("s_cbranch_scc1 L_k2_exit2")
        a("s_waitcnt vmcnt(0)")
        a("s_memrealtime s[96:97]")
        a("s_waitcnt lgkmcnt(0)")
        a("s_mov_b64 exec, 1")
        a("v_mov_b32 v14, s96")
        a("v_mov_b32 v15, 264")
        a("ds_max_u32 v15, v14")
        a("v_mov_b32 v16, 1")
        a("v_mov_b32 v17, 268")
        a("ds_add_rtn_u32 v16, v17, v16")
        a("s_waitcnt lgkmcnt(0)")
        a("v_cmp_eq_u32 vcc, 15, v16")
        a("s_cbranch_vccz L_k2_exit2")
        a("ds_read_b32 v14, v15")
        a("s_waitcnt lgkmcnt(0)")
        a("v_mov_b32 v15, 16")
        a(f"global_atomic_umax v15, v14, s[{P_DBG}:{P_DBG+1}]")
        a.label("L_k2_exit2")
    a("s_endpgm")
```

```python
from asmlib import *

import os
N = 10000; E = 160000
NCH = 40
CHUNK = 4000
NGEMM = 209
DESIGN = os.environ.get("DESIGN", "X")
WSBASE = int(os.environ.get("WSBASE", "0"))
HOTCAP = 1024
RECB = 20
PHI_OFF = WSBASE
PHI_SIZE = N * 768 * 2
if DESIGN == "X":
    NBIN = 63; BINW = 160; BMAGIC = 52429; BSHIFT = 23
    CNT_OFF = WSBASE + 15360000
    STAMP_REL = 15400000
    REC_OFF = 16777216 if WSBASE == 0 else 0
else:
    NBIN = 32; BINW = 313; BMAGIC = 13401; BSHIFT = 22
    CNT_OFF = WSBASE + 31000064
    STAMP_REL = 31100032
    REC_OFF = 33554432 if WSBASE == 0 else 0
CNT_SIZE = NCH * 256
HOT_SIZE = NBIN * HOTCAP * RECB
COLD_BIN = E * RECB
REC_SIZE = HOT_SIZE + NBIN * COLD_BIN
K1_LDS = 147456
NSLOT = 6
S_LDS = 0; H_LDS = 24576; RING_LDS = 49152

P_SV, P_POS, P_SRC, P_DST, P_FRQ, P_W1, P_W2, P_WR = 16, 18, 20, 22, 24, 26, 28, 30
P_OUT, P_DBG, P_WS = 32, 34, 36

def load_kernargs(a):
    a("s_load_dwordx16 s[16:31], s[0:1], 0")
    a("s_load_dwordx4 s[32:35], s[0:1], 64")
    a("s_load_dwordx2 s[36:37], s[0:1], 80")

STAMP_OFF = WSBASE + STAMP_REL
def stamp_begin(a, opt):
    if opt.get('stamps'):
        a("s_memrealtime s[98:99]")
        if opt.get('clock'):
            a("s_memtime s[12:13]")
def st(a, opt, k):
    if opt.get('clock') and k >= 4: return
    if opt.get('stamps'):
        a(f"{'s_memtime' if opt.get('cyc') else 's_memrealtime'} s[{4+2*k}:{5+2*k}]")
def stamp_end(a, opt, kern, lbl):
    if not opt.get('stamps'): return
    a("s_waitcnt vmcnt(0) lgkmcnt(0)")
    a("s_memrealtime s[96:97]")
    if opt.get('clock'):
        a("s_memtime s[14:15]")
    a(f"s_add_u32 s94, s{P_WS}, {STAMP_OFF + kern*256*16*32}")
    a(f"s_addc_u32 s95, s{P_WS+1}, 0")
    a("s_mov_b64 exec, 1")
    a("v_lshrrev_b32 v1, 6, v0")
    a("s_lshl_b32 s93, s2, 9")
    a("v_lshlrev_b32 v1, 5, v1")
    a("v_add_u32 v1, s93, v1")
    a("s_waitcnt lgkmcnt(0)")
    a("v_mov_b32 v4, s98")
    for k in range(3):
        a(f"v_mov_b32 v{5+k}, s{4+2*k}")
    a("global_store_dwordx4 v1, v[4:7], s[94:95]")
    for k in range(3):
        a(f"v_mov_b32 v{8+k}, s{10+2*k}")
    a("v_mov_b32 v11, s96")
    a("global_store_dwordx4 v1, v[8:11], s[94:95] offset:16")

def gemm_role(a, opt):
    SV, W1, W2, PHI = 40, 44, 48, 52
    sW, sN0, sT, sOff = 56, 57, 58, 59
    stf = opt.get('phi_store_flags', '')
    a.c("===== GEMM role =====")
    a("s_sub_u32 s60, s2, %d" % NCH)
    a("s_mul_i32 s57, s60, 48")
    a("v_lshrrev_b32 v1, 6, v0")
    a("v_and_b32 v2, 63, v0")
    a("s_waitcnt lgkmcnt(0)")
    a("v_readfirstlane_b32 s56, v1")
    srd(a, SV, P_SV, N * 2048)
    srd(a, W1, P_W1, 256 * 512)
    srd(a, W2, P_W2, 256 * 1536)
    srd(a, PHI, P_WS, PHI_SIZE, PHI_OFF)
    a("v_lshrrev_b32 v3, 5, v2")
    a("v_and_b32 v4, 31, v2")
    a("s_mul_i32 s58, s56, 3")
    for i in range(3):
        a(f"s_add_u32 s59, s58, {i}")
        a("s_lshl_b32 s61, s59, 1")
        a("v_add_u32 v5, s61, v3")
        a("v_and_b32 v6, 15, v5")
        a("v_xor_b32 v6, v6, v4")
        a("v_add_u32 v5, s57, v5")
        a("v_lshlrev_b32 v5, 11, v5")
        a("v_lshl_add_u32 v5, v6, 4, v5")
        a("s_lshl_b32 s61, s59, 10")
        a("s_mov_b32 m0, s61")
        a("s_nop 0")
        a(f"buffer_load_dwordx4 v5, {s(SV,4)}, 0 offen lds")
    a("s_cmp_ge_u32 s56, 4")
    a("s_cbranch_scc0 L_gemm_main")
    a.c("helper waves: warm L2 with a 16KB piece of W1|W2")
    a("s_lshr_b32 s58, s2, 3")
    a("s_and_b32 s58, s58, 31")
    a("s_sub_u32 s59, s56, 4")
    a("s_lshl_b32 s59, s59, 12")
    a("s_lshl_b32 s61, s58, 14")
    a("s_add_u32 s61, s61, s59")
    a("v_lshlrev_b32 v5, 4, v2")
    a("s_cmp_lt_u32 s61, 131072")
    a("s_cbranch_scc0 L_warm_w2")
    for i in range(4):
        a(f"buffer_load_dwordx4 v[{8+4*i}:{11+4*i}], v5, {s(W1,4)}, s61 offen offset:{1024*i}")
    a("s_branch L_warm_done")
    a.label("L_warm_w2")
    a("s_sub_u32 s61, s61, 131072")
    for i in range(4):
        a(f"buffer_load_dwordx4 v[{8+4*i}:{11+4*i}], v5, {s(W2,4)}, s61 offen offset:{1024*i}")
    a.label("L_warm_done")
    a("s_waitcnt vmcnt(4)")
    a("s_barrier")
    stamp_end(a, opt, 0, 'h')
    a("s_endpgm")
    a.label("L_gemm_main")
    R = Regs(8, 256)
    vW1 = R.alloc(4); vW2 = R.alloc(4)
    vTR = R.alloc(4)
    vB = R.alloc(4)
    vHW = R.alloc(1)
    vST = R.alloc(3)
    vT = R.alloc(12, 4)
    vA = [R.alloc(16, 4), R.alloc(16, 4)]
    vBF = R.alloc(96, 4)
    vAcc = R.alloc(48, 4)
    vPk = R.alloc(16, 4)
    def acc(rt, t): return vAcc + (rt * 3 + t) * 4
    def bf(t, ks): return vBF + (t * 8 + ks) * 4
    a(f"v_lshrrev_b32 {v(vT)}, 3, v2")
    a(f"v_and_b32 {v(vT+1)}, 7, v2")
    a(f"v_bfe_u32 {v(vT+2)}, v2, 4, 1")
    a(f"v_lshlrev_b32 {v(vT+2)}, 1, {v(vT+2)}")
    a(f"s_lshl_b32 s58, s56, 7")
    a(f"s_mul_i32 s59, s56, 384")
    for q in range(4):
        a(f"v_xor_b32 {v(vT+3)}, {v(vT+1)}, {v(vT+2)}")
        if q & 1:
            a(f"v_xor_b32 {v(vT+3)}, 4, {v(vT+3)}")
        a(f"v_lshlrev_b32 {v(vT+3)}, 4, {v(vT+3)}")
        a(f"v_lshl_add_u32 {v(vW1+q)}, {v(vT)}, 9, {v(vT+3)}")
        a(f"v_add_u32 {v(vW1+q)}, s58, {v(vW1+q)}")
        a(f"v_add_u32 {v(vW1+q)}, {q*4096 - q*1024}, {v(vW1+q)}")
        a(f"v_mul_u32_u24 {v(vW2+q)}, 1536, {v(vT)}")
        a(f"v_add_u32 {v(vW2+q)}, {v(vW2+q)}, {v(vT+3)}")
        a(f"v_add_u32 {v(vW2+q)}, s59, {v(vW2+q)}")
        a(f"v_add_u32 {v(vW2+q)}, {q*12288 - q*1024}, {v(vW2+q)}")
    a(f"s_mul_i32 s62, s56, {NSLOT*4096}")
    a(f"s_add_u32 s62, s62, {RING_LDS}")
    chunks = []
    for b in range(4):
        for ks in range(8):
            chunks.append((b, ks))
    vm = []
    for i in range(3): vm.append(('S', i))
    def issue_chunk(n):
        b, ks = chunks[n]
        slot = n % NSLOT
        a(f"s_add_u32 s61, s62, {slot*4096}")
        a(f"s_mov_b32 m0, s61")
        if b == 0 or opt.get('exp_w2as1'):
            a(f"s_mov_b32 s63, {ks*16384}")
        else:
            a(f"s_mov_b32 s63, {ks*49152 + (b-1)*128}")
        for q in range(4):
            if opt.get('exp_nodma') and n >= 8:
                continue
            if b == 0 or opt.get('exp_w2as1'):
                yield f"buffer_load_dwordx4 {v(vW1+q)}, {s(W1,4)}, s63 offen offset:{q*1024} lds"
            else:
                yield f"buffer_load_dwordx4 {v(vW2+q)}, {s(W2,4)}, s63 offen offset:{q*1024} lds"
            vm.append(('C', n))
    def vm_wait_for(tag):
        if tag not in vm: return 63
        idx = max(i for i, t in enumerate(vm) if t == tag)
        return len(vm) - 1 - idx
    for n in range(NSLOT):
        for ins in issue_chunk(n): a(ins)
    a(f"v_lshrrev_b32 {v(vT)}, 4, v2")
    a(f"v_bfe_u32 {v(vT+1)}, v2, 2, 2")
    a(f"v_and_b32 {v(vT+2)}, 3, v2")
    a(f"v_lshl_add_u32 {v(vT+3)}, {v(vT)}, 3, {v(vT+1)}")
    a(f"v_lshlrev_b32 {v(vT+3)}, 7, {v(vT+3)}")
    a(f"v_lshl_add_u32 {v(vT+3)}, {v(vT+2)}, 3, {v(vT+3)}")
    a(f"v_bfe_u32 {v(vT+4)}, v2, 3, 1")
    a(f"v_bfe_u32 {v(vT+5)}, v2, 4, 1")
    a(f"v_lshl_or_b32 {v(vT+4)}, {v(vT+5)}, 1, {v(vT+4)}")
    a(f"v_lshl_add_u32 {v(vT+3)}, {v(vT+4)}, 5, {v(vT+3)}")
    a(f"v_add_u32 {v(vT+3)}, s62, {v(vT+3)}")
    for rt in range(4):
        a(f"v_xor_b32 {v(vTR+rt)}, {rt<<5}, {v(vT+3)}")
    a(f"v_and_b32 {v(vT+1)}, 15, v2")
    a(f"v_and_b32 {v(vT+2)}, 3, v2")
    a(f"v_xor_b32 {v(vT+2)}, {v(vT+2)}, {v(vT)}")
    a(f"v_lshlrev_b32 {v(vT+2)}, 4, {v(vT+2)}")
    a(f"v_lshl_add_u32 {v(vT+2)}, {v(vT+1)}, 9, {v(vT+2)}")
    a(f"v_bfe_u32 {v(vT+3)}, v2, 2, 2")
    a(f"v_lshl_add_u32 {v(vT+2)}, {v(vT+3)}, 6, {v(vT+2)}")
    for j in range(4):
        a(f"v_xor_b32 {v(vB+j)}, {j<<6}, {v(vT+2)}")
    a(f"v_lshrrev_b32 {v(vT+3)}, 1, {v(vT)}")
    a(f"s_lshl_b32 s58, s56, 3")
    a(f"v_add_u32 {v(vT+3)}, s58, {v(vT+3)}")
    a(f"v_xor_b32 {v(vT+3)}, {v(vT+3)}, {v(vT+1)}")
    a(f"v_lshlrev_b32 {v(vT+3)}, 4, {v(vT+3)}")
    a(f"v_lshl_add_u32 {v(vT+3)}, {v(vT+1)}, 9, {v(vT+3)}")
    a(f"v_and_b32 {v(vT+4)}, 1, {v(vT)}")
    a(f"v_lshl_add_u32 {v(vHW)}, {v(vT+4)}, 3, {v(vT+3)}")
    a(f"v_add_u32 {v(vHW)}, {H_LDS}, {v(vHW)}")
    a(f"v_and_b32 {v(vT+3)}, 1, {v(vT)}")
    a(f"v_lshlrev_b32 {v(vT+3)}, 5, {v(vT+3)}")
    a(f"v_lshrrev_b32 {v(vT+4)}, 1, {v(vT)}")
    a(f"v_lshl_add_u32 {v(vT+3)}, {v(vT+4)}, 4, {v(vT+3)}")
    a(f"v_add_u32 {v(vT+3)}, s59, {v(vT+3)}")
    a(f"v_add_u32 {v(vT+4)}, s57, {v(vT+1)}")
    a(f"v_mul_u32_u24 {v(vT+4)}, 1536, {v(vT+4)}")
    a(f"v_add_u32 {v(vST)}, {v(vT+3)}, {v(vT+4)}")
    a(f"v_add_u32 {v(vST+1)}, {16*1536}, {v(vST)}")
    a(f"v_add_u32 {v(vST+2)}, {32*1536}, {v(vST)}")
    a(f"s_waitcnt vmcnt({vm_wait_for(('S',2))})")
    st(a, opt, 0)
    a("s_barrier")
    def read_bfrags(base):
        for ks in range(8):
            for t in range(3):
                a(f"ds_read_b128 {v(bf(t,ks),4)}, {v(vB+(ks&3))} offset:{base + t*8192 + (ks>>2)*256}")
    def tr_reads(n):
        slot = n % NSLOT
        buf = vA[n & 1]
        out = []
        for rt in range(4):
            out.append(f"ds_read_b64_tr_b16 {v(buf+rt*4,2)}, {v(vTR+rt)} offset:{slot*4096}")
            out.append(f"ds_read_b64_tr_b16 {v(buf+rt*4+2,2)}, {v(vTR+rt)} offset:{slot*4096+512}")
        return out
    read_bfrags(S_LDS)
    a(f"s_waitcnt vmcnt({vm_wait_for(('C',0))})")
    for ins in tr_reads(0): a(ins)
    for n in range(32):
        b, ks = chunks[n]
        buf = vA[n & 1]
        a.c(f"--- chunk {n} (block {b}, ks {ks})")
        a("s_waitcnt lgkmcnt(0)")
        if n == 0: st(a, opt, 1)
        if n == 8: st(a, opt, 3)
        if n == 16: st(a, opt, 4)
        if n == 24: st(a, opt, 5)
        pre = []
        dma = []
        trs = []
        mode = opt.get('gemm_sched', '1')
        if mode == '0':
            side = []
            if n + NSLOT < 32:
                side += list(_collect(a, issue_chunk(n + NSLOT)))
            if n + 1 < 32:
                side.append(f"s_waitcnt vmcnt({vm_wait_for(('C', n+1))})")
                side += tr_reads(n + 1)
            slots = {i: [x] for i, x in enumerate(side[:12])}
            if len(side) > 12: slots[11] += side[12:]
        else:
            if n + 1 < 32:
                a(f"s_waitcnt vmcnt({vm_wait_for(('C', n+1))})")
                trs = tr_reads(n + 1)
            if n + NSLOT < 32:
                dma = list(_collect(a, issue_chunk(n + NSLOT)))
            slots = {i: [] for i in range(12)}
            if mode == '1':
                dpos = [1, 4, 7, 10]; tpos = [0, 2, 3, 5, 6, 8, 9, 11]
            elif mode == '2':
                dpos = [8, 9, 10, 11]; tpos = [0, 1, 2, 3, 4, 5, 6, 7]
            elif mode == '3':
                dpos = [2, 5, 8, 11]; tpos = [0, 0, 1, 1, 2, 3, 3, 4]
            elif mode == '4':
                dpos = [0, 3, 6, 9]; tpos = [0, 1, 1, 2, 2, 3, 4, 4]
            for i, x in enumerate(trs): slots[tpos[i]].append(x)
            for i, x in enumerate(dma): slots[dpos[i]].append(x)
        mf = []
        for rt in range(4):
            for t in range(3):
                cc = "0" if ks == 0 else v(acc(rt, t), 4)
                mf.append(f"v_mfma_f32_16x16x32_bf16 {v(acc(rt,t),4)}, {v(buf+rt*4,4)}, {v(bf(t,ks),4)}, {cc}")
        for i, m in enumerate(mf):
            a(m)
            for x in slots.get(i, []): a(x)
        if ks == 7:
            a("s_nop 7")
            a("s_nop 1")
            if b == 0:
                st(a, opt, 2)
                a.c("silu + write H")
                for rt in range(4):
                    for t in range(3):
                        A = acc(rt, t)
                        T = vPk + ((rt * 3 + t) & 1) * 8
                        for r in range(4):
                            a(f"v_mul_f32 {v(T+r)}, 0xbfb8aa3b, {v(A+r)}")
                        for r in range(4):
                            a(f"v_exp_f32 {v(T+r)}, {v(T+r)}")
                        a("s_nop 0")
                        for r in range(4):
                            a(f"v_add_f32 {v(T+r)}, 1.0, {v(T+r)}")
                        for r in range(4):
                            a(f"v_rcp_f32 {v(T+r)}, {v(T+r)}")
                        a("s_nop 0")
                        for r in range(4):
                            a(f"v_mul_f32 {v(T+r)}, {v(T+r)}, {v(A+r)}")
                        a(f"v_cvt_pk_bf16_f32 {v(T+4)}, {v(T)}, {v(T+1)}")
                        a(f"v_cvt_pk_bf16_f32 {v(T+5)}, {v(T+2)}, {v(T+3)}")
                        a(f"v_xor_b32 {v(T+6)}, {rt<<5}, {v(vHW)}")
                        a(f"ds_write_b64 {v(T+6)}, {v(T+4,2)} offset:{t*8192}")
                a("s_waitcnt lgkmcnt(0)")
                a("s_barrier")
                read_bfrags(H_LDS)
            else:
                a.c("epilogue: pack + store phi")
                k = 0
                for p in range(2):
                    for t in range(3):
                        X = acc(2*p, t); Y = acc(2*p+1, t)
                        T = vPk + (k & 3) * 4; k += 1
                        a(f"v_cvt_pk_bf16_f32 {v(T)}, {v(X)}, {v(X+1)}")
                        a(f"v_cvt_pk_bf16_f32 {v(T+1)}, {v(X+2)}, {v(X+3)}")
                        a(f"v_cvt_pk_bf16_f32 {v(T+2)}, {v(Y)}, {v(Y+1)}")
                        a(f"v_cvt_pk_bf16_f32 {v(T+3)}, {v(Y+2)}, {v(Y+3)}")
                        a("s_nop 1")
                        a(f"v_permlane16_swap_b32 {v(T)}, {v(T+2)}")
                        a(f"v_permlane16_swap_b32 {v(T+1)}, {v(T+3)}")
                        if not opt.get('exp_nostore'):
                            a(f"buffer_store_dwordx4 {v(T,4)}, {v(vST+t)}, {s(PHI,4)}, 0 offen offset:{(b-1)*128 + p*64} {stf}")
                            vm.append(('ST', n, p, t))
    stamp_end(a, opt, 0, 'g')
    a("s_endpgm")

def _collect(a, gen):
    for ins in gen:
        yield ins
```

```python
from asmlib import *
from k1 import *

BINC_LDS = 0
BASE_LDS = 256
LCNT_LDS = 512
LIST_LDS = 1024
POS_LDS = 33792

def rnd2(a, x, y, t):
    a(f"v_cvt_pk_bf16_f32 {v(t)}, {v(x)}, {v(y)}")
    a(f"v_lshlrev_b32 {v(x)}, 16, {v(t)}")
    a(f"v_and_b32 {v(y)}, 0xffff0000, {v(t)}")
def rnd1(a, x, t):
    a(f"v_cvt_pk_bf16_f32 {v(t)}, {v(x)}, {v(x)}")
    a(f"v_lshlrev_b32 {v(x)}, 16, {v(t)}")

def pos_addr(a, dst_addr, dst_sh, node):
    a(f"v_mul_u32_u24 {v(dst_addr)}, 6, {v(node)}")
    a(f"v_and_b32 {v(dst_addr)}, -4, {v(dst_addr)}")
    a(f"v_add_u32 {v(dst_addr)}, {POS_LDS}, {v(dst_addr)}")
    a(f"v_and_b32 {v(dst_sh)}, 1, {v(node)}")
    a(f"v_lshlrev_b32 {v(dst_sh)}, 4, {v(dst_sh)}")

def pos_unpack(a, d0, d1, sh, x, y, z):
    a(f"v_alignbit_b32 {v(d0)}, {v(d1)}, {v(d0)}, {v(sh)}")
    a(f"v_lshrrev_b32 {v(d1)}, {v(sh)}, {v(d1)}")
    a(f"v_lshlrev_b32 {v(x)}, 16, {v(d0)}")
    a(f"v_and_b32 {v(y)}, 0xffff0000, {v(d0)}")
    a(f"v_lshlrev_b32 {v(z)}, 16, {v(d1)}")

def dist(a, p, q, r, d, t):
    for i in range(3):
        a(f"v_sub_f32 {v(r+i)}, {v(p+i)}, {v(q+i)}")
    rnd2(a, r, r+1, t); rnd1(a, r+2, t)
    for i in range(3):
        a(f"v_mul_f32 {v(t+1+i)}, {v(r+i)}, {v(r+i)}")
    rnd2(a, t+1, t+2, t); rnd1(a, t+3, t)
    a(f"v_add_f32 {v(d)}, {v(t+1)}, {v(t+2)}")
    a(f"v_add_f32 {v(d)}, {v(d)}, {v(t+3)}")
    rnd1(a, d, t)
    a(f"v_add_f32 {v(d)}, 0x322bcc77, {v(d)}")
    rnd1(a, d, t)
    a(f"v_sqrt_f32 {v(d)}, {v(d)}")
    a("s_nop 0")
    rnd1(a, d, t)

def edge_role(a, opt):
    SPOS, SSRC, SDST, SDBG, SCNT, SREC = 40, 44, 48, 52, 56, 60
    sW = 64; sF = 66
    a.c("===== EDGE role =====")
    a("v_lshrrev_b32 v1, 6, v0")
    a("v_and_b32 v2, 63, v0")
    a("s_waitcnt lgkmcnt(0)")
    a("v_readfirstlane_b32 s64, v1")
    a(f"s_load_dwordx2 s[66:67], s[{P_FRQ}:{P_FRQ+1}], 0")
    srd(a, SPOS, P_POS, N * 6)
    srd(a, SSRC, P_SRC, E * 4)
    srd(a, SDST, P_DST, E * 4)
    srd(a, SDBG, P_DBG, 256)
    srd(a, SCNT, P_WS, CNT_SIZE, CNT_OFF)
    srd(a, SREC, P_WS, REC_SIZE, REC_OFF)
    a(f"s_mul_i32 s65, s2, {CHUNK*4}")
    a("v_lshlrev_b32 v3, 5, v0")
    a("v_add_u32 v3, s65, v3")
    vS, vD = 8, 16
    a("v_cmp_gt_u32 vcc, 500, v0")
    a("s_and_saveexec_b64 s[72:73], vcc")
    a("s_cbranch_execz L_e_noload")
    a(f"buffer_load_dwordx4 v[8:11], v3, {s(SSRC,4)}, 0 offen")
    a(f"buffer_load_dwordx4 v[12:15], v3, {s(SSRC,4)}, 0 offen offset:16")
    a(f"buffer_load_dwordx4 v[16:19], v3, {s(SDST,4)}, 0 offen")
    a(f"buffer_load_dwordx4 v[20:23], v3, {s(SDST,4)}, 0 offen offset:16")
    a.label("L_e_noload")
    a("s_mov_b64 exec, s[72:73]")
    a("v_lshlrev_b32 v4, 4, v2")
    a("s_cmp_ge_u32 s64, 8")
    a("s_cbranch_scc1 L_e_nopos")
    for i in range(8):
        a(f"s_lshl_b32 s65, s64, 13")
        a(f"s_add_u32 s65, s65, {i*1024}")
        a(f"s_add_u32 s78, s65, {POS_LDS}")
        a("s_mov_b32 m0, s78")
        a("s_nop 0")
        a(f"buffer_load_dwordx4 v4, {s(SPOS,4)}, s65 offen lds")
    a.label("L_e_nopos")
    a("s_cmp_eq_u32 s64, 0")
    a("s_cbranch_scc0 L_e_nozero")
    a("v_mov_b32 v5, 0")
    a("v_lshlrev_b32 v6, 2, v2")
    a(f"ds_write_b32 v6, v5 offset:{BINC_LDS}")
    a(f"v_mov_b32 v6, {LCNT_LDS}")
    a("ds_write_b32 v6, v5")
    a.label("L_e_nozero")
    a("s_waitcnt vmcnt(0) lgkmcnt(0)")
    a("s_lshl_b32 s68, s66, 16")
    a("s_and_b32 s69, s66, 0xffff0000")
    a("s_lshl_b32 s70, s67, 16")
    a("s_and_b32 s71, s67, 0xffff0000")
    st(a, opt, 0)
    a("s_waitcnt lgkmcnt(0)")
    a("s_barrier")
    a("v_cmp_gt_u32 vcc, 500, v0")
    a("s_and_saveexec_b64 s[72:73], vcc")
    a("s_cbranch_execz L_e_pass1_done")
    vPA = 24
    vSH = 40
    vRAW = 56
    for e in range(8):
        pos_addr(a, vPA+2*e, vSH+2*e, vS+e)
        pos_addr(a, vPA+2*e+1, vSH+2*e+1, vD+e)
    for e in range(8):
        a(f"ds_read2_b32 {v(vRAW+4*e,2)}, {v(vPA+2*e)} offset0:0 offset1:1")
        a(f"ds_read2_b32 {v(vRAW+4*e+2,2)}, {v(vPA+2*e+1)} offset0:0 offset1:1")
    P, Q, Rr, Dd, T = 88, 91, 94, 97, 98
    vOne = 103; vBin = 104; vRank = 105; vLp = 106; vKey = 108
    a(f"v_mov_b32 {v(vOne)}, 1")
    for e in range(8):
        a(f"s_waitcnt lgkmcnt({min(15, 2*(7-e))})")
        pos_unpack(a, vRAW+4*e, vRAW+4*e+1, vSH+2*e, P, P+1, P+2)
        pos_unpack(a, vRAW+4*e+2, vRAW+4*e+3, vSH+2*e+1, Q, Q+1, Q+2)
        dist(a, P, Q, Rr, Dd, T)
        a(f"v_cmp_gt_f32 vcc, 0x40a00000, {v(Dd)}")
        a("s_and_saveexec_b64 s[74:75], vcc")
        a(f"s_cbranch_execz L_e_na{e}")
        a(f"v_mul_u32_u24 {v(vBin)}, {BMAGIC}, {v(vD+e)}")
        a(f"v_lshrrev_b32 {v(vBin)}, {BSHIFT}, {v(vBin)}")
        a(f"v_lshlrev_b32 {v(vLp)}, 2, {v(vBin)}")
        a(f"ds_add_rtn_u32 {v(vRank)}, {v(vLp)}, {v(vOne)} offset:{BINC_LDS}")
        a(f"v_mov_b32 {v(vLp)}, {LCNT_LDS}")
        a(f"ds_add_rtn_u32 {v(vLp)}, {v(vLp)}, {v(vOne)}")
        a(f"v_lshl_or_b32 {v(vKey)}, {v(vD+e)}, 14, {v(vS+e)}")
        a("s_waitcnt lgkmcnt(0)")
        a(f"v_mov_b32 {v(vKey+1)}, {v(vRank)}")
        a(f"v_lshlrev_b32 {v(vLp)}, 3, {v(vLp)}")
        a(f"ds_write_b64 {v(vLp)}, {v(vKey,2)} offset:{LIST_LDS}")
        a.label(f"L_e_na{e}")
        a("s_mov_b64 exec, s[74:75]")
    a.label("L_e_pass1_done")
    a("s_mov_b64 exec, s[72:73]")
    st(a, opt, 1)
    a("s_waitcnt lgkmcnt(0)")
    a("s_barrier")
    vCnt = 24; vOld = 25; vOff = 26
    a("s_cmp_eq_u32 s64, 0")
    a("s_cbranch_scc0 L_e_noatom")
    a(f"v_lshlrev_b32 {v(vOff)}, 2, v2")
    a(f"ds_read_b32 {v(vCnt)}, {v(vOff)} offset:{BINC_LDS}")
    a("s_waitcnt lgkmcnt(0)")
    a(f"v_mov_b32 {v(vOld)}, {v(vCnt)}")
    a(f"buffer_atomic_add {v(vOld)}, {v(vOff)}, {s(SDBG,4)}, 0 offen sc0")
    a(f"s_lshl_b32 s65, s2, 8")
    a(f"buffer_store_dword {v(vCnt)}, {v(vOff)}, {s(SCNT,4)}, s65 offen")
    a.label("L_e_noatom")
    a(f"v_mov_b32 v28, {LCNT_LDS}")
    a("ds_read_b32 v28, v28")
    a("s_waitcnt lgkmcnt(0)")
    a("v_readfirstlane_b32 s76, v28")
    a("v_mov_b32 v29, v0")
    a("s_mov_b32 s79, 0")
    a("s_mov_b32 s77, 0")
    a.label("L_e_loop")
    a("v_cmp_gt_u32 vcc, s76, v29")
    a("s_and_saveexec_b64 s[72:73], vcc")
    a("s_cbranch_execz L_e_geo_done")
    vE = 30
    a("v_lshlrev_b32 v32, 3, v29")
    a(f"ds_read_b64 v[30:31], v32 offset:{LIST_LDS}")
    a("s_waitcnt lgkmcnt(0)")
    vSrc, vDst = 33, 34
    a(f"v_and_b32 {v(vSrc)}, 0x3fff, v30")
    a(f"v_lshrrev_b32 {v(vDst)}, 14, v30")
    pos_addr(a, 36, 38, vSrc)
    pos_addr(a, 37, 39, vDst)
    a("ds_read2_b32 v[40:41], v36 offset0:0 offset1:1")
    a("ds_read2_b32 v[42:43], v37 offset0:0 offset1:1")
    a(f"v_mul_u32_u24 {v(vBin)}, {BMAGIC}, {v(vDst)}")
    a(f"v_lshrrev_b32 {v(vBin)}, {BSHIFT}, {v(vBin)}")
    a("s_waitcnt lgkmcnt(0)")
    pos_unpack(a, 40, 41, 38, P, P+1, P+2)
    pos_unpack(a, 42, 43, 39, Q, Q+1, Q+2)
    dist(a, P, Q, Rr, Dd, T)
    vInv = 44; vG = 46; vFc = 45
    a(f"v_rcp_f32 {v(vInv)}, {v(Dd)}")
    for k in range(4):
        a(f"v_mul_f32 {v(vG+k)}, s{68+k}, {v(Dd)}")
    rnd2(a, vG, vG+1, T); rnd2(a, vG+2, vG+3, T)
    for k in range(4):
        a(f"v_mul_f32 {v(vG+k)}, 0.15915494, {v(vG+k)}")
    for k in range(4):
        a(f"v_sin_f32 {v(vG+k)}, {v(vG+k)}")
    a(f"v_mul_f32 {v(vFc)}, 0x40490fdb, {v(Dd)}")
    rnd2(a, vG, vG+1, T); rnd2(a, vG+2, vG+3, T)
    rnd1(a, vFc, T)
    a(f"v_mul_f32 {v(vFc)}, 0x3e4ccccd, {v(vFc)}")
    rnd1(a, vFc, T)
    a(f"v_mul_f32 {v(vFc)}, 0.15915494, {v(vFc)}")
    a(f"v_cos_f32 {v(vFc)}, {v(vFc)}")
    for k in range(4):
        a(f"v_mul_f32 {v(vG+k)}, {v(vG+k)}, {v(vInv)}")
    rnd1(a, vFc, T)
    rnd2(a, vG, vG+1, T); rnd2(a, vG+2, vG+3, T)
    a(f"v_add_f32 {v(vFc)}, 1.0, {v(vFc)}")
    rnd1(a, vFc, T)
    a(f"v_mul_f32 {v(vFc)}, 0.5, {v(vFc)}")
    for i in range(3):
        a(f"v_mul_f32 {v(Rr+i)}, {v(Rr+i)}, {v(vInv)}")
    for k in range(4):
        a(f"v_mul_f32 {v(vG+k)}, {v(vG+k)}, {v(vFc)}")
    a(f"v_cvt_pk_bf16_f32 v53, {v(vG)}, {v(vG+1)}")
    a(f"v_cvt_pk_bf16_f32 v54, {v(vG+2)}, {v(vG+3)}")
    a(f"v_cvt_pk_bf16_f32 v55, {v(Rr)}, {v(Rr+1)}")
    a(f"v_cvt_pk_bf16_f32 v56, {v(Rr+2)}, {v(Rr+2)}")
    a(f"v_mul_u32_u24 v57, {BINW}, {v(vBin)}")
    a(f"v_sub_u32 v57, {v(vDst)}, v57")
    a(f"v_lshl_or_b32 v52, v57, 14, {v(vSrc)}")
    a.label("L_e_geo_done")
    a("s_mov_b64 exec, s[72:73]")
    a("s_cmp_eq_u32 s77, 0")
    a("s_cbranch_scc0 L_e_store")
    a("s_mov_b32 s77, 1")
    a("s_cmp_eq_u32 s64, 0")
    a("s_cbranch_scc0 L_e_nobase")
    a("s_waitcnt vmcnt(0)")
    a(f"ds_write_b32 {v(vOff)}, {v(vOld)} offset:{BASE_LDS}")
    a.label("L_e_nobase")
    st(a, opt, 2)
    a("s_waitcnt lgkmcnt(0)")
    a("s_barrier")
    st(a, opt, 3)
    a("s_waitcnt lgkmcnt(0)")
    a.label("L_e_store")
    a("v_cmp_gt_u32 vcc, s76, v29")
    a("s_and_saveexec_b64 s[72:73], vcc")
    a("s_cbranch_execz L_e_st_done")
    a(f"v_lshlrev_b32 v58, 2, {v(vBin)}")
    a(f"ds_read_b32 v58, v58 offset:{BASE_LDS}")
    a("s_waitcnt lgkmcnt(0)")
    a("v_add_u32 v58, v58, v31")
    a(f"v_lshl_add_u32 v59, {v(vBin)}, 10, v58")
    a(f"v_mul_u32_u24 v59, {RECB}, v59")
    a(f"s_mov_b32 s78, {COLD_BIN}")
    a(f"v_mul_lo_u32 v60, {v(vBin)}, s78")
    a(f"v_mul_u32_u24 v61, {RECB}, v58")
    a(f"v_add_u32 v60, v60, v61")
    a(f"v_add_u32 v60, {HOT_SIZE}, v60")
    a(f"v_cmp_gt_u32 vcc, {HOTCAP}, v58")
    a("s_nop 1")
    a("v_cndmask_b32 v59, v60, v59, vcc")
    a(f"buffer_store_dwordx4 v[52:55], v59, {s(SREC,4)}, 0 offen")
    a(f"buffer_store_dword v56, v59, {s(SREC,4)}, 0 offen offset:16")
    a.label("L_e_st_done")
    a("s_mov_b64 exec, s[72:73]")
    blk = opt.get('k1blk', 512)
    a(f"v_add_u32 v29, {blk}, v29")
    a(f"s_add_u32 s79, s79, {blk}")
    a("s_cmp_lt_u32 s79, s76")
    a("s_cbranch_scc1 L_e_loop")
    stamp_end(a, opt, 0, 'e')
    a("s_endpgm")
```

```python
from asmlib import *
import k1
from k1 import load_kernargs, stamp_begin, st, stamp_end, P_SV, P_POS, P_SRC, P_DST, P_FRQ, P_W1, P_W2, P_WR, P_OUT, P_DBG, P_WS, N, E

NCH = 40
NTILE = 105
NGEMM = 2 * NTILE
ROWB = 384
NROWS = NTILE * 96
SLICEB = NROWS * ROWB
TAB_OFF = k1.WSBASE
TAB_SIZE = 8 * SLICEB
SH_LDS = 0
RING_LDS = 49152
NS = 4
SLOTB = 16384
VX_LDS = RING_LDS + NS * SLOTB
K1_LDS = VX_LDS + 24576

def gemm_role(a, opt):
    SV, W1, W2, TAB = 40, 44, 48, 52
    tf = opt.get('tab_store_flags', '')
    l2f = opt.get('l2_store_flags', tf)
    a.c("===== GEMM role (W) =====")
    a(f"s_sub_u32 s60, s2, {NCH}")
    a("s_lshr_b32 s61, s60, 1")
    a("s_and_b32 s60, s60, 1")
    a("s_mul_i32 s57, s61, 96")
    a("v_lshrrev_b32 v1, 6, v0")
    a("v_and_b32 v2, 63, v0")
    a("s_waitcnt lgkmcnt(0)")
    a("v_readfirstlane_b32 s56, v1")
    srd(a, SV, P_SV, N * 2048)
    srd(a, W1, P_W1, 256 * 512)
    srd(a, W2, P_W2, 256 * 1536)
    srd(a, TAB, P_WS, TAB_SIZE, TAB_OFF)
    a("s_and_b32 s58, s56, 3")
    a("s_lshr_b32 s59, s56, 2")
    R = Regs(3, 256)
    vW1 = R.alloc(2); vWA = R.alloc(2); vWB = R.alloc(1)
    vT1 = R.alloc(4); vTA = R.alloc(2); vTB = R.alloc(2)
    vB = R.alloc(4); vHW = R.alloc(1); vVX = R.alloc(1); vST = R.alloc(1); vL2S = R.alloc(1); vL2D = R.alloc(1)
    vT = R.alloc(8, 4)
    vA = [R.alloc(16, 4), R.alloc(16, 4)]
    vBF = R.alloc(96, 4)
    vAcc = R.alloc(48, 4)
    vAcB = R.alloc(24, 4)
    vX = R.alloc(16, 4)
    def acc(rt, t): return vAcc + (rt * 3 + t) * 4
    def accB(u, t): return vAcB + (u * 3 + t) * 4
    def bf(t, ks): return vBF + (t * 8 + ks) * 4
    vm = []
    def vm_after(tag):
        idx = max(i for i, x in enumerate(vm) if x == tag)
        return len(vm) - 1 - idx
    T0, T1, T2, T3, T4, T5 = vT, vT+1, vT+2, vT+3, vT+4, vT+5

    a(f"v_lshrrev_b32 {v(T0)}, 5, v2")
    a(f"v_and_b32 {v(T1)}, 31, v2")
    a("s_mul_i32 s62, s56, 6")
    for i in range(6):
        a(f"s_add_u32 s63, s62, {i}")
        a("s_lshl_b32 s64, s63, 1")
        a(f"v_add_u32 {v(T2)}, s64, {v(T0)}")
        a(f"v_and_b32 {v(T3)}, 15, {v(T2)}")
        a(f"v_xor_b32 {v(T3)}, {v(T3)}, {v(T1)}")
        a(f"v_add_u32 {v(T2)}, s57, {v(T2)}")
        a(f"v_lshlrev_b32 {v(T2)}, 11, {v(T2)}")
        a(f"v_lshl_add_u32 {v(T2)}, {v(T3)}, 4, {v(T2)}")
        a("s_lshl_b32 s64, s63, 10")
        a("s_mov_b32 m0, s64")
        a("s_nop 0")
        a(f"buffer_load_dwordx4 {v(T2)}, {s(SV,4)}, 0 offen lds")
        vm.append(('S', i))
    def fbits(dst, row):
        a(f"v_and_b32 {v(dst)}, 3, {v(row)}")
        a(f"v_bfe_u32 {v(T5)}, {v(row)}, 3, 1")
        a(f"v_lshl_or_b32 {v(dst)}, {v(T5)}, 2, {v(dst)}")
    a("s_lshl_b32 s62, s56, 2")
    a("s_lshl_b32 s63, s60, 8")
    for i in range(2):
        a(f"v_add_u32 {v(T2)}, s62, {v(T0)}")
        if i: a(f"v_add_u32 {v(T2)}, 2, {v(T2)}")
        fbits(T3, T2)
        a(f"v_lshlrev_b32 {v(T3)}, 1, {v(T3)}")
        a(f"v_xor_b32 {v(T3)}, {v(T3)}, {v(T1)}")
        a(f"v_lshlrev_b32 {v(T4)}, 4, {v(T3)}")
        a(f"v_lshl_add_u32 {v(vW1+i)}, {v(T2)}, 9, {v(T4)}")
        if i: a(f"v_subrev_u32 {v(vW1+i)}, 1024, {v(vW1+i)}")
        a(f"v_mul_u32_u24 {v(vWA+i)}, 1536, {v(T2)}")
        a(f"v_lshrrev_b32 {v(T4)}, 4, {v(T3)}")
        a(f"v_lshl_add_u32 {v(vWA+i)}, {v(T4)}, 9, {v(vWA+i)}")
        a(f"v_and_b32 {v(T4)}, 15, {v(T3)}")
        a(f"v_lshl_add_u32 {v(vWA+i)}, {v(T4)}, 4, {v(vWA+i)}")
        a(f"v_add_u32 {v(vWA+i)}, s63, {v(vWA+i)}")
        if i: a(f"v_subrev_u32 {v(vWA+i)}, 1024, {v(vWA+i)}")
    a(f"v_lshrrev_b32 {v(T2)}, 4, v2")
    a(f"v_add_u32 {v(T2)}, s62, {v(T2)}")
    fbits(T3, T2)
    a(f"v_lshlrev_b32 {v(T3)}, 1, {v(T3)}")
    a(f"v_and_b32 {v(T4)}, 15, v2")
    a(f"v_xor_b32 {v(T3)}, {v(T3)}, {v(T4)}")
    a(f"v_mul_u32_u24 {v(vWB)}, 1536, {v(T2)}")
    a(f"v_lshl_add_u32 {v(vWB)}, {v(T3)}, 4, {v(vWB)}")
    a(f"v_add_u32 {v(vWB)}, s63, {v(vWB)}")
    a(f"v_add_u32 {v(vWB)}, 1024, {v(vWB)}")
    a("s_lshl_b32 s65, s56, 11")
    a("s_lshl_b32 s66, s56, 10")
    NST = 24
    def chunk_kind(n): return n // 8
    def issue_chunk(n):
        kind = chunk_kind(n); ks = n & 7
        slot = RING_LDS + (n % NS) * SLOTB
        out = []
        if kind < 2:
            out.append(f"s_add_u32 s67, s65, {slot}")
            out.append("s_mov_b32 m0, s67")
            soff = ks * 16384 if kind == 0 else ks * 49152
            out.append(f"s_mov_b32 s68, {soff}")
            for i in range(2):
                if kind == 0:
                    out.append((f"buffer_load_dwordx4 {v(vW1+i)}, {s(W1,4)}, s68 offen offset:{i*1024} lds", ('C', n)))
                else:
                    out.append((f"buffer_load_dwordx4 {v(vWA+i)}, {s(W2,4)}, s68 offen offset:{i*1024} lds", ('C', n)))
        else:
            out.append(f"s_add_u32 s67, s66, {slot}")
            out.append("s_mov_b32 m0, s67")
            out.append(f"s_mov_b32 s68, {ks * 49152}")
            out.append((f"buffer_load_dwordx4 {v(vWB)}, {s(W2,4)}, s68 offen lds", ('C', n)))
        return out
    def emit(x):
        if isinstance(x, tuple):
            a(x[0]); vm.append(x[1])
        elif callable(x):
            x()
        else:
            a(x)
    for n in range(NS):
        for x in issue_chunk(n): emit(x)
    a(f"v_lshrrev_b32 {v(T2)}, 3, v2")
    a("s_mul_i32 s69, s59, 48")
    a("s_add_u32 s69, s69, s57")
    a(f"v_add_u32 {v(T2)}, s69, {v(T2)}")
    a(f"v_and_b32 {v(T3)}, 7, v2")
    a(f"v_lshlrev_b32 {v(vL2S)}, 11, {v(T2)}")
    a(f"v_lshl_add_u32 {v(vL2S)}, {v(T3)}, 3, {v(vL2S)}")
    a("s_lshl_b32 s70, s58, 6")
    a("s_add_u32 s70, s70, s63")
    a(f"v_add_u32 {v(vL2S)}, s70, {v(vL2S)}")
    a("s_lshl_b32 s71, s60, 2")
    a("s_add_u32 s71, s71, s58")
    a(f"s_mul_i32 s71, s71, {SLICEB}")
    a(f"v_mul_u32_u24 {v(vL2D)}, {ROWB}, {v(T2)}")
    a(f"v_lshl_add_u32 {v(vL2D)}, {v(T3)}, 4, {v(vL2D)}")
    a(f"v_add_u32 {v(vL2D)}, s71, {v(vL2D)}")
    def l2_load(i):
        def f():
            a(f"s_mov_b32 s72, {i*8*2048}")
            a(f"buffer_load_dwordx2 {v(vAcB+4*i,2)}, {v(vL2S)}, {s(SV,4)}, s72 offen offset:1024 {opt.get('v_flags','')}"); vm.append(('L2a', i))
            a(f"buffer_load_dwordx2 {v(vAcB+4*i+2,2)}, {v(vL2S)}, {s(SV,4)}, s72 offen offset:1536 {opt.get('v_flags','')}"); vm.append(('L2b', i))
        return f
    l2mode = opt.get('l2mode', 'pre')
    for i in range(6 if l2mode == 'pre' else 0):
        a(f"s_mov_b32 s72, {i*8*2048}")
        a(f"buffer_load_dwordx2 {v(vAcB+4*i,2)}, {v(vL2S)}, {s(SV,4)}, s72 offen offset:1024 {opt.get('v_flags','')}"); vm.append(('L2a', i))
        a(f"buffer_load_dwordx2 {v(vAcB+4*i+2,2)}, {v(vL2S)}, {s(SV,4)}, s72 offen offset:1536 {opt.get('v_flags','')}"); vm.append(('L2b', i))
    def l2_store(i):
        return [lambda: a(f"s_waitcnt vmcnt({vm_after(('L2b', i))})"),
                f"s_mov_b32 s72, {i*8*ROWB}",
                (f"buffer_store_dwordx4 {v(vAcB+4*i,4)}, {v(vL2D)}, {s(TAB,4)}, s72 offen offset:256 {l2f}", ('L2s', i))]
    def vx_dma(i):
        def f():
            a(f"s_mul_i32 s72, s56, 12")
            a(f"s_add_u32 s72, s72, {4*i}")
            a(f"v_lshrrev_b32 {v(T0)}, 4, v2")
            a(f"v_add_u32 {v(T0)}, s72, {v(T0)}")
            a(f"v_and_b32 {v(T1)}, 15, {v(T0)}")
            a(f"v_and_b32 {v(T2)}, 15, v2")
            a(f"v_xor_b32 {v(T1)}, {v(T1)}, {v(T2)}")
            a(f"v_add_u32 {v(T0)}, s57, {v(T0)}")
            a(f"v_lshlrev_b32 {v(T0)}, 11, {v(T0)}")
            a(f"v_lshl_add_u32 {v(T0)}, {v(T1)}, 4, {v(T0)}")
            a(f"v_add_u32 {v(T0)}, s63, {v(T0)}")
            a(f"v_add_u32 {v(T0)}, 512, {v(T0)}")
            a("s_lshl_b32 s72, s72, 8")
            a(f"s_add_u32 s72, s72, {VX_LDS}")
            a("s_mov_b32 m0, s72")
            a("s_nop 0")
            a(f"buffer_load_dwordx4 {v(T0)}, {s(SV,4)}, 0 offen {opt.get('v_flags','')} lds"); vm.append(('VX', i))
        return f
    a(f"v_lshrrev_b32 {v(T0)}, 4, v2")
    a(f"v_bfe_u32 {v(T1)}, v2, 2, 2")
    a(f"v_and_b32 {v(T2)}, 3, v2")
    a(f"v_lshl_add_u32 {v(T3)}, {v(T0)}, 3, {v(T1)}")
    a(f"v_and_b32 {v(T4)}, 1, {v(T0)}")
    a(f"v_lshl_or_b32 {v(T4)}, {v(T4)}, 2, {v(T1)}")
    a("s_and_b32 s72, s58, 1")
    a("s_lshl_b32 s72, s72, 2")
    a(f"v_xor_b32 {v(T5)}, s72, {v(T4)}")
    a(f"v_lshlrev_b32 {v(T5)}, 5, {v(T5)}")
    a(f"v_lshl_add_u32 {v(T5)}, {v(T3)}, 9, {v(T5)}")
    a(f"v_lshl_add_u32 {v(T5)}, {v(T2)}, 3, {v(T5)}")
    a("s_lshr_b32 s72, s58, 1")
    a("s_lshl_b32 s72, s72, 8")
    a(f"s_add_u32 s72, s72, {RING_LDS}")
    a(f"v_add_u32 {v(T5)}, s72, {v(T5)}")
    for rt in range(4):
        a(f"v_xor_b32 {v(vT1+rt)}, {rt<<5}, {v(T5)}")
    a("s_lshl_b32 s72, s58, 1")
    a(f"v_xor_b32 {v(T5)}, s72, {v(T4)}")
    a(f"v_lshlrev_b32 {v(T5)}, 5, {v(T5)}")
    a(f"v_lshl_add_u32 {v(T5)}, {v(T2)}, 3, {v(T5)}")
    a(f"v_add_u32 {v(T5)}, {RING_LDS}, {v(T5)}")
    a(f"v_lshl_add_u32 {v(vTA)}, {v(T3)}, 9, {v(T5)}")
    a(f"v_xor_b32 {v(vTA+1)}, 32, {v(vTA)}")
    a(f"v_lshl_add_u32 {v(vTB)}, {v(T3)}, 8, {v(T5)}")
    a(f"v_xor_b32 {v(vTB+1)}, 32, {v(vTB)}")
    a(f"v_and_b32 {v(T1)}, 15, v2")
    a(f"v_and_b32 {v(T2)}, 3, v2")
    a(f"v_xor_b32 {v(T2)}, {v(T2)}, {v(T0)}")
    a(f"v_lshlrev_b32 {v(T2)}, 4, {v(T2)}")
    a(f"v_lshl_add_u32 {v(T2)}, {v(T1)}, 9, {v(T2)}")
    a(f"v_bfe_u32 {v(T3)}, v2, 2, 2")
    a(f"v_lshl_add_u32 {v(T2)}, {v(T3)}, 6, {v(T2)}")
    a(f"s_mul_i32 s72, s59, {48*512}")
    a(f"v_add_u32 {v(T2)}, s72, {v(T2)}")
    for j in range(4):
        a(f"v_xor_b32 {v(vB+j)}, {j<<6}, {v(T2)}")
    a(f"v_lshrrev_b32 {v(T3)}, 1, {v(T0)}")
    a("s_lshl_b32 s73, s58, 3")
    a(f"v_add_u32 {v(T3)}, s73, {v(T3)}")
    a(f"v_xor_b32 {v(T3)}, {v(T3)}, {v(T1)}")
    a(f"v_lshlrev_b32 {v(T3)}, 4, {v(T3)}")
    a(f"v_lshl_add_u32 {v(T3)}, {v(T1)}, 9, {v(T3)}")
    a(f"v_and_b32 {v(T4)}, 1, {v(T0)}")
    a(f"v_lshl_add_u32 {v(vHW)}, {v(T4)}, 3, {v(T3)}")
    a(f"v_add_u32 {v(vHW)}, s72, {v(vHW)}")
    a(f"v_lshrrev_b32 {v(T3)}, 1, {v(T0)}")
    a("s_lshl_b32 s73, s58, 2")
    a(f"v_add_u32 {v(T3)}, s73, {v(T3)}")
    a(f"v_xor_b32 {v(T3)}, {v(T3)}, {v(T1)}")
    a(f"v_lshlrev_b32 {v(T3)}, 4, {v(T3)}")
    a(f"v_lshl_add_u32 {v(T3)}, {v(T1)}, 8, {v(T3)}")
    a(f"v_lshl_add_u32 {v(vVX)}, {v(T4)}, 3, {v(T3)}")
    a(f"s_mul_i32 s73, s59, {48*256}")
    a(f"s_add_u32 s73, s73, {VX_LDS}")
    a(f"v_add_u32 {v(vVX)}, s73, {v(vVX)}")
    a(f"v_and_b32 {v(T3)}, 7, v2")
    a(f"v_add_u32 {v(T3)}, s69, {v(T3)}")
    a(f"v_mul_u32_u24 {v(vST)}, {ROWB}, {v(T3)}")
    a(f"v_bfe_u32 {v(T3)}, v2, 3, 1")
    a(f"v_lshl_add_u32 {v(T3)}, {v(T3)}, 2, {v(T0)}")
    a(f"v_lshl_add_u32 {v(vST)}, {v(T3)}, 4, {v(vST)}")
    a(f"v_add_u32 {v(vST)}, s71, {v(vST)}")
    a(f"s_waitcnt vmcnt({vm_after(('C',0))})")
    st(a, opt, 0)
    a("s_barrier")
    def read_bfrags():
        for ks in range(8):
            for t in range(3):
                a(f"ds_read_b128 {v(bf(t,ks),4)}, {v(vB+(ks&3))} offset:{t*8192 + (ks>>2)*256}")
    def tr_reads(n):
        kind = chunk_kind(n); slot = (n % NS) * SLOTB; buf = vA[n & 1]
        out = []
        if kind == 0:
            for rt in range(4):
                out.append(f"ds_read_b64_tr_b16 {v(buf+rt*4,2)}, {v(vT1+rt)} offset:{slot}")
                out.append(f"ds_read_b64_tr_b16 {v(buf+rt*4+2,2)}, {v(vT1+rt)} offset:{slot+4*512}")
        elif kind == 1:
            for p in range(2):
                for u in range(2):
                    rt = p*2+u
                    out.append(f"ds_read_b64_tr_b16 {v(buf+rt*4,2)}, {v(vTA+u)} offset:{slot+p*256}")
                    out.append(f"ds_read_b64_tr_b16 {v(buf+rt*4+2,2)}, {v(vTA+u)} offset:{slot+p*256+4*512}")
        else:
            for u in range(2):
                out.append(f"ds_read_b64_tr_b16 {v(buf+u*4,2)}, {v(vTB+u)} offset:{slot}")
                out.append(f"ds_read_b64_tr_b16 {v(buf+u*4+2,2)}, {v(vTB+u)} offset:{slot+4*256}")
        return out
    for x in tr_reads(0): a(x)
    read_bfrags()

    def dpp_swap_store(X0, X1, line, t):
        out = []
        TM = vX + 8
        for r in range(4):
            out.append(f"v_mov_b32_dpp {v(TM+r)}, {v(X0+r)} row_ror:8 row_mask:0xf bank_mask:0xf")
        for r in range(4):
            out.append(f"v_mov_b32_dpp {v(X0+r)}, {v(X1+r)} row_ror:8 row_mask:0xf bank_mask:0xc")
        for r in range(4):
            out.append(f"v_mov_b32_dpp {v(X1+r)}, {v(TM+r)} quad_perm:[0,1,2,3] row_mask:0xf bank_mask:0x3")
        out.append(f"s_mov_b32 s72, {t*16*ROWB}")
        if not opt.get('exp_nostore'):
            out.append((f"buffer_store_dwordx4 {v(X0,4)}, {v(vST)}, {s(TAB,4)}, s72 offen offset:{line*128} {tf}", ('ST', line, t, 0)))
            out.append((f"buffer_store_dwordx4 {v(X1,4)}, {v(vST)}, {s(TAB,4)}, s72 offen offset:{line*128 + 8*ROWB} {tf}", ('ST', line, t, 1)))
        return out
    def line0_epi(t):
        X0, X1 = vX, vX + 4
        out = []
        for u, X in ((0, X0), (1, X1)):
            S_ = acc(0*2+u, t); V_ = acc(1*2+u, t)
            out.append(f"v_cvt_pk_bf16_f32 {v(X)}, {v(S_)}, {v(S_+1)}")
            out.append(f"v_cvt_pk_bf16_f32 {v(X+1)}, {v(S_+2)}, {v(S_+3)}")
            out.append(f"v_cvt_pk_bf16_f32 {v(X+2)}, {v(V_)}, {v(V_+1)}")
            out.append(f"v_cvt_pk_bf16_f32 {v(X+3)}, {v(V_+2)}, {v(V_+3)}")
        out.append("s_nop 1")
        out += dpp_swap_store(X0, X1, 0, t)
        out.append("s_nop 1")
        return out
    def line1_epi(t):
        X0, X1 = vX, vX + 4
        out = []
        out.append(f"ds_read_b64 {v(X0+2,2)}, {v(vVX)} offset:{t*16*256}")
        out.append(f"v_xor_b32 {v(T0)}, 32, {v(vVX)}")
        out.append(f"ds_read_b64 {v(X1+2,2)}, {v(T0)} offset:{t*16*256}")
        for u, X in ((0, X0), (1, X1)):
            Rr = accB(u, t)
            out.append(f"v_cvt_pk_bf16_f32 {v(X)}, {v(Rr)}, {v(Rr+1)}")
            out.append(f"v_cvt_pk_bf16_f32 {v(X+1)}, {v(Rr+2)}, {v(Rr+3)}")
        out.append("s_waitcnt lgkmcnt(0)")
        out.append("s_nop 0")
        out += dpp_swap_store(X0, X1, 1, t)
        out.append("s_nop 1")
        return out

    extra = {n: [] for n in range(NST)}
    if l2mode == 'pre':
        for i in range(6): extra[i + 1] += l2_store(i)
    elif l2mode == 'late':
        for i in range(6): extra[i // 2].append(l2_load(i))
        for i in range(6): extra[min(7, 3 + i)] += l2_store(i)
    elif l2mode == 'silu':
        for i in range(6): extra[9 + i] += l2_store(i)
    elif l2mode == 'none':
        pass
    if l2mode != 'silu':
        for i in range(3): extra[9 + i].append(vx_dma(i))
    l0 = line0_epi(0) + line0_epi(1) + line0_epi(2)
    per = (len(l0) + 6) // 7
    for k in range(7):
        extra[17 + k] += l0[k*per:(k+1)*per]

    for n in range(NST):
        kind = chunk_kind(n); ks = n & 7; buf = vA[n & 1]
        a.c(f"--- step {n}")
        a("s_waitcnt lgkmcnt(0)")
        if n == 0: st(a, opt, 1)
        if n == 8: st(a, opt, 3)
        if n == 16: st(a, opt, 4)
        mf = []
        if kind < 2:
            for rt in range(4):
                for t in range(3):
                    cc = "0" if ks == 0 else v(acc(rt, t), 4)
                    mf.append(f"v_mfma_f32_16x16x32_bf16 {v(acc(rt,t),4)}, {v(buf+rt*4,4)}, {v(bf(t,ks),4)}, {cc}")
        else:
            for u in range(2):
                for t in range(3):
                    cc = "0" if ks == 0 else v(accB(u, t), 4)
                    mf.append(f"v_mfma_f32_16x16x32_bf16 {v(accB(u,t),4)}, {v(buf+u*4,4)}, {v(bf(t,ks),4)}, {cc}")
        npre = 2 if kind < 2 else 1
        for m in mf[:npre]: a(m)
        side = []
        if n + 1 < NST:
            a(f"s_waitcnt vmcnt({vm_after(('C', n+1))})")
            a("s_barrier")
            side += tr_reads(n + 1)
        if n + NS < NST:
            side += issue_chunk(n + NS)
        side += extra[n]
        rest = mf[npre:]
        k = 0
        nper = (len(side) + len(rest) - 1) // len(rest)
        for m in rest:
            a(m)
            for x in side[k:k+nper]: emit(x)
            k += nper
        for x in side[k:]: emit(x)
        if n == 7:
            a("s_nop 7"); a("s_nop 1")
            st(a, opt, 2)
            if l2mode == 'silu':
                for i in range(3): vx_dma(i)()
                for i in range(6): l2_load(i)()
            a.c("silu + write H (S tile is dead: every wave read its B frags before step 0; all waves passed >=1 barrier since)")
            for rt in range(4):
                for t in range(3):
                    A = acc(rt, t)
                    T = vX + ((rt * 3 + t) & 1) * 8
                    for r in range(4): a(f"v_mul_f32 {v(T+r)}, 0xbfb8aa3b, {v(A+r)}")
                    for r in range(4): a(f"v_exp_f32 {v(T+r)}, {v(T+r)}")
                    a("s_nop 0")
                    for r in range(4): a(f"v_add_f32 {v(T+r)}, 1.0, {v(T+r)}")
                    for r in range(4): a(f"v_rcp_f32 {v(T+r)}, {v(T+r)}")
                    a("s_nop 0")
                    for r in range(4): a(f"v_mul_f32 {v(T+r)}, {v(T+r)}, {v(A+r)}")
                    a(f"v_cvt_pk_bf16_f32 {v(T+4)}, {v(T)}, {v(T+1)}")
                    a(f"v_cvt_pk_bf16_f32 {v(T+5)}, {v(T+2)}, {v(T+3)}")
                    a(f"v_xor_b32 {v(T+6)}, {rt<<5}, {v(vHW)}")
                    a(f"ds_write_b64 {v(T+6)}, {v(T+4,2)} offset:{t*8192}")
            a("s_waitcnt lgkmcnt(0)")
            a("s_barrier")
            read_bfrags()
    a("s_nop 7"); a("s_nop 1")
    st(a, opt, 5)
    a(f"s_waitcnt vmcnt({vm_after(('VX', 2))})")
    a("s_barrier")
    for t in range(3):
        for x in line1_epi(t): emit(x)
    stamp_end(a, opt, 0, 'g')
    a("s_endpgm")
```

```python
from asmlib import *
import k1
from k1 import load_kernargs, stamp_begin, st, stamp_end, P_SV, P_POS, P_SRC, P_DST, P_FRQ, P_W1, P_W2, P_WR, P_OUT, P_DBG, P_WS, N, E
from k1w import NCH, NTILE, NGEMM, ROWB, NROWS, SLICEB, TAB_OFF, TAB_SIZE, SH_LDS, RING_LDS, NS, SLOTB, VX_LDS, K1_LDS

KSA = [0, 2, 4, 6, 1, 3, 5, 7]
NST = 24

def gemm_role(a, opt):
    SV, W1, W2, TAB = 40, 44, 48, 52
    tf = opt.get('tab_store_flags', '')
    l2f = opt.get('l2_store_flags', '')
    vf = opt.get('v_flags', 'nt')
    a.c("===== GEMM role (W v2) =====")
    a(f"s_sub_u32 s60, s2, {NCH}")
    a("s_lshr_b32 s61, s60, 1")
    a("s_and_b32 s60, s60, 1")
    a("s_mul_i32 s57, s61, 96")
    a("v_lshrrev_b32 v1, 6, v0")
    a("v_and_b32 v2, 63, v0")
    a("s_lshl_b32 s63, s60, 8")
    a("s_waitcnt lgkmcnt(0)")
    a("v_readfirstlane_b32 s56, v1")
    srd(a, SV, P_SV, N * 2048)
    srd(a, TAB, P_WS, TAB_SIZE, TAB_OFF)
    a("s_cmp_ge_u32 s56, 8")
    a("s_cbranch_scc1 L_copy_role")
    srd(a, W1, P_W1, 256 * 512)
    srd(a, W2, P_W2, 256 * 1536)
    a("s_and_b32 s58, s56, 3")
    a("s_lshr_b32 s59, s56, 2")
    R = Regs(3, 168)
    vW1 = R.alloc(2); vWA = R.alloc(2); vT1 = R.alloc(4); vTA = R.alloc(2)
    vB = R.alloc(4); vHW = R.alloc(1); vVX = R.alloc(1); vST = R.alloc(1)
    vT = R.alloc(4, 4)
    vX = R.alloc(12, 4)
    vA = [R.alloc(16, 4), R.alloc(16, 4)]
    vBf = [R.alloc(12, 4), R.alloc(12, 4)]
    vAcc = R.alloc(48, 4)
    vAcB = R.alloc(24, 4)
    vWB = vW1; vTB = vT1
    def acc1(rt, t):
        return (vAcc + (rt * 3 + t) * 4) if rt < 2 else (vAcB + ((rt - 2) * 3 + t) * 4)
    def accA(rt, t): return vAcc + (rt * 3 + t) * 4
    def accB(u, t): return vAcB + (u * 3 + t) * 4
    vm = []
    def vm_after(tag):
        if tag not in vm: return 63
        idx = max(i for i, x in enumerate(vm) if x == tag)
        return len(vm) - 1 - idx
    T0, T1, T2, T3, T4, T5 = [vAcc + i for i in range(6)]

    a(f"v_lshrrev_b32 {v(T0)}, 5, v2")
    a(f"v_and_b32 {v(T1)}, 31, v2")
    a("s_mul_i32 s62, s56, 6")
    for i in range(6):
        a(f"s_add_u32 s64, s62, {i}")
        a("s_lshl_b32 s65, s64, 1")
        a(f"v_add_u32 {v(T2)}, s65, {v(T0)}")
        a(f"v_and_b32 {v(T3)}, 15, {v(T2)}")
        a(f"v_xor_b32 {v(T3)}, {v(T3)}, {v(T1)}")
        a(f"v_add_u32 {v(T2)}, s57, {v(T2)}")
        a(f"v_lshlrev_b32 {v(T2)}, 11, {v(T2)}")
        a(f"v_lshl_add_u32 {v(T2)}, {v(T3)}, 4, {v(T2)}")
        a("s_lshl_b32 s65, s64, 10")
        a("s_mov_b32 m0, s65")
        a("s_nop 0")
        a(f"buffer_load_dwordx4 {v(T2)}, {s(SV,4)}, 0 offen lds")
        vm.append(('S', i))
    def fbits(dst, row, tmp):
        a(f"v_and_b32 {v(dst)}, 3, {v(row)}")
        a(f"v_bfe_u32 {v(tmp)}, {v(row)}, 3, 1")
        a(f"v_lshl_or_b32 {v(dst)}, {v(tmp)}, 2, {v(dst)}")
    a("s_lshl_b32 s62, s56, 2")
    for i in range(2):
        a(f"v_add_u32 {v(T2)}, s62, {v(T0)}")
        if i: a(f"v_add_u32 {v(T2)}, 2, {v(T2)}")
        fbits(T3, T2, T5)
        a(f"v_lshlrev_b32 {v(T3)}, 1, {v(T3)}")
        a(f"v_xor_b32 {v(T3)}, {v(T3)}, {v(T1)}")
        a(f"v_lshlrev_b32 {v(T4)}, 4, {v(T3)}")
        a(f"v_lshl_add_u32 {v(vW1+i)}, {v(T2)}, 9, {v(T4)}")
        if i: a(f"v_subrev_u32 {v(vW1+i)}, 1024, {v(vW1+i)}")
        a(f"v_mul_u32_u24 {v(vWA+i)}, 1536, {v(T2)}")
        a(f"v_lshrrev_b32 {v(T4)}, 4, {v(T3)}")
        a(f"v_lshl_add_u32 {v(vWA+i)}, {v(T4)}, 9, {v(vWA+i)}")
        a(f"v_and_b32 {v(T4)}, 15, {v(T3)}")
        a(f"v_lshl_add_u32 {v(vWA+i)}, {v(T4)}, 4, {v(vWA+i)}")
        a(f"v_add_u32 {v(vWA+i)}, s63, {v(vWA+i)}")
        if i: a(f"v_subrev_u32 {v(vWA+i)}, 1024, {v(vWA+i)}")
    a("s_lshl_b32 s65, s56, 11")
    a("s_lshl_b32 s66, s56, 10")
    def kind(n): return n // 8
    def ks_of(n): return KSA[n - 8] if kind(n) == 1 else (n & 7)
    def issue_chunk(n):
        k = kind(n); ks = ks_of(n)
        slot = RING_LDS + (n % NS) * SLOTB
        out = []
        if k < 2:
            out.append(f"s_add_u32 s67, s65, {slot}")
            out.append("s_mov_b32 m0, s67")
            out.append(f"s_mov_b32 s68, {ks * 16384 if k == 0 else ks * 49152}")
            for i in range(2):
                if k == 0:
                    out.append((f"buffer_load_dwordx4 {v(vW1+i)}, {s(W1,4)}, s68 offen offset:{i*1024} lds", ('C', n)))
                else:
                    out.append((f"buffer_load_dwordx4 {v(vWA+i)}, {s(W2,4)}, s68 offen offset:{i*1024} lds", ('C', n)))
        else:
            out.append(f"s_add_u32 s67, s66, {slot}")
            out.append("s_mov_b32 m0, s67")
            out.append(f"s_mov_b32 s68, {ks * 49152}")
            out.append((f"buffer_load_dwordx4 {v(vWB)}, {s(W2,4)}, s68 offen lds", ('C', n)))
        return out
    def emit(x):
        if isinstance(x, tuple):
            a(x[0]); vm.append(x[1])
        elif callable(x):
            x()
        else:
            a(x)
    for n in range(NS):
        for x in issue_chunk(n): emit(x)
    a(f"v_lshrrev_b32 {v(T0)}, 4, v2")
    a(f"v_bfe_u32 {v(T1)}, v2, 2, 2")
    a(f"v_and_b32 {v(T2)}, 3, v2")
    a(f"v_lshl_add_u32 {v(T3)}, {v(T0)}, 3, {v(T1)}")
    a(f"v_and_b32 {v(T4)}, 1, {v(T0)}")
    a(f"v_lshl_or_b32 {v(T4)}, {v(T4)}, 2, {v(T1)}")
    a("s_and_b32 s72, s58, 1")
    a("s_lshl_b32 s72, s72, 2")
    a(f"v_xor_b32 {v(T5)}, s72, {v(T4)}")
    a(f"v_lshlrev_b32 {v(T5)}, 5, {v(T5)}")
    a(f"v_lshl_add_u32 {v(T5)}, {v(T3)}, 9, {v(T5)}")
    a(f"v_lshl_add_u32 {v(T5)}, {v(T2)}, 3, {v(T5)}")
    a("s_lshr_b32 s72, s58, 1")
    a("s_lshl_b32 s72, s72, 8")
    a(f"s_add_u32 s72, s72, {RING_LDS}")
    a(f"v_add_u32 {v(T5)}, s72, {v(T5)}")
    for rt in range(4):
        a(f"v_xor_b32 {v(vT1+rt)}, {rt<<5}, {v(T5)}")
    a("s_lshl_b32 s72, s58, 1")
    a(f"v_xor_b32 {v(T5)}, s72, {v(T4)}")
    a(f"v_lshlrev_b32 {v(T5)}, 5, {v(T5)}")
    a(f"v_lshl_add_u32 {v(T5)}, {v(T2)}, 3, {v(T5)}")
    a(f"v_add_u32 {v(T5)}, {RING_LDS}, {v(T5)}")
    a(f"v_lshl_add_u32 {v(vTA)}, {v(T3)}, 9, {v(T5)}")
    a(f"v_xor_b32 {v(vTA+1)}, 32, {v(vTA)}")
    a(f"v_and_b32 {v(T1)}, 15, v2")
    a(f"v_and_b32 {v(T2)}, 3, v2")
    a(f"v_xor_b32 {v(T2)}, {v(T2)}, {v(T0)}")
    a(f"v_lshlrev_b32 {v(T2)}, 4, {v(T2)}")
    a(f"v_lshl_add_u32 {v(T2)}, {v(T1)}, 9, {v(T2)}")
    a(f"v_bfe_u32 {v(T3)}, v2, 2, 2")
    a(f"v_lshl_add_u32 {v(T2)}, {v(T3)}, 6, {v(T2)}")
    a(f"s_mul_i32 s72, s59, {48*512}")
    a(f"v_add_u32 {v(T2)}, s72, {v(T2)}")
    for j in range(4):
        a(f"v_xor_b32 {v(vB+j)}, {j<<6}, {v(T2)}")
    a(f"v_lshrrev_b32 {v(T3)}, 1, {v(T0)}")
    a("s_lshl_b32 s73, s58, 3")
    a(f"v_add_u32 {v(T3)}, s73, {v(T3)}")
    a(f"v_xor_b32 {v(T3)}, {v(T3)}, {v(T1)}")
    a(f"v_lshlrev_b32 {v(T3)}, 4, {v(T3)}")
    a(f"v_lshl_add_u32 {v(T3)}, {v(T1)}, 9, {v(T3)}")
    a(f"v_and_b32 {v(T4)}, 1, {v(T0)}")
    a(f"v_lshl_add_u32 {v(vHW)}, {v(T4)}, 3, {v(T3)}")
    a(f"v_add_u32 {v(vHW)}, s72, {v(vHW)}")
    a(f"v_lshrrev_b32 {v(T3)}, 1, {v(T0)}")
    a("s_lshl_b32 s73, s58, 2")
    a(f"v_add_u32 {v(T3)}, s73, {v(T3)}")
    a(f"v_xor_b32 {v(T3)}, {v(T3)}, {v(T1)}")
    a(f"v_lshlrev_b32 {v(T3)}, 4, {v(T3)}")
    a(f"v_lshl_add_u32 {v(T3)}, {v(T1)}, 8, {v(T3)}")
    a(f"v_lshl_add_u32 {v(vVX)}, {v(T4)}, 3, {v(T3)}")
    a(f"s_mul_i32 s73, s59, {48*256}")
    a(f"s_add_u32 s73, s73, {VX_LDS}")
    a(f"v_add_u32 {v(vVX)}, s73, {v(vVX)}")
    a("s_mul_i32 s69, s59, 48")
    a("s_add_u32 s69, s69, s57")
    a("s_lshl_b32 s71, s60, 2")
    a("s_add_u32 s71, s71, s58")
    a(f"s_mul_i32 s71, s71, {SLICEB}")
    a(f"v_and_b32 {v(T3)}, 7, v2")
    a(f"v_add_u32 {v(T3)}, s69, {v(T3)}")
    a(f"v_mul_u32_u24 {v(vST)}, {ROWB}, {v(T3)}")
    a(f"v_bfe_u32 {v(T3)}, v2, 3, 1")
    a(f"v_lshl_add_u32 {v(T3)}, {v(T3)}, 2, {v(T0)}")
    a(f"v_lshl_add_u32 {v(vST)}, {v(T3)}, 4, {v(vST)}")
    a(f"v_add_u32 {v(vST)}, s71, {v(vST)}")

    def passB_addr_dma():
        t0, t1, t2 = vT, vT+1, vT+2
        return [f"v_lshrrev_b32 {v(t0)}, 4, v2", f"v_add_u32 {v(t0)}, s62, {v(t0)}",
                f"v_and_b32 {v(t1)}, 3, {v(t0)}", f"v_bfe_u32 {v(t2)}, {v(t0)}, 3, 1", f"v_lshl_or_b32 {v(t1)}, {v(t2)}, 2, {v(t1)}",
                f"v_lshlrev_b32 {v(t1)}, 1, {v(t1)}", f"v_and_b32 {v(t2)}, 15, v2", f"v_xor_b32 {v(t1)}, {v(t1)}, {v(t2)}",
                f"v_mul_u32_u24 {v(vWB)}, 1536, {v(t0)}", f"v_lshl_add_u32 {v(vWB)}, {v(t1)}, 4, {v(vWB)}",
                f"v_add_u32 {v(vWB)}, s63, {v(vWB)}", f"v_add_u32 {v(vWB)}, 1024, {v(vWB)}"]
    def passB_addr_tr():
        t0, t1 = vT, vT+1
        return [f"v_lshrrev_b32 {v(t0)}, 4, v2", f"v_bfe_u32 {v(t1)}, v2, 2, 2", f"v_lshl_add_u32 {v(t0)}, {v(t0)}, 3, {v(t1)}",
                f"v_lshlrev_b32 {v(t0)}, 8, {v(t0)}", f"v_sub_u32 {v(vTB)}, {v(vTA)}, {v(t0)}", f"v_xor_b32 {v(vTB+1)}, 32, {v(vTB)}"]

    def tr_reads(n):
        k = kind(n); slot = (n % NS) * SLOTB; buf = vA[n & 1]
        out = []
        if k == 0:
            for rt in range(4):
                out.append(f"ds_read_b64_tr_b16 {v(buf+rt*4,2)}, {v(vT1+rt)} offset:{slot}")
                out.append(f"ds_read_b64_tr_b16 {v(buf+rt*4+2,2)}, {v(vT1+rt)} offset:{slot+4*512}")
        elif k == 1:
            for p in range(2):
                for u in range(2):
                    rt = p*2+u
                    out.append(f"ds_read_b64_tr_b16 {v(buf+rt*4,2)}, {v(vTA+u)} offset:{slot+p*256}")
                    out.append(f"ds_read_b64_tr_b16 {v(buf+rt*4+2,2)}, {v(vTA+u)} offset:{slot+p*256+4*512}")
        else:
            for u in range(2):
                out.append(f"ds_read_b64_tr_b16 {v(buf+u*4,2)}, {v(vTB+u)} offset:{slot}")
                out.append(f"ds_read_b64_tr_b16 {v(buf+u*4+2,2)}, {v(vTB+u)} offset:{slot+4*256}")
        return out
    def bf_reads(n):
        ks = ks_of(n); buf = vBf[n & 1]
        return [f"ds_read_b128 {v(buf+4*t,4)}, {v(vB+(ks&3))} offset:{t*8192 + (ks>>2)*256}" for t in range(3)]

    def silu_pair(tiles):
        out = []
        TX = [vX, vX + 4]
        A = [acc1(rt, t) for rt, t in tiles]
        for i in range(2):
            for r in range(4): out.append(f"v_mul_f32 {v(TX[i]+r)}, 0xbfb8aa3b, {v(A[i]+r)}")
        for i in range(2):
            for r in range(4): out.append(f"v_exp_f32 {v(TX[i]+r)}, {v(TX[i]+r)}")
        for i in range(2):
            for r in range(4): out.append(f"v_add_f32 {v(TX[i]+r)}, 1.0, {v(TX[i]+r)}")
        for i in range(2):
            for r in range(4): out.append(f"v_rcp_f32 {v(TX[i]+r)}, {v(TX[i]+r)}")
        for i in range(2):
            for r in range(4): out.append(f"v_mul_f32 {v(TX[i]+r)}, {v(TX[i]+r)}, {v(A[i]+r)}")
        for i, (rt, t) in enumerate(tiles):
            P = vX + 8 + 2*i
            out.append(f"v_cvt_pk_bf16_f32 {v(P)}, {v(TX[i])}, {v(TX[i]+1)}")
            out.append(f"v_cvt_pk_bf16_f32 {v(P+1)}, {v(TX[i]+2)}, {v(TX[i]+3)}")
            out.append(f"v_xor_b32 {v(vT+i)}, {rt<<5}, {v(vHW)}")
            out.append(f"ds_write_b64 {v(vT+i)}, {v(P,2)} offset:{t*8192}")
        return out
    def silu_half(rts):
        tl = [(rt, t) for rt in rts for t in range(3)]
        out = []
        for i in range(0, 6, 2): out.append(silu_pair(tl[i:i+2]))
        return out

    def dpp_swap_store(X0, X1, TM, line, t):
        out = []
        for r in range(4):
            out.append(f"v_mov_b32_dpp {v(TM+r)}, {v(X0+r)} row_ror:8 row_mask:0xf bank_mask:0xf")
        for r in range(4):
            out.append(f"v_mov_b32_dpp {v(X0+r)}, {v(X1+r)} row_ror:8 row_mask:0xf bank_mask:0xc")
        for r in range(4):
            out.append(f"v_mov_b32_dpp {v(X1+r)}, {v(TM+r)} quad_perm:[0,1,2,3] row_mask:0xf bank_mask:0x3")
        out.append(f"s_mov_b32 s72, {t*16*ROWB}")
        if not opt.get('exp_nostore'):
            out.append((f"buffer_store_dwordx4 {v(X0,4)}, {v(vST)}, {s(TAB,4)}, s72 offen offset:{line*128} {tf}", ('ST', line, t, 0)))
            out.append((f"buffer_store_dwordx4 {v(X1,4)}, {v(vST)}, {s(TAB,4)}, s72 offen offset:{line*128 + 8*ROWB} {tf}", ('ST', line, t, 1)))
        return out
    X0, X1, TM = vX, vX + 4, vX + 8
    def line0_epi(t):
        out = []
        for u, X in ((0, X0), (1, X1)):
            S_ = accA(0*2+u, t); V_ = accA(1*2+u, t)
            out.append(f"v_cvt_pk_bf16_f32 {v(X)}, {v(S_)}, {v(S_+1)}")
            out.append(f"v_cvt_pk_bf16_f32 {v(X+1)}, {v(S_+2)}, {v(S_+3)}")
            out.append(f"v_cvt_pk_bf16_f32 {v(X+2)}, {v(V_)}, {v(V_+1)}")
            out.append(f"v_cvt_pk_bf16_f32 {v(X+3)}, {v(V_+2)}, {v(V_+3)}")
        out.append("s_nop 1")
        out += dpp_swap_store(X0, X1, TM, 0, t)
        out.append("s_nop 1")
        return out
    def line1_epi(t):
        out = []
        out.append(f"ds_read_b64 {v(X0+2,2)}, {v(vVX)} offset:{t*16*256}")
        out.append(f"v_xor_b32 {v(vT)}, 32, {v(vVX)}")
        out.append(f"ds_read_b64 {v(X1+2,2)}, {v(vT)} offset:{t*16*256}")
        for u, X in ((0, X0), (1, X1)):
            Rr = accB(u, t)
            out.append(f"v_cvt_pk_bf16_f32 {v(X)}, {v(Rr)}, {v(Rr+1)}")
            out.append(f"v_cvt_pk_bf16_f32 {v(X+1)}, {v(Rr+2)}, {v(Rr+3)}")
        out.append("s_waitcnt lgkmcnt(0)")
        out.append("s_nop 0")
        out += dpp_swap_store(X0, X1, TM, 1, t)
        out.append("s_nop 1")
        return out

    a(f"s_waitcnt vmcnt({vm_after(('C',0))})")
    st(a, opt, 0)
    a("s_barrier")
    for x in tr_reads(0): a(x)
    for x in bf_reads(0): a(x)

    extra = {n: [] for n in range(NST)}
    sil2 = silu_half((2, 3))
    if not opt.get('exp_nosilu2'):
        for i in range(3): extra[8 + i] += sil2[i]
    extra[11] += passB_addr_dma()
    extra[13] += passB_addr_tr()
    l0 = line0_epi(0) + line0_epi(1) + line0_epi(2)
    per = (len(l0) + 6) // 7
    for k in range(7): extra[17 + k] += l0[k*per:(k+1)*per]

    for n in range(NST):
        k = kind(n); buf = vA[n & 1]; bb = vBf[n & 1]
        first = (n & 7) == 0
        a.c(f"--- step {n} (ks {ks_of(n)})")
        a("s_waitcnt lgkmcnt(0)")
        if n == 0: st(a, opt, 1)
        if n == 8: st(a, opt, 3)
        if n == 16: st(a, opt, 4)
        mf = []
        nrt = 4 if k < 2 else 2
        for rt in range(nrt):
            for t in range(3):
                A = acc1(rt, t) if k == 0 else (accA(rt, t) if k == 1 else accB(rt, t))
                cc = "0" if first else v(A, 4)
                mf.append(f"v_mfma_f32_16x16x32_bf16 {v(A,4)}, {v(buf+rt*4,4)}, {v(bb+4*t,4)}, {cc}")
        npre = 2 if k < 2 else 1
        for m in mf[:npre]: a(m)
        side = []
        if n + 1 < NST:
            a(f"s_waitcnt vmcnt({vm_after(('C', n+1))})")
            a("s_barrier")
            side += tr_reads(n + 1)
            if n + 1 != 8: side += bf_reads(n + 1)
        if n + NS < NST and not opt.get('exp_nodma'):
            side += issue_chunk(n + NS)
        side += extra[n]
        rest = mf[npre:]
        kk = 0
        nper = (len(side) + len(rest) - 1) // len(rest)
        for m in rest:
            a(m)
            for x in side[kk:kk+nper]: emit(x)
            kk += nper
        for x in side[kk:]: emit(x)
        if n == 7:
            a("s_nop 7"); a("s_nop 1")
            st(a, opt, 2)
            for grp in silu_half((0, 1)):
                for x in grp: a(x)
            a("s_waitcnt lgkmcnt(0)")
            a("s_barrier")
            for x in bf_reads(8): a(x)
    a("s_nop 7"); a("s_nop 1")
    st(a, opt, 5)
    a("s_barrier")
    for t in range(3):
        for x in line1_epi(t): emit(x)
    stamp_end(a, opt, 0, 'g')
    a("s_endpgm")

    a.label("L_copy_role")
    a("s_sub_u32 s58, s56, 8")
    vm2 = []
    def vm2_after(tag):
        idx = max(i for i, x in enumerate(vm2) if x == tag)
        return len(vm2) - 1 - idx
    vS, vD, vQ = 3, 4, 5
    vStg = 8
    a("v_lshrrev_b32 v6, 3, v2")
    a("v_add_u32 v6, s57, v6")
    a("v_and_b32 v7, 7, v2")
    a(f"v_lshlrev_b32 {v(vS)}, 11, v6")
    a(f"v_lshl_add_u32 {v(vS)}, v7, 3, {v(vS)}")
    a("s_lshl_b32 s70, s58, 6")
    a("s_add_u32 s70, s70, s63")
    a(f"v_add_u32 {v(vS)}, s70, {v(vS)}")
    a("s_lshl_b32 s71, s60, 2")
    a("s_add_u32 s71, s71, s58")
    a(f"s_mul_i32 s71, s71, {SLICEB}")
    a(f"v_mul_u32_u24 {v(vD)}, {ROWB}, v6")
    a(f"v_lshl_add_u32 {v(vD)}, v7, 4, {v(vD)}")
    a(f"v_add_u32 {v(vD)}, s71, {v(vD)}")
    def c_vx(i):
        a("s_mul_i32 s72, s58, 24")
        a(f"s_add_u32 s72, s72, {4*i}")
        a("v_lshrrev_b32 v6, 4, v2")
        a("v_add_u32 v6, s72, v6")
        a("v_and_b32 v7, 15, v6")
        a(f"v_and_b32 {v(vQ)}, 15, v2")
        a(f"v_xor_b32 v7, v7, {v(vQ)}")
        a("v_add_u32 v6, s57, v6")
        a("v_lshlrev_b32 v6, 11, v6")
        a("v_lshl_add_u32 v6, v7, 4, v6")
        a("v_add_u32 v6, s63, v6")
        a("v_add_u32 v6, 512, v6")
        a("s_lshl_b32 s72, s72, 8")
        a(f"s_add_u32 s72, s72, {VX_LDS}")
        a("s_mov_b32 m0, s72")
        a("s_nop 0")
        a(f"buffer_load_dwordx4 v6, {s(SV,4)}, 0 offen {vf} lds"); vm2.append(('VX', i))
    def c_load(i):
        a(f"s_mov_b32 s72, {i*8*2048}")
        a(f"buffer_load_dwordx2 {v(vStg+4*i,2)}, {v(vS)}, {s(SV,4)}, s72 offen offset:1024 {vf}"); vm2.append(('a', i))
        a(f"buffer_load_dwordx2 {v(vStg+4*i+2,2)}, {v(vS)}, {s(SV,4)}, s72 offen offset:1536 {vf}"); vm2.append(('b', i))
    def c_store(i):
        a(f"s_waitcnt vmcnt({vm2_after(('b', i))})")
        a(f"s_mov_b32 s72, {i*8*ROWB}")
        a(f"buffer_store_dwordx4 {v(vStg+4*i,4)}, {v(vD)}, {s(TAB,4)}, s72 offen offset:256 {l2f}"); vm2.append(('s', i))
    a("s_barrier")
    sched = opt.get('csched', '1')
    for n in range(NST):
        if sched == '0':
            if n < 6:
                c_vx(n); c_load(2*n); c_load(2*n+1)
            if 8 <= n < 20: c_store(n - 8)
        elif sched == '1':
            if n < 12: c_load(n)
            if 10 <= n < 16: c_vx(n - 10)
            if 8 <= n < 20: c_store(n - 8)
        elif sched == 'none':
            pass
        elif sched == '2':
            if n < 12: c_load(n)
            if 12 <= n < 18: c_vx(n - 12)
            if 10 <= n < 22: c_store(n - 10)
        if n + 1 < NST:
            a("s_barrier")
        if n == 7:
            a("s_barrier")
    if sched != 'none': a(f"s_waitcnt vmcnt({vm2_after(('VX', 5))})")
    a("s_barrier")
    stamp_end(a, opt, 0, 'c')
    a("s_endpgm")
```

```python
from asmlib import *
from k1 import *
import k1w
from k1w import SLICEB, TAB_OFF, TAB_SIZE, ROWB

K2_NWG = 256
RNG = 313
CNT_L = 0; START_L = 1280; ORDER_L = 2560; BKT_L = 3840; MISC_L = 3904
WPK_L = 4096
REC_L = 5120
NULL_L = REC_L + 1024 * 32
K2_LDS = NULL_L + 64
OOBV = 0x7f000000

def dpp_scan(a, x, op="v_add_u32"):
    for sh in (1, 2, 4, 8):
        a("s_nop 1")
        a(f"{op}_dpp {v(x)}, {v(x)}, {v(x)} row_shr:{sh} row_mask:0xf bank_mask:0xf bound_ctrl:0")
    a("s_nop 1")
    a(f"{op}_dpp {v(x)}, {v(x)}, {v(x)} row_bcast:15 row_mask:0xa bank_mask:0xf")
    a("s_nop 1")
    a(f"{op}_dpp {v(x)}, {v(x)}, {v(x)} row_bcast:31 row_mask:0xc bank_mask:0xf")
    a("s_nop 1")

def k2w(a, opt):
    TAB, SV, OUT, REC, CNT, WR = 40, 44, 48, 52, 56, 60
    ost = opt.get('out_store_flags', '')
    sres = opt.get('sres_flags', '')
    a(f"s_cmp_ge_u32 s2, {K2_NWG}")
    a("s_cbranch_scc1 L_k2_exit")
    stamp_begin(a, opt)
    load_kernargs(a)
    a("v_lshrrev_b32 v1, 6, v0")
    a("v_and_b32 v2, 63, v0")
    a("s_and_b32 s65, s2, 7")
    a("s_lshr_b32 s66, s2, 3")
    a(f"s_mul_i32 s67, s66, {RNG}")
    a(f"s_sub_u32 s68, {N}, s67")
    a(f"s_min_u32 s68, s68, {RNG}")
    a("s_waitcnt lgkmcnt(0)")
    a("v_readfirstlane_b32 s64, v1")
    srd(a, REC, P_WS, REC_SIZE, REC_OFF)
    srd(a, CNT, P_WS, CNT_SIZE, CNT_OFF)
    a("s_lshl_b32 s69, s66, 10")
    a("v_add_u32 v3, s69, v0")
    a(f"v_mul_u32_u24 v3, {RECB}, v3")
    a(f"buffer_load_dwordx4 v[8:11], v3, {s(REC,4)}, 0 offen")
    a(f"buffer_load_dword v12, v3, {s(REC,4)}, 0 offen offset:16")
    a("v_lshlrev_b32 v4, 8, v2")
    a("s_lshl_b32 s69, s66, 2")
    a(f"buffer_load_dword v13, v4, {s(CNT,4)}, s69 offen")
    a(f"s_mul_i32 s69, s65, {SLICEB}")
    a(f"s_add_u32 s{TAB}, s{P_WS}, s69")
    a(f"s_addc_u32 s{TAB+1}, s{P_WS+1}, 0")
    if TAB_OFF:
        a(f"s_add_u32 s{TAB}, s{TAB}, {TAB_OFF}")
        a(f"s_addc_u32 s{TAB+1}, s{TAB+1}, 0")
    a(f"s_mov_b32 s{TAB+2}, {SLICEB}")
    a(f"s_mov_b32 s{TAB+3}, 0x00020000")
    srd(a, SV, P_SV, N * 2048)
    srd(a, OUT, P_OUT, N * 2048)
    srd(a, WR, P_WR, 4 * 1536)
    a("v_lshlrev_b32 v5, 2, v0")
    a("v_mov_b32 v6, 0")
    a("v_cmp_gt_u32 vcc, 320, v0")
    a("s_and_saveexec_b64 s[70:71], vcc")
    a(f"ds_write_b32 v5, v6 offset:{CNT_L}")
    a("s_mov_b64 exec, s[70:71]")
    a("v_cmp_gt_u32 vcc, 32, v0")
    a("s_and_saveexec_b64 s[70:71], vcc")
    a(f"ds_write_b32 v5, v6 offset:{BKT_L}")
    a("s_mov_b64 exec, s[70:71]")
    a("s_waitcnt lgkmcnt(0)")
    a("s_barrier")
    a("s_cmp_eq_u32 s64, 12")
    a("s_cbranch_scc0 L_k2_now")
    vWraw = 64
    a("v_and_b32 v7, 7, v2")
    a("v_lshlrev_b32 v7, 3, v7")
    a("s_lshl_b32 s69, s65, 6")
    a("v_add_u32 v7, s69, v7")
    a("s_movk_i32 s69, 3072")
    for k in range(4):
        for p in range(3):
            off = k*1536 + p*512
            if off < 3072:
                a(f"buffer_load_dwordx2 {v(vWraw+(k*3+p)*2,2)}, v7, {s(WR,4)}, 0 offen offset:{off}")
            else:
                a(f"buffer_load_dwordx2 {v(vWraw+(k*3+p)*2,2)}, v7, {s(WR,4)}, s69 offen offset:{off-3072}")
    a("s_waitcnt vmcnt(12)")
    a("s_branch L_k2_wd")
    a.label("L_k2_now")
    a("s_waitcnt vmcnt(0)")
    a.label("L_k2_wd")
    st(a, opt, 0)
    a("v_mov_b32 v14, v13")
    for sh in (1, 2, 4, 8):
        a("s_nop 1")
        a(f"v_add_u32_dpp v14, v14, v14 row_shr:{sh} row_mask:0xf bank_mask:0xf bound_ctrl:0")
    a("s_nop 1")
    a("v_readlane_b32 s72, v14, 15")
    a("v_readlane_b32 s73, v14, 31")
    a("v_readlane_b32 s74, v14, 47")
    a("s_add_u32 s72, s72, s73")
    a("s_add_u32 s72, s72, s74")
    if opt.get('stamps'): a("s_waitcnt lgkmcnt(0)")
    a(f"s_cmp_gt_u32 s72, {HOTCAP}")
    a("s_cbranch_scc1 L_k2_slow")
    a("v_lshrrev_b32 v15, 14, v8")
    a("v_cmp_gt_u32 vcc, s72, v0")
    a("s_and_saveexec_b64 s[76:77], vcc")
    a("v_lshlrev_b32 v16, 2, v15")
    a("v_mov_b32 v17, 1")
    a(f"ds_add_rtn_u32 v17, v16, v17 offset:{CNT_L}")
    a("s_mov_b64 exec, s[76:77]")
    a("v_and_b32 v20, 0x3fff, v8")
    a(f"v_mul_u32_u24 v20, {ROWB}, v20")
    a("v_mov_b32 v21, v9")
    a("v_mov_b32 v22, v10")
    a("v_lshlrev_b32 v23, 16, v11")
    a("v_and_b32 v24, 0xffff0000, v11")
    a("v_lshlrev_b32 v25, 16, v12")
    a("s_waitcnt lgkmcnt(0)")
    a("s_barrier")
    st(a, opt, 1)
    a("v_cmp_gt_u32 vcc, s68, v0")
    a("s_and_saveexec_b64 s[78:79], vcc")
    a("v_mov_b32 v26, 0")
    a(f"ds_read_b32 v26, v5 offset:{CNT_L}")
    a("s_waitcnt lgkmcnt(0)")
    a("s_mov_b64 exec, s[78:79]")
    a("v_cndmask_b32 v26, 0, v26, vcc")
    a("s_cmp_lt_u32 s64, 5")
    a("s_cbranch_scc0 L_k2_nonode")
    a("v_mov_b32 v27, v26")
    dpp_scan(a, 27)
    a("v_readlane_b32 s80, v27, 63")
    a("s_mov_b64 exec, 1")
    a(f"v_mov_b32 v28, {MISC_L+4}")
    a("v_mov_b32 v29, s80")
    a("ds_add_rtn_u32 v29, v28, v29")
    a("s_mov_b64 exec, -1")
    a("v_min_u32 v30, 15, v26")
    a("v_sub_u32 v30, 15, v30")
    a("v_lshlrev_b32 v31, 2, v30")
    a("v_mov_b32 v32, 1")
    a("s_and_saveexec_b64 s[82:83], vcc") if False else None
    a("s_mov_b64 exec, s[78:79]") if False else None
    a("v_cmp_gt_u32 vcc, s68, v0")
    a("s_and_saveexec_b64 s[82:83], vcc")
    a(f"ds_add_rtn_u32 v32, v31, v32 offset:{BKT_L}")
    a("s_mov_b64 exec, s[82:83]")
    a("s_waitcnt lgkmcnt(0)")
    a("v_readfirstlane_b32 s80, v29")
    a("v_sub_u32 v27, v27, v26")
    a("v_add_u32 v27, s80, v27")
    a("s_and_saveexec_b64 s[82:83], vcc")
    a(f"ds_write_b32 v5, v27 offset:{START_L}")
    a("s_mov_b64 exec, s[82:83]")
    a.label("L_k2_nonode")
    a("s_waitcnt lgkmcnt(0)")
    a("s_barrier")
    a("s_cmp_lt_u32 s64, 5")
    a("s_cbranch_scc0 L_k2_noord")
    a("v_lshlrev_b32 v33, 2, v2")
    a(f"ds_read_b32 v33, v33 offset:{BKT_L}")
    a("s_waitcnt lgkmcnt(0)")
    a("v_mov_b32 v34, v33")
    for sh in (1, 2, 4, 8):
        a("s_nop 1")
        a(f"v_add_u32_dpp v34, v34, v34 row_shr:{sh} row_mask:0xf bank_mask:0xf bound_ctrl:0")
    a("s_nop 1")
    a("v_sub_u32 v34, v34, v33")
    a("ds_bpermute_b32 v34, v31, v34")
    a("s_waitcnt lgkmcnt(0)")
    a("v_add_u32 v34, v34, v32")
    a("v_lshlrev_b32 v34, 2, v34")
    a("v_cmp_gt_u32 vcc, s68, v0")
    a("s_and_saveexec_b64 s[82:83], vcc")
    a(f"ds_write_b32 v34, v0 offset:{ORDER_L}")
    a("s_mov_b64 exec, s[82:83]")
    a.label("L_k2_noord")
    a("s_cmp_eq_u32 s64, 12")
    a("s_cbranch_scc0 L_k2_now2")
    a("s_waitcnt vmcnt(0)")
    vW = 96
    a("s_mov_b32 s70, 0x05040100")
    a("s_mov_b32 s71, 0x07060302")
    for p in range(3):
        for ch in range(4):
            d = ch >> 1
            sel = "s70" if (ch & 1) == 0 else "s71"
            for h in range(2):
                r0 = 64 + ((2*h)*3+p)*2 + d; r1 = 64 + ((2*h+1)*3+p)*2 + d
                a(f"v_perm_b32 {v(vW+(p*4+ch)*2+h)}, {v(r1)}, {v(r0)}, {sel}")
    a("v_and_b32 v7, 7, v2")
    a("v_mul_u32_u24 v7, 96, v7")
    a("v_cmp_gt_u32 vcc, 8, v2")
    a("s_and_saveexec_b64 s[70:71], vcc")
    for q in range(6):
        a(f"ds_write_b128 v7, {v(vW+4*q,4)} offset:{WPK_L + 16*q}")
    a("s_mov_b64 exec, 1")
    a(f"v_mov_b32 v40, {OOBV}")
    for r in (41, 42, 43, 44, 45): a(f"v_mov_b32 v{r}, 0")
    a(f"v_mov_b32 v7, {NULL_L}")
    a("ds_write_b128 v7, v[40:43]")
    a("ds_write_b64 v7, v[44:45] offset:16")
    a("s_mov_b64 exec, -1")
    a.label("L_k2_now2")
    a("v_cmp_gt_u32 vcc, s72, v0")
    a("s_and_saveexec_b64 s[76:77], vcc")
    a(f"ds_read_b32 v18, v16 offset:{START_L}")
    a("s_waitcnt lgkmcnt(0)")
    a("v_add_u32 v18, v18, v17")
    a("v_lshlrev_b32 v18, 5, v18")
    a(f"ds_write_b128 v18, v[20:23] offset:{REC_L}")
    a(f"ds_write_b64 v18, v[24:25] offset:{REC_L+16}")
    a("s_mov_b64 exec, s[76:77]")
    a("s_waitcnt vmcnt(0) lgkmcnt(0)")
    a("s_barrier")
    st(a, opt, 2)

    vW = 96
    vAcc = 8; vRawA = 24; vRawB = 36; vRA = 48; vRB = 56
    vWf = 64; vU = 120
    vJ16 = 3; vSb = 4; vDeg = 5; vOV = 6; vRes = 76; vT = 78; vOwn = 7; vE = 80; vAd = 81
    def load_w():
        a("v_and_b32 v7, 7, v2")
        a("v_mul_u32_u24 v7, 96, v7")
        for q in range(6):
            a(f"ds_read_b128 {v(vW+4*q,4)}, v7 offset:{WPK_L + 16*q}")
        a("v_and_b32 v3, 7, v2")
        a("v_lshlrev_b32 v3, 4, v3")
    def compute(R, RC):
        for p in range(3):
            for ch in range(4):
                a(f"v_dot2_f32_bf16 {v(vWf+p*4+ch)}, {v(vW+(p*4+ch)*2+1)}, {v(RC+2)}, 0")
        for p in range(3):
            for ch in range(4):
                a(f"v_dot2_f32_bf16 {v(vWf+p*4+ch)}, {v(vW+(p*4+ch)*2)}, {v(RC+1)}, {v(vWf+p*4+ch)}")
        for d in range(2):
            a(f"v_lshlrev_b32 {v(vU)}, 16, {v(R+d)}")
            a(f"v_and_b32 {v(vU+1)}, 0xffff0000, {v(R+d)}")
            a(f"v_fmac_f32 {v(vAcc+2*d)}, {v(vU)}, {v(vWf+2*d)}")
            a(f"v_fmac_f32 {v(vAcc+2*d+1)}, {v(vU+1)}, {v(vWf+2*d+1)}")
        for p in (1, 2):
            for d in range(2):
                a(f"v_lshlrev_b32 {v(vU+2)}, 16, {v(R+2*p+d)}")
                a(f"v_and_b32 {v(vU+3)}, 0xffff0000, {v(R+2*p+d)}")
                a(f"v_mul_f32 {v(vWf+p*4+2*d)}, {v(vU+2)}, {v(vWf+p*4+2*d)}")
                a(f"v_mul_f32 {v(vWf+p*4+2*d+1)}, {v(vU+3)}, {v(vWf+p*4+2*d+1)}")
        for j in range(3):
            for d in range(2):
                a(f"v_lshlrev_b32 {v(vU+4)}, 16, {v(R+6+2*j+d)}")
                a(f"v_and_b32 {v(vU+5)}, 0xffff0000, {v(R+6+2*j+d)}")
                A = vAcc + 4 + j*4 + 2*d
                a(f"v_fmac_f32 {v(A)}, {v(vU+4)}, {v(vWf+4+2*d)}")
                a(f"v_fmac_f32 {v(A+1)}, {v(vU+5)}, {v(vWf+4+2*d+1)}")
                a(f"v_fmac_f32 {v(A)}, {v(RC+3+j)}, {v(vWf+8+2*d)}")
                a(f"v_fmac_f32 {v(A+1)}, {v(RC+3+j)}, {v(vWf+8+2*d+1)}")
    def issue_rows(R, RC):
        a(f"v_add_u32 {v(vAd)}, {v(RC)}, {v(vJ16)}")
        for q in range(3):
            a(f"buffer_load_dwordx4 {v(R+4*q,4)}, {v(vAd)}, {s(TAB,4)}, 0 offen offset:{q*128}")
    def fetch_rec(RC, e_expr_sgpr):
        a(f"s_lshl_b32 s87, {e_expr_sgpr}, 5")
        a(f"v_add_u32 {v(vAd)}, s87, {v(vSb)}")
        a(f"v_cmp_lt_u32 vcc, {e_expr_sgpr}, {v(vDeg)}")
        a(f"v_mov_b32 {v(vT)}, {NULL_L}")
        a(f"v_cndmask_b32 {v(vAd)}, {v(vT)}, {v(vAd)}, vcc")
        a(f"ds_read_b128 {v(RC,4)}, {v(vAd)}")
        a(f"ds_read_b64 {v(RC+4,2)}, {v(vAd)} offset:16")
        a("s_waitcnt lgkmcnt(0)")
    vRx = 82; vRyz = 84
    def load_residual():
        a(f"buffer_load_dwordx2 {v(vRes,2)}, {v(vOV)}, {s(SV,4)}, 0 offen {sres}")
        a(f"buffer_load_dwordx2 {v(vRx,2)}, {v(vOwn)}, {s(TAB,4)}, 0 offen offset:136")
        a(f"buffer_load_dwordx4 {v(vRyz,4)}, {v(vOwn)}, {s(TAB,4)}, 0 offen offset:256")
    def zero_acc():
        for r in range(16): a(f"v_mov_b32 {v(vAcc+r)}, 0")
    def finish_store():
        res = [vRes, vRx, vRyz, vRyz + 2]
        for c in range(4):
            for d in range(2):
                U = vU + 2*((2*c+d) & 3)
                a(f"v_lshlrev_b32 {v(U)}, 16, {v(res[c]+d)}")
                a(f"v_and_b32 {v(U+1)}, 0xffff0000, {v(res[c]+d)}")
                a(f"v_add_f32 {v(vAcc+4*c+2*d)}, {v(vAcc+4*c+2*d)}, {v(U)}")
                a(f"v_add_f32 {v(vAcc+4*c+2*d+1)}, {v(vAcc+4*c+2*d+1)}, {v(U+1)}")
        for c in range(4):
            for d in range(2):
                a(f"v_cvt_pk_bf16_f32 {v(vWf+2*c+d)}, {v(vAcc+c*4+2*d)}, {v(vAcc+c*4+2*d+1)}")
        for c in range(4):
            a(f"buffer_store_dwordx2 {v(vWf+2*c,2)}, {v(vOV)}, {s(OUT,4)}, 0 offen offset:{c*512} {ost}")

    load_w()
    a.label("L_k2_next")
    a("s_mov_b64 exec, 1")
    a(f"v_mov_b32 {v(vT)}, {MISC_L}")
    a(f"v_mov_b32 {v(vU)}, 1")
    a(f"ds_add_rtn_u32 {v(vT)}, {v(vT)}, {v(vU)}")
    a("s_waitcnt lgkmcnt(0)")
    a(f"v_readfirstlane_b32 s80, {v(vT)}")
    a("s_mov_b64 exec, -1")
    a("s_lshl_b32 s80, s80, 3")
    a("s_cmp_ge_u32 s80, s68")
    a("s_cbranch_scc1 L_k2_exit")
    a(f"v_lshrrev_b32 {v(vT)}, 3, v2")
    a(f"v_add_u32 {v(vT)}, s80, {v(vT)}")
    a(f"v_cmp_gt_u32 s[82:83], s68, {v(vT)}")
    a(f"v_lshlrev_b32 {v(vT+1)}, 2, {v(vT)}")
    a(f"ds_read_b32 {v(vT+1)}, {v(vT+1)} offset:{ORDER_L}")
    a("s_waitcnt lgkmcnt(0)")
    a(f"v_cndmask_b32 {v(vT+1)}, 0, {v(vT+1)}, s[82:83]")
    a(f"v_lshlrev_b32 {v(vT)}, 2, {v(vT+1)}")
    a(f"ds_read_b32 {v(vDeg)}, {v(vT)} offset:{CNT_L}")
    a(f"ds_read_b32 {v(vSb)}, {v(vT)} offset:{START_L}")
    a(f"v_add_u32 {v(vOV)}, s67, {v(vT+1)}")
    a(f"v_lshlrev_b32 {v(vOV)}, 11, {v(vOV)}")
    a(f"v_lshrrev_b32 {v(vT)}, 1, {v(vJ16)}")
    a(f"v_add_u32 {v(vOV)}, {v(vOV)}, {v(vT)}")
    a("s_lshl_b32 s84, s65, 6")
    a(f"v_add_u32 {v(vOV)}, s84, {v(vOV)}")
    a(f"v_mov_b32 {v(vT)}, {OOBV}")
    a(f"v_cndmask_b32 {v(vOV)}, {v(vT)}, {v(vOV)}, s[82:83]")
    a(f"v_add_u32 {v(vOwn)}, s67, {v(vT+1)}")
    a(f"v_mul_u32_u24 {v(vOwn)}, {ROWB}, {v(vOwn)}")
    a(f"v_add_u32 {v(vOwn)}, {v(vOwn)}, {v(vJ16)}")
    a(f"v_cndmask_b32 {v(vOwn)}, {v(vT)}, {v(vOwn)}, s[82:83]")
    load_residual()
    a("s_waitcnt lgkmcnt(0)")
    a(f"v_cndmask_b32 {v(vDeg)}, 0, {v(vDeg)}, s[82:83]")
    a(f"v_lshlrev_b32 {v(vSb)}, 5, {v(vSb)}")
    a(f"v_add_u32 {v(vSb)}, {REC_L}, {v(vSb)}")
    a(f"v_mov_b32 {v(vT)}, {v(vDeg)}")
    for sh in (8,):
        a("s_nop 1")
        a(f"v_max_u32_dpp {v(vT)}, {v(vT)}, {v(vT)} row_shr:8 row_mask:0xf bank_mask:0xf bound_ctrl:0")
    a("s_nop 1")
    a(f"v_readlane_b32 s85, {v(vT)}, 15")
    a(f"v_readlane_b32 s86, {v(vT)}, 31")
    a("s_max_u32 s85, s85, s86")
    a(f"v_readlane_b32 s86, {v(vT)}, 47")
    a("s_max_u32 s85, s85, s86")
    a(f"v_readlane_b32 s86, {v(vT)}, 63")
    a("s_max_u32 s85, s85, s86")
    a("s_cmp_eq_u32 s85, 0")
    a("s_cbranch_scc1 L_k2_noedge")
    a("s_mov_b32 s88, 0")
    fetch_rec(vRA, "s88")
    issue_rows(vRawA, vRA)
    a("s_cmp_gt_u32 s85, 1")
    a("s_cbranch_scc0 L_k2_one")
    a("s_mov_b32 s88, 1")
    fetch_rec(vRB, "s88")
    issue_rows(vRawB, vRB)
    a.label("L_k2_one")
    zero_acc()
    a("s_mov_b32 s89, 0")
    a.label("L_k2_loop")
    for bufi, (R, RC) in enumerate(((vRawA, vRA), (vRawB, vRB))):
        a("s_add_u32 s88, s89, 1")
        a("s_cmp_lt_u32 s88, s85")
        a(f"s_cbranch_scc1 L_k2_w3_{bufi}")
        a("s_waitcnt vmcnt(0)")
        a(f"s_branch L_k2_wd_{bufi}")
        a.label(f"L_k2_w3_{bufi}")
        a("s_waitcnt vmcnt(3)")
        a.label(f"L_k2_wd_{bufi}")
        compute(R, RC)
        a("s_add_u32 s88, s89, 2")
        a("s_cmp_lt_u32 s88, s85")
        a(f"s_cbranch_scc0 L_k2_ni_{bufi}")
        fetch_rec(RC, "s88")
        issue_rows(R, RC)
        a.label(f"L_k2_ni_{bufi}")
        a("s_add_u32 s89, s89, 1")
        a("s_cmp_lt_u32 s89, s85")
        if bufi == 0:
            a("s_cbranch_scc0 L_k2_fin")
        else:
            a("s_cbranch_scc1 L_k2_loop")
    a("s_branch L_k2_fin")
    a.label("L_k2_noedge")
    zero_acc()
    a("s_waitcnt vmcnt(0)")
    a.label("L_k2_fin")
    finish_store()
    a("s_branch L_k2_next")

    a.label("L_k2_slow")
    a("s_cmp_eq_u32 s64, 12")
    a("s_cbranch_scc0 L_k2_now3")
    a("s_waitcnt vmcnt(0)")
    vW = 96
    a("s_mov_b32 s70, 0x05040100")
    a("s_mov_b32 s71, 0x07060302")
    for p in range(3):
        for ch in range(4):
            d = ch >> 1
            sel = "s70" if (ch & 1) == 0 else "s71"
            for h in range(2):
                r0 = 64 + ((2*h)*3+p)*2 + d; r1 = 64 + ((2*h+1)*3+p)*2 + d
                a(f"v_perm_b32 {v(vW+(p*4+ch)*2+h)}, {v(r1)}, {v(r0)}, {sel}")
    a("v_and_b32 v7, 7, v2")
    a("v_mul_u32_u24 v7, 96, v7")
    a("v_cmp_gt_u32 vcc, 8, v2")
    a("s_and_saveexec_b64 s[70:71], vcc")
    for q in range(6):
        a(f"ds_write_b128 v7, {v(vW+4*q,4)} offset:{WPK_L + 16*q}")
    a("s_mov_b64 exec, 1")
    a(f"v_mov_b32 v40, {OOBV}")
    for r in (41, 42, 43, 44, 45): a(f"v_mov_b32 v{r}, 0")
    a(f"v_mov_b32 v7, {NULL_L}")
    a("ds_write_b128 v7, v[40:43]")
    a("ds_write_b64 v7, v[44:45] offset:16")
    a("s_mov_b64 exec, -1")
    a.label("L_k2_now3")
    a("s_waitcnt vmcnt(0) lgkmcnt(0)")
    a("s_barrier")
    load_w()
    a("s_mov_b32 s80, s64")
    a.label("L_k2_snext")
    a("s_cmp_ge_u32 s80, s68")
    a("s_cbranch_scc1 L_k2_exit")
    a("s_add_u32 s81, s67, s80")
    a("s_lshl_b32 s81, s81, 11")
    a("s_lshl_b32 s84, s65, 6")
    a("s_add_u32 s81, s81, s84")
    a(f"v_lshrrev_b32 {v(vT)}, 1, {v(vJ16)}")
    a(f"v_add_u32 {v(vOV)}, s81, {v(vT)}")
    a("s_add_u32 s81, s67, s80")
    a(f"s_mul_i32 s81, s81, {ROWB}")
    a(f"v_add_u32 {v(vOwn)}, s81, {v(vJ16)}")
    load_residual()
    zero_acc()
    a("s_mov_b32 s85, 0")
    a(f"s_mul_i32 s90, s66, {COLD_BIN}")
    a(f"s_add_u32 s90, s90, {HOT_SIZE}")
    a("s_lshl_b32 s91, s66, 10")
    a.label("L_k2_sscan")
    a("s_cmp_ge_u32 s85, s72")
    a("s_cbranch_scc1 L_k2_sfin")
    a(f"v_add_u32 {v(vT)}, s85, v2")
    a(f"v_add_u32 {v(vT+1)}, s91, {v(vT)}")
    a(f"v_mul_u32_u24 {v(vT+1)}, {RECB}, {v(vT+1)}")
    a(f"v_mul_u32_u24 {v(vE)}, {RECB}, {v(vT)}")
    a(f"v_add_u32 {v(vE)}, s90, {v(vE)}")
    a(f"v_cmp_gt_u32 vcc, {HOTCAP}, {v(vT)}")
    a("s_nop 1")
    a(f"v_cndmask_b32 {v(vE)}, {v(vE)}, {v(vT+1)}, vcc")
    a(f"buffer_load_dword {v(vT+1)}, {v(vE)}, {s(REC,4)}, 0 offen")
    a("s_waitcnt vmcnt(0)")
    a(f"v_lshrrev_b32 {v(vT+1)}, 14, {v(vT+1)}")
    a(f"v_cmp_eq_u32 vcc, s80, {v(vT+1)}")
    a(f"v_cmp_gt_u32 s[92:93], s72, {v(vT)}")
    a("s_and_b64 s[92:93], s[92:93], vcc")
    a.label("L_k2_smatch")
    a("s_cmp_eq_u64 s[92:93], 0")
    a("s_cbranch_scc1 L_k2_sadv")
    a("s_ff1_i32_b64 s94, s[92:93]")
    a("s_bitset0_b64 s[92:93], s94")
    a(f"v_readlane_b32 s95, {v(vE)}, s94")
    a("s_nop 3")
    a(f"v_mov_b32 {v(vT)}, s95")
    a(f"buffer_load_dwordx4 {v(vRA,4)}, {v(vT)}, {s(REC,4)}, 0 offen")
    a(f"buffer_load_dword {v(vRA+5)}, {v(vT)}, {s(REC,4)}, 0 offen offset:16")
    a("s_waitcnt vmcnt(0)")
    a(f"v_and_b32 {v(vRA)}, 0x3fff, {v(vRA)}")
    a(f"v_mul_u32_u24 {v(vRA)}, {ROWB}, {v(vRA)}")
    a(f"v_and_b32 {v(vRA+4)}, 0xffff0000, {v(vRA+3)}")
    a(f"v_lshlrev_b32 {v(vRA+3)}, 16, {v(vRA+3)}")
    a(f"v_lshlrev_b32 {v(vRA+5)}, 16, {v(vRA+5)}")
    issue_rows(vRawA, vRA)
    a("s_waitcnt vmcnt(0)")
    compute(vRawA, vRA)
    a("s_branch L_k2_smatch")
    a.label("L_k2_sadv")
    a("s_add_u32 s85, s85, 64")
    a("s_branch L_k2_sscan")
    a.label("L_k2_sfin")
    a("s_waitcnt vmcnt(0)")
    a("s_mov_b64 exec, 0xff")
    finish_store()
    a("s_mov_b64 exec, -1")
    a("s_add_u32 s80, s80, 16")
    a("s_branch L_k2_snext")
    a.label("L_k2_exit")
    if opt.get('stamps'):
        a(f"s_cmp_ge_u32 s2, {K2_NWG}")
        a("s_cbranch_scc1 L_k2_exit2")
        stamp_end(a, opt, 1, 'k2')
        a.label("L_k2_exit2")
    a("s_endpgm")
```

```python
from asmlib import *
from k1 import *
import k1w
from k1w import SLICEB, TAB_OFF, TAB_SIZE, ROWB

K2_NWG = 256
RNG = 313
CNT_L = 0; START_L = 1280; ORDER_L = 2560; BKT_L = 3840; MISC_L = 3904
WPK_L = 4096
REC_L = 5120
NULL_L = REC_L + 1024 * 32
OWN_L = 38912
NOWN = 118
K2_LDS = OWN_L + NOWN * 1024
WORK_O, BUMP_O, C2_O, C3_O, RDY_O, OWN_O = 0, 4, 8, 12, 16, 20
OOBV = 0x7f000000

def dpp_scan(a, x, op="v_add_u32"):
    for sh in (1, 2, 4, 8):
        a("s_nop 1")
        a(f"{op}_dpp {v(x)}, {v(x)}, {v(x)} row_shr:{sh} row_mask:0xf bank_mask:0xf bound_ctrl:0")
    a("s_nop 1")
    a(f"{op}_dpp {v(x)}, {v(x)}, {v(x)} row_bcast:15 row_mask:0xa bank_mask:0xf")
    a("s_nop 1")
    a(f"{op}_dpp {v(x)}, {v(x)}, {v(x)} row_bcast:31 row_mask:0xc bank_mask:0xf")
    a("s_nop 1")

def spin(a, off, target, lbl, vt=7, st_="s69"):
    a(f"v_mov_b32 v{vt}, {MISC_L + off}")
    a.label(lbl)
    a(f"ds_read_b32 v1, v{vt}")
    a("s_waitcnt lgkmcnt(0)")
    a(f"v_readfirstlane_b32 {st_}, v1")
    a(f"s_cmp_ge_u32 {st_}, {target}")
    a(f"s_cbranch_scc0 {lbl}")
def signal(a, off, vt=7):
    a("s_waitcnt lgkmcnt(0)")
    a("s_mov_b64 exec, 1")
    a(f"v_mov_b32 v{vt}, {MISC_L + off}")
    a("v_mov_b32 v1, 1")
    a(f"ds_add_u32 v{vt}, v1")
    a("s_mov_b64 exec, -1")

def k2w(a, opt):
    TAB, SV, OUT, REC, CNT, WR = 40, 44, 48, 52, 56, 60
    ost = opt.get('out_store_flags', '')
    sres = opt.get('sres_flags', '')
    a(f"s_cmp_ge_u32 s2, {K2_NWG}")
    a("s_cbranch_scc1 L_k2_exit")
    stamp_begin(a, opt)
    load_kernargs(a)
    a("v_lshrrev_b32 v1, 6, v0")
    a("v_and_b32 v2, 63, v0")
    a("s_and_b32 s65, s2, 7")
    a("s_lshr_b32 s66, s2, 3")
    a(f"s_mul_i32 s67, s66, {RNG}")
    a(f"s_sub_u32 s68, {N}, s67")
    a(f"s_min_u32 s68, s68, {RNG}")
    a("v_lshlrev_b32 v5, 2, v0")
    a("v_mov_b32 v6, 0")
    a("v_cmp_gt_u32 vcc, 320, v0")
    a("s_and_saveexec_b64 s[70:71], vcc")
    a(f"ds_write_b32 v5, v6 offset:{CNT_L}")
    a("s_mov_b64 exec, s[70:71]")
    a("v_cmp_gt_u32 vcc, 32, v0")
    a("s_and_saveexec_b64 s[70:71], vcc")
    a(f"ds_write_b32 v5, v6 offset:{BKT_L}")
    a("s_mov_b64 exec, s[70:71]")
    a("s_waitcnt lgkmcnt(0)")
    a("v_readfirstlane_b32 s64, v1")
    srd(a, REC, P_WS, REC_SIZE, REC_OFF)
    srd(a, CNT, P_WS, CNT_SIZE, CNT_OFF)
    a("v_lshlrev_b32 v4, 8, v2")
    a("s_lshl_b32 s69, s66, 2")
    a(f"buffer_load_dword v13, v4, {s(CNT,4)}, s69 offen")
    a("s_cmp_ge_u32 s64, 8")
    a("s_cbranch_scc1 L_k2_norec")
    a("s_lshl_b32 s69, s66, 10")
    a("v_add_u32 v3, s69, v0")
    a(f"v_mul_u32_u24 v3, {RECB}, v3")
    a(f"buffer_load_dwordx4 v[8:11], v3, {s(REC,4)}, 0 offen")
    a(f"buffer_load_dword v12, v3, {s(REC,4)}, 0 offen offset:16")
    a(f"v_add_u32 v3, {512*RECB}, v3")
    a(f"buffer_load_dwordx4 v[16:19], v3, {s(REC,4)}, 0 offen")
    a(f"buffer_load_dword v20, v3, {s(REC,4)}, 0 offen offset:16")
    a.label("L_k2_norec")
    a(f"s_mul_i32 s69, s65, {SLICEB}")
    a(f"s_add_u32 s{TAB}, s{P_WS}, s69")
    a(f"s_addc_u32 s{TAB+1}, s{P_WS+1}, 0")
    if TAB_OFF:
        a(f"s_add_u32 s{TAB}, s{TAB}, {TAB_OFF}")
        a(f"s_addc_u32 s{TAB+1}, s{TAB+1}, 0")
    a(f"s_mov_b32 s{TAB+2}, {SLICEB}")
    a(f"s_mov_b32 s{TAB+3}, 0x00020000")
    srd(a, SV, P_SV, N * 2048)
    srd(a, OUT, P_OUT, N * 2048)
    srd(a, WR, P_WR, 4 * 1536)
    a("s_barrier")
    def total():
        a("v_mov_b32 v14, v13")
        for sh in (1, 2, 4, 8):
            a("s_nop 1")
            a(f"v_add_u32_dpp v14, v14, v14 row_shr:{sh} row_mask:0xf bank_mask:0xf bound_ctrl:0")
        a("s_nop 1")
        a("v_readlane_b32 s72, v14, 15")
        a("v_readlane_b32 s73, v14, 31")
        a("v_readlane_b32 s74, v14, 47")
        a("s_add_u32 s72, s72, s73")
        a("s_add_u32 s72, s72, s74")
    a("s_cmp_ge_u32 s64, 8")
    a("s_cbranch_scc0 L_k2_sorter")
    a("s_cmp_eq_u32 s64, 8")
    a("s_cbranch_scc0 L_k2_now")
    vWraw = 64
    a("v_and_b32 v7, 7, v2")
    a("v_lshlrev_b32 v7, 3, v7")
    a("s_lshl_b32 s69, s65, 6")
    a("v_add_u32 v7, s69, v7")
    a("s_movk_i32 s69, 3072")
    for k in range(4):
        for p in range(3):
            off = k*1536 + p*512
            if off < 3072:
                a(f"buffer_load_dwordx2 {v(vWraw+(k*3+p)*2,2)}, v7, {s(WR,4)}, 0 offen offset:{off}")
            else:
                a(f"buffer_load_dwordx2 {v(vWraw+(k*3+p)*2,2)}, v7, {s(WR,4)}, s69 offen offset:{off-3072}")
    a("s_waitcnt vmcnt(0)")
    vW = 96
    a("s_mov_b32 s70, 0x05040100")
    a("s_mov_b32 s71, 0x07060302")
    for p in range(3):
        for ch in range(4):
            d = ch >> 1
            sel = "s70" if (ch & 1) == 0 else "s71"
            for h in range(2):
                r0 = vWraw + ((2*h)*3+p)*2 + d; r1 = vWraw + ((2*h+1)*3+p)*2 + d
                a(f"v_perm_b32 {v(vW+(p*4+ch)*2+h)}, {v(r1)}, {v(r0)}, {sel}")
    a("v_and_b32 v7, 7, v2")
    a("v_mul_u32_u24 v7, 96, v7")
    a("v_cmp_gt_u32 vcc, 8, v2")
    a("s_and_saveexec_b64 s[70:71], vcc")
    for q in range(6):
        a(f"ds_write_b128 v7, {v(vW+4*q,4)} offset:{WPK_L + 16*q}")
    a("s_mov_b64 exec, 1")
    a(f"v_mov_b32 v40, {OOBV}")
    for r in (41, 42, 43, 44, 45): a(f"v_mov_b32 v{r}, 0")
    a(f"v_mov_b32 v7, {NULL_L}")
    a("ds_write_b128 v7, v[40:43]")
    a("ds_write_b64 v7, v[44:45] offset:16")
    a("s_mov_b64 exec, -1")
    signal(a, RDY_O)
    a.label("L_k2_now")
    a("v_lshlrev_b32 v6, 4, v2")
    a(f"s_mul_i32 s70, s67, {ROWB}")
    a("s_sub_u32 s69, s64, 8")
    a("s_lshl_b32 s69, s69, 10")
    if opt.get('exp_k2_nodma'): a("s_branch L_k2_dmaskip")
    a.label("L_k2_dmaloop")
    a(f"s_add_u32 s71, s69, {OWN_L}")
    a("s_mov_b32 m0, s71")
    a("s_add_u32 s71, s70, s69")
    a(f"buffer_load_dwordx4 v6, {s(TAB,4)}, s71 offen lds")
    a("s_add_u32 s69, s69, 8192")
    a(f"s_cmp_lt_u32 s69, {NOWN*1024}")
    a("s_cbranch_scc1 L_k2_dmaloop")
    a.label("L_k2_dmaskip")
    a("s_waitcnt vmcnt(0)")
    st(a, opt, 0)
    total()
    signal(a, OWN_O)
    spin(a, RDY_O, 9, "L_k2_sp_rdy")
    st(a, opt, 2)
    a("s_waitcnt lgkmcnt(0)")
    a(f"s_cmp_gt_u32 s72, {HOTCAP}")
    a("s_cbranch_scc1 L_k2_slow")
    a("s_branch L_k2_main")
    a.label("L_k2_sorter")
    a("s_waitcnt vmcnt(0)")
    st(a, opt, 0)
    total()
    if opt.get('stamps'): a("s_waitcnt lgkmcnt(0)")
    a(f"s_cmp_gt_u32 s72, {HOTCAP}")
    a("s_cbranch_scc0 L_k2_sort")
    signal(a, RDY_O)
    spin(a, RDY_O, 9, "L_k2_sp_rdy2")
    a("s_branch L_k2_slow")
    a.label("L_k2_sort")
    a("v_lshrrev_b32 v14, 14, v8")
    a("v_lshrrev_b32 v15, 14, v16")
    a("v_lshlrev_b32 v30, 2, v14")
    a("v_lshlrev_b32 v31, 2, v15")
    a("v_mov_b32 v21, 1")
    a("v_mov_b32 v22, 1")
    a("v_add_u32 v23, 512, v0")
    a("v_cmp_gt_u32 s[76:77], s72, v0")
    a("v_cmp_gt_u32 s[78:79], s72, v23")
    a("s_mov_b64 exec, s[76:77]")
    a(f"ds_add_rtn_u32 v21, v30, v21 offset:{CNT_L}")
    a("s_mov_b64 exec, s[78:79]")
    a(f"ds_add_rtn_u32 v22, v31, v22 offset:{CNT_L}")
    a("s_mov_b64 exec, -1")
    for (raw, last, dst) in ((8, 12, 32), (16, 20, 40)):
        a(f"v_and_b32 v{dst}, 0x3fff, v{raw}")
        a(f"v_mul_u32_u24 v{dst}, {ROWB}, v{dst}")
        a(f"v_mov_b32 v{dst+1}, v{raw+1}")
        a(f"v_mov_b32 v{dst+2}, v{raw+2}")
        a(f"v_lshlrev_b32 v{dst+3}, 16, v{raw+3}")
        a(f"v_and_b32 v{dst+4}, 0xffff0000, v{raw+3}")
        a(f"v_lshlrev_b32 v{dst+5}, 16, v{last}")
    signal(a, C2_O)
    spin(a, C2_O, 8, "L_k2_sp_c2")
    st(a, opt, 1)
    a("s_waitcnt lgkmcnt(0)")
    a("s_cmp_lt_u32 s64, 5")
    a("s_cbranch_scc0 L_k2_nonode")
    a(f"ds_read_b32 v26, v5 offset:{CNT_L}")
    a("v_cmp_gt_u32 s[80:81], s68, v0")
    a("s_waitcnt lgkmcnt(0)")
    a("v_cndmask_b32 v26, 0, v26, s[80:81]")
    a("v_mov_b32 v27, v26")
    dpp_scan(a, 27)
    a("v_readlane_b32 s82, v27, 63")
    a("s_mov_b64 exec, 1")
    a(f"v_mov_b32 v28, {MISC_L+BUMP_O}")
    a("v_mov_b32 v29, s82")
    a("ds_add_rtn_u32 v29, v28, v29")
    a("s_mov_b64 exec, -1")
    a("v_min_u32 v48, 15, v26")
    a("v_sub_u32 v48, 15, v48")
    a("v_lshlrev_b32 v49, 2, v48")
    a("v_mov_b32 v50, 1")
    a("s_mov_b64 exec, s[80:81]")
    a(f"ds_add_rtn_u32 v50, v49, v50 offset:{BKT_L}")
    a("s_mov_b64 exec, -1")
    a("s_waitcnt lgkmcnt(0)")
    a("v_readfirstlane_b32 s82, v29")
    a("v_sub_u32 v27, v27, v26")
    a("v_add_u32 v27, s82, v27")
    a("s_mov_b64 exec, s[80:81]")
    a(f"ds_write_b32 v5, v27 offset:{START_L}")
    a("s_mov_b64 exec, -1")
    a.label("L_k2_nonode")
    signal(a, C3_O)
    spin(a, C3_O, 8, "L_k2_sp_c3")
    a("s_cmp_lt_u32 s64, 5")
    a("s_cbranch_scc0 L_k2_noord")
    a("v_lshlrev_b32 v51, 2, v2")
    a(f"ds_read_b32 v51, v51 offset:{BKT_L}")
    a("s_waitcnt lgkmcnt(0)")
    a("v_mov_b32 v52, v51")
    for sh in (1, 2, 4, 8):
        a("s_nop 1")
        a(f"v_add_u32_dpp v52, v52, v52 row_shr:{sh} row_mask:0xf bank_mask:0xf bound_ctrl:0")
    a("s_nop 1")
    a("v_sub_u32 v52, v52, v51")
    a("ds_bpermute_b32 v52, v49, v52")
    a("s_waitcnt lgkmcnt(0)")
    a("v_add_u32 v52, v52, v50")
    a("v_lshlrev_b32 v52, 2, v52")
    a("s_mov_b64 exec, s[80:81]")
    a(f"ds_write_b32 v52, v0 offset:{ORDER_L}")
    a("s_mov_b64 exec, -1")
    a.label("L_k2_noord")
    a(f"ds_read_b32 v53, v30 offset:{START_L}")
    a(f"ds_read_b32 v54, v31 offset:{START_L}")
    a("s_waitcnt lgkmcnt(0)")
    a("v_add_u32 v53, v53, v21")
    a("v_add_u32 v54, v54, v22")
    a("v_lshlrev_b32 v53, 5, v53")
    a("v_lshlrev_b32 v54, 5, v54")
    a("s_mov_b64 exec, s[76:77]")
    a(f"ds_write_b128 v53, v[32:35] offset:{REC_L}")
    a(f"ds_write_b64 v53, v[36:37] offset:{REC_L+16}")
    a("s_mov_b64 exec, s[78:79]")
    a(f"ds_write_b128 v54, v[40:43] offset:{REC_L}")
    a(f"ds_write_b64 v54, v[44:45] offset:{REC_L+16}")
    a("s_mov_b64 exec, -1")
    signal(a, RDY_O)
    spin(a, RDY_O, 9, "L_k2_sp_rdy3")
    st(a, opt, 2)
    a("s_waitcnt lgkmcnt(0)")
    a.label("L_k2_main")

    vW = 96
    vAcc = 8; vRawA = 24; vRawB = 36; vRA = 48; vRB = 56
    vWf = 64; vU = 120
    vJ16 = 3; vSb = 4; vDeg = 5; vOV = 6; vRes = 76; vT = 78; vOwn = 7; vE = 80; vAd = 81
    def load_w():
        a("v_and_b32 v7, 7, v2")
        a("v_mul_u32_u24 v7, 96, v7")
        for q in range(6):
            a(f"ds_read_b128 {v(vW+4*q,4)}, v7 offset:{WPK_L + 16*q}")
        a("v_and_b32 v3, 7, v2")
        a("v_lshlrev_b32 v3, 4, v3")
    def compute(R, RC):
        for p in range(3):
            for ch in range(4):
                a(f"v_dot2_f32_bf16 {v(vWf+p*4+ch)}, {v(vW+(p*4+ch)*2+1)}, {v(RC+2)}, 0")
        for p in range(3):
            for ch in range(4):
                a(f"v_dot2_f32_bf16 {v(vWf+p*4+ch)}, {v(vW+(p*4+ch)*2)}, {v(RC+1)}, {v(vWf+p*4+ch)}")
        for d in range(2):
            a(f"v_lshlrev_b32 {v(vU)}, 16, {v(R+d)}")
            a(f"v_and_b32 {v(vU+1)}, 0xffff0000, {v(R+d)}")
            a(f"v_fmac_f32 {v(vAcc+2*d)}, {v(vU)}, {v(vWf+2*d)}")
            a(f"v_fmac_f32 {v(vAcc+2*d+1)}, {v(vU+1)}, {v(vWf+2*d+1)}")
        for p in (1, 2):
            for d in range(2):
                a(f"v_lshlrev_b32 {v(vU+2)}, 16, {v(R+2*p+d)}")
                a(f"v_and_b32 {v(vU+3)}, 0xffff0000, {v(R+2*p+d)}")
                a(f"v_mul_f32 {v(vWf+p*4+2*d)}, {v(vU+2)}, {v(vWf+p*4+2*d)}")
                a(f"v_mul_f32 {v(vWf+p*4+2*d+1)}, {v(vU+3)}, {v(vWf+p*4+2*d+1)}")
        for j in range(3):
            for d in range(2):
                a(f"v_lshlrev_b32 {v(vU+4)}, 16, {v(R+6+2*j+d)}")
                a(f"v_and_b32 {v(vU+5)}, 0xffff0000, {v(R+6+2*j+d)}")
                A = vAcc + 4 + j*4 + 2*d
                a(f"v_fmac_f32 {v(A)}, {v(vU+4)}, {v(vWf+4+2*d)}")
                a(f"v_fmac_f32 {v(A+1)}, {v(vU+5)}, {v(vWf+4+2*d+1)}")
                a(f"v_fmac_f32 {v(A)}, {v(RC+3+j)}, {v(vWf+8+2*d)}")
                a(f"v_fmac_f32 {v(A+1)}, {v(RC+3+j)}, {v(vWf+8+2*d+1)}")
    def issue_rows(R, RC):
        a(f"v_add_u32 {v(vAd)}, {v(RC)}, {v(vJ16)}")
        for q in range(3):
            a(f"buffer_load_dwordx4 {v(R+4*q,4)}, {v(vAd)}, {s(TAB,4)}, 0 offen offset:{q*128}")
    def fetch_rec(RC, e_expr_sgpr):
        a(f"s_lshl_b32 s87, {e_expr_sgpr}, 5")
        a(f"v_add_u32 {v(vAd)}, s87, {v(vSb)}")
        a(f"v_cmp_lt_u32 vcc, {e_expr_sgpr}, {v(vDeg)}")
        a(f"v_mov_b32 {v(vT)}, {NULL_L}")
        a(f"v_cndmask_b32 {v(vAd)}, {v(vT)}, {v(vAd)}, vcc")
        a(f"ds_read_b128 {v(RC,4)}, {v(vAd)}")
        a(f"ds_read_b64 {v(RC+4,2)}, {v(vAd)} offset:16")
        a("s_waitcnt lgkmcnt(0)")
    vRx = 82; vRyz = 84
    def load_residual():
        if opt.get('exp_k2_nos'): return
        a(f"buffer_load_dwordx2 {v(vRes,2)}, {v(vOV)}, {s(SV,4)}, 0 offen {sres}")
    def own_residual(lbl):
        a("s_cmp_lg_u32 s91, 0") if False else None
        a(f"s_cbranch_scc1 {lbl}_ok") if False else None
        a("s_cmp_eq_u32 s75, 1")
        a(f"s_cbranch_scc1 {lbl}_ok")
        spin(a, OWN_O, 8, lbl + "_sp", vt=vT, st_="s75")
        a("s_mov_b32 s75, 1")
        a.label(lbl + "_ok")
        a(f"ds_read_b64 {v(vRx,2)}, {v(vOwn)} offset:136")
        a(f"ds_read_b128 {v(vRyz,4)}, {v(vOwn)} offset:256")
        a("s_waitcnt lgkmcnt(0)")
    def zero_acc():
        for r in range(16): a(f"v_mov_b32 {v(vAcc+r)}, 0")
    def finish_store():
        res = [vRes, vRx, vRyz, vRyz + 2]
        for c in range(4):
            for d in range(2):
                U = vU + 2*((2*c+d) & 3)
                a(f"v_lshlrev_b32 {v(U)}, 16, {v(res[c]+d)}")
                a(f"v_and_b32 {v(U+1)}, 0xffff0000, {v(res[c]+d)}")
                a(f"v_add_f32 {v(vAcc+4*c+2*d)}, {v(vAcc+4*c+2*d)}, {v(U)}")
                a(f"v_add_f32 {v(vAcc+4*c+2*d+1)}, {v(vAcc+4*c+2*d+1)}, {v(U+1)}")
        for c in range(4):
            for d in range(2):
                a(f"v_cvt_pk_bf16_f32 {v(vWf+2*c+d)}, {v(vAcc+c*4+2*d)}, {v(vAcc+c*4+2*d+1)}")
        for c in range(4):
            if opt.get('exp_k2_nostore'): continue
            a(f"buffer_store_dwordx2 {v(vWf+2*c,2)}, {v(vOV)}, {s(OUT,4)}, 0 offen offset:{c*512} {ost}")

    load_w()
    a("s_mov_b32 s75, 0")
    a.label("L_k2_next")
    a("s_mov_b64 exec, 1")
    a(f"v_mov_b32 {v(vT)}, {MISC_L}")
    a(f"v_mov_b32 {v(vU)}, 1")
    a(f"ds_add_rtn_u32 {v(vT)}, {v(vT)}, {v(vU)}")
    a("s_waitcnt lgkmcnt(0)")
    a(f"v_readfirstlane_b32 s80, {v(vT)}")
    a("s_mov_b64 exec, -1")
    a("s_lshl_b32 s80, s80, 3")
    a("s_cmp_ge_u32 s80, s68")
    a("s_cbranch_scc1 L_k2_exit")
    a(f"v_lshrrev_b32 {v(vT)}, 3, v2")
    a(f"v_add_u32 {v(vT)}, s80, {v(vT)}")
    a(f"v_cmp_gt_u32 s[82:83], s68, {v(vT)}")
    a(f"v_lshlrev_b32 {v(vT+1)}, 2, {v(vT)}")
    a(f"ds_read_b32 {v(vT+1)}, {v(vT+1)} offset:{ORDER_L}")
    a("s_waitcnt lgkmcnt(0)")
    a(f"v_cndmask_b32 {v(vT+1)}, 0, {v(vT+1)}, s[82:83]")
    a(f"v_lshlrev_b32 {v(vT)}, 2, {v(vT+1)}")
    a(f"ds_read_b32 {v(vDeg)}, {v(vT)} offset:{CNT_L}")
    a(f"ds_read_b32 {v(vSb)}, {v(vT)} offset:{START_L}")
    a(f"v_add_u32 {v(vOV)}, s67, {v(vT+1)}")
    a(f"v_lshlrev_b32 {v(vOV)}, 11, {v(vOV)}")
    a(f"v_lshrrev_b32 {v(vT)}, 1, {v(vJ16)}")
    a(f"v_add_u32 {v(vOV)}, {v(vOV)}, {v(vT)}")
    a("s_lshl_b32 s84, s65, 6")
    a(f"v_add_u32 {v(vOV)}, s84, {v(vOV)}")
    a(f"v_mov_b32 {v(vT)}, {OOBV}")
    a(f"v_cndmask_b32 {v(vOV)}, {v(vT)}, {v(vOV)}, s[82:83]")
    a(f"v_mul_u32_u24 {v(vOwn)}, {ROWB}, {v(vT+1)}")
    a(f"v_add_u32 {v(vOwn)}, {v(vOwn)}, {v(vJ16)}")
    a(f"v_add_u32 {v(vOwn)}, {OWN_L}, {v(vOwn)}")
    load_residual()
    a("s_waitcnt lgkmcnt(0)")
    a(f"v_cndmask_b32 {v(vDeg)}, 0, {v(vDeg)}, s[82:83]")
    a(f"v_lshlrev_b32 {v(vSb)}, 5, {v(vSb)}")
    a(f"v_add_u32 {v(vSb)}, {REC_L}, {v(vSb)}")
    a(f"v_mov_b32 {v(vT)}, {v(vDeg)}")
    for sh in (8,):
        a("s_nop 1")
        a(f"v_max_u32_dpp {v(vT)}, {v(vT)}, {v(vT)} row_shr:8 row_mask:0xf bank_mask:0xf bound_ctrl:0")
    a("s_nop 1")
    a(f"v_readlane_b32 s85, {v(vT)}, 15")
    a(f"v_readlane_b32 s86, {v(vT)}, 31")
    a("s_max_u32 s85, s85, s86")
    a(f"v_readlane_b32 s86, {v(vT)}, 47")
    a("s_max_u32 s85, s85, s86")
    a(f"v_readlane_b32 s86, {v(vT)}, 63")
    a("s_max_u32 s85, s85, s86")
    if opt.get('exp_k2_noedge'): a("s_mov_b32 s85, 0")
    a("s_cmp_eq_u32 s85, 0")
    a("s_cbranch_scc1 L_k2_noedge")
    a("s_mov_b32 s88, 0")
    fetch_rec(vRA, "s88")
    issue_rows(vRawA, vRA)
    a("s_cmp_gt_u32 s85, 1")
    a("s_cbranch_scc0 L_k2_one")
    a("s_mov_b32 s88, 1")
    fetch_rec(vRB, "s88")
    issue_rows(vRawB, vRB)
    a.label("L_k2_one")
    zero_acc()
    a("s_mov_b32 s89, 0")
    a.label("L_k2_loop")
    for bufi, (R, RC) in enumerate(((vRawA, vRA), (vRawB, vRB))):
        a("s_add_u32 s88, s89, 1")
        a("s_cmp_lt_u32 s88, s85")
        a(f"s_cbranch_scc1 L_k2_w3_{bufi}")
        a("s_waitcnt vmcnt(0)")
        a(f"s_branch L_k2_wd_{bufi}")
        a.label(f"L_k2_w3_{bufi}")
        a("s_waitcnt vmcnt(3)")
        a.label(f"L_k2_wd_{bufi}")
        compute(R, RC)
        a("s_add_u32 s88, s89, 2")
        a("s_cmp_lt_u32 s88, s85")
        a(f"s_cbranch_scc0 L_k2_ni_{bufi}")
        fetch_rec(RC, "s88")
        issue_rows(R, RC)
        a.label(f"L_k2_ni_{bufi}")
        a("s_add_u32 s89, s89, 1")
        a("s_cmp_lt_u32 s89, s85")
        if bufi == 0:
            a("s_cbranch_scc0 L_k2_fin")
        else:
            a("s_cbranch_scc1 L_k2_loop")
    a("s_branch L_k2_fin")
    a.label("L_k2_noedge")
    zero_acc()
    a("s_waitcnt vmcnt(0)")
    a.label("L_k2_fin")
    own_residual("L_k2_own1")
    finish_store()
    a("s_branch L_k2_next")

    a.label("L_k2_slow")
    load_w()
    a("s_mov_b32 s75, 0")
    a("s_mov_b32 s80, s64")
    a.label("L_k2_snext")
    a("s_cmp_ge_u32 s80, s68")
    a("s_cbranch_scc1 L_k2_exit")
    a("s_add_u32 s81, s67, s80")
    a("s_lshl_b32 s81, s81, 11")
    a("s_lshl_b32 s84, s65, 6")
    a("s_add_u32 s81, s81, s84")
    a(f"v_lshrrev_b32 {v(vT)}, 1, {v(vJ16)}")
    a(f"v_add_u32 {v(vOV)}, s81, {v(vT)}")
    a(f"s_mul_i32 s81, s80, {ROWB}")
    a(f"s_add_u32 s81, s81, {OWN_L}")
    a(f"v_add_u32 {v(vOwn)}, s81, {v(vJ16)}")
    load_residual()
    zero_acc()
    a("s_mov_b32 s85, 0")
    a(f"s_mul_i32 s90, s66, {COLD_BIN}")
    a(f"s_add_u32 s90, s90, {HOT_SIZE}")
    a("s_lshl_b32 s91, s66, 10")
    a.label("L_k2_sscan")
    a("s_cmp_ge_u32 s85, s72")
    a("s_cbranch_scc1 L_k2_sfin")
    a(f"v_add_u32 {v(vT)}, s85, v2")
    a(f"v_add_u32 {v(vT+1)}, s91, {v(vT)}")
    a(f"v_mul_u32_u24 {v(vT+1)}, {RECB}, {v(vT+1)}")
    a(f"v_mul_u32_u24 {v(vE)}, {RECB}, {v(vT)}")
    a(f"v_add_u32 {v(vE)}, s90, {v(vE)}")
    a(f"v_cmp_gt_u32 vcc, {HOTCAP}, {v(vT)}")
    a("s_nop 1")
    a(f"v_cndmask_b32 {v(vE)}, {v(vE)}, {v(vT+1)}, vcc")
    a(f"buffer_load_dword {v(vT+1)}, {v(vE)}, {s(REC,4)}, 0 offen")
    a("s_waitcnt vmcnt(0)")
    a(f"v_lshrrev_b32 {v(vT+1)}, 14, {v(vT+1)}")
    a(f"v_cmp_eq_u32 vcc, s80, {v(vT+1)}")
    a(f"v_cmp_gt_u32 s[92:93], s72, {v(vT)}")
    a("s_and_b64 s[92:93], s[92:93], vcc")
    a.label("L_k2_smatch")
    a("s_cmp_eq_u64 s[92:93], 0")
    a("s_cbranch_scc1 L_k2_sadv")
    a("s_ff1_i32_b64 s94, s[92:93]")
    a("s_bitset0_b64 s[92:93], s94")
    a(f"v_readlane_b32 s95, {v(vE)}, s94")
    a("s_nop 3")
    a(f"v_mov_b32 {v(vT)}, s95")
    a(f"buffer_load_dwordx4 {v(vRA,4)}, {v(vT)}, {s(REC,4)}, 0 offen")
    a(f"buffer_load_dword {v(vRA+5)}, {v(vT)}, {s(REC,4)}, 0 offen offset:16")
    a("s_waitcnt vmcnt(0)")
    a(f"v_and_b32 {v(vRA)}, 0x3fff, {v(vRA)}")
    a(f"v_mul_u32_u24 {v(vRA)}, {ROWB}, {v(vRA)}")
    a(f"v_and_b32 {v(vRA+4)}, 0xffff0000, {v(vRA+3)}")
    a(f"v_lshlrev_b32 {v(vRA+3)}, 16, {v(vRA+3)}")
    a(f"v_lshlrev_b32 {v(vRA+5)}, 16, {v(vRA+5)}")
    issue_rows(vRawA, vRA)
    a("s_waitcnt vmcnt(0)")
    compute(vRawA, vRA)
    a("s_branch L_k2_smatch")
    a.label("L_k2_sadv")
    a("s_add_u32 s85, s85, 64")
    a("s_branch L_k2_sscan")
    a.label("L_k2_sfin")
    a("s_waitcnt vmcnt(0)")
    own_residual("L_k2_own2")
    a("s_mov_b64 exec, 0xff")
    finish_store()
    a("s_mov_b64 exec, -1")
    a("s_add_u32 s80, s80, 16")
    a("s_branch L_k2_snext")
    a.label("L_k2_exit")
    if opt.get('stamps'):
        a(f"s_cmp_ge_u32 s2, {K2_NWG}")
        a("s_cbranch_scc1 L_k2_exit2")
        stamp_end(a, opt, 1, 'k2')
        a.label("L_k2_exit2")
    a("s_endpgm")
```

```python
from asmlib import *
from k1 import *

K2_NWG = 250
NPW = 40
CAP = 24
SLOTB = 32
CTR_LDS = 0
WORK_LDS = 256
OVF_LDS = 260
SLOT_LDS = 512
RES_LDS = 31744
K2_LDS = RES_LDS + NPW * 2048

def k2x(a, opt):
    SV, PHI, OUT, REC, CNT, WR = 40, 44, 48, 52, 56, 60
    ost = opt.get('out_store_flags', '')
    a(f"s_cmp_ge_u32 s2, {K2_NWG}")
    a("s_cbranch_scc1 L_k2_exit")
    stamp_begin(a, opt)
    load_kernargs(a)
    a("v_lshrrev_b32 v1, 6, v0")
    a("v_and_b32 v2, 63, v0")
    a("s_lshr_b32 s65, s2, 2")
    a("s_and_b32 s66, s2, 3")
    a("s_mul_i32 s66, s66, 40")
    a("s_mul_i32 s67, s2, 40")
    a("s_waitcnt lgkmcnt(0)")
    a("v_readfirstlane_b32 s64, v1")
    srd(a, SV, P_SV, N * 2048)
    srd(a, PHI, P_WS, PHI_SIZE, PHI_OFF)
    srd(a, OUT, P_OUT, N * 2048)
    srd(a, REC, P_WS, REC_SIZE, REC_OFF)
    srd(a, CNT, P_WS, CNT_SIZE, CNT_OFF)
    srd(a, WR, P_WR, 4 * 1536)
    a("s_lshl_b32 s68, s65, 10")
    a("v_add_u32 v3, s68, v0")
    a(f"v_mul_u32_u24 v3, {RECB}, v3")
    a(f"buffer_load_dwordx4 v[8:11], v3, {s(REC,4)}, 0 offen")
    a(f"buffer_load_dword v12, v3, {s(REC,4)}, 0 offen offset:16")
    a("v_lshlrev_b32 v4, 8, v2")
    a("s_lshl_b32 s68, s65, 2")
    a(f"buffer_load_dword v13, v4, {s(CNT,4)}, s68 offen")
    vWraw = 64
    a("v_lshlrev_b32 v5, 3, v2")
    for k in range(4):
        for p in range(3):
            a(f"buffer_load_dwordx2 {v(vWraw+(k*3+p)*2,2)}, v5, {s(WR,4)}, 0 offen offset:{k*1536+p*512}" if k*1536+p*512 < 4096 else
              f"buffer_load_dwordx2 {v(vWraw+(k*3+p)*2,2)}, v5, {s(WR,4)}, s69 offen offset:{k*1536+p*512-4096}") if False else None
    a("s_movk_i32 s69, 3072")
    for k in range(4):
        for p in range(3):
            off = k*1536 + p*512
            if off < 3072:
                a(f"buffer_load_dwordx2 {v(vWraw+(k*3+p)*2,2)}, v5, {s(WR,4)}, 0 offen offset:{off}")
            else:
                a(f"buffer_load_dwordx2 {v(vWraw+(k*3+p)*2,2)}, v5, {s(WR,4)}, s69 offen offset:{off-3072}")
    a("v_lshlrev_b32 v6, 4, v2")
    a("s_lshl_b32 s70, s67, 11")
    for i in range(5):
        a("s_mul_i32 s68, s64, 5120")
        a(f"s_add_u32 s68, s68, {i*1024}")
        a(f"s_add_u32 s71, s68, {RES_LDS}")
        a("s_mov_b32 m0, s71")
        a("s_add_u32 s71, s70, s68")
        a(f"buffer_load_dwordx4 v6, {s(SV,4)}, s71 offen {opt.get('res_flags','')} lds")
    a("s_cmp_eq_u32 s64, 0")
    a("s_cbranch_scc0 L_k2_nozero")
    a("v_mov_b32 v7, 0")
    a("v_lshlrev_b32 v14, 2, v2")
    a(f"ds_write_b32 v14, v7 offset:{CTR_LDS}")
    a(f"v_mov_b32 v14, {WORK_LDS}")
    a("ds_write_b32 v14, v7")
    a("ds_write_b32 v14, v7 offset:4")
    a("ds_write_b32 v14, v7 offset:8")
    a("ds_write_b32 v14, v7 offset:12")
    a("s_waitcnt lgkmcnt(0)")
    a.label("L_k2_nozero")
    a("s_barrier")
    a("s_waitcnt vmcnt(17)")
    st(a, opt, 0)
    a("s_waitcnt lgkmcnt(0)")
    a("v_add_u32_dpp v13, v13, v13 row_shr:1 row_mask:0xf bank_mask:0xf bound_ctrl:0" if False else "s_nop 1")
    a("v_mov_b32 v14, v13")
    a("s_nop 1")
    a("v_add_u32_dpp v14, v14, v14 row_shr:1 row_mask:0xf bank_mask:0xf bound_ctrl:0")
    a("s_nop 1")
    a("v_add_u32_dpp v14, v14, v14 row_shr:2 row_mask:0xf bank_mask:0xf bound_ctrl:0")
    a("s_nop 1")
    a("v_add_u32_dpp v14, v14, v14 row_shr:4 row_mask:0xf bank_mask:0xf bound_ctrl:0")
    a("s_nop 1")
    a("v_add_u32_dpp v14, v14, v14 row_shr:8 row_mask:0xf bank_mask:0xf bound_ctrl:0")
    a("s_nop 1")
    a("v_readlane_b32 s72, v14, 15")
    a("v_readlane_b32 s73, v14, 31")
    a("v_readlane_b32 s74, v14, 47")
    a("s_add_u32 s72, s72, s73")
    a("s_add_u32 s72, s72, s74")
    a("v_lshrrev_b32 v15, 14, v8")
    a("v_subrev_u32 v15, s66, v15")
    a("v_cmp_gt_u32 vcc, s72, v0")
    a("v_cmp_gt_u32 s[74:75], 40, v15")
    a("s_and_b64 vcc, vcc, s[74:75]")
    a("s_and_saveexec_b64 s[76:77], vcc")
    a("s_cbranch_execz L_k2_noins")
    a("v_lshlrev_b32 v16, 2, v15")
    a("v_mov_b32 v17, 1")
    a(f"ds_add_rtn_u32 v17, v16, v17 offset:{CTR_LDS}")
    a("v_and_b32 v20, 0x3fff, v8")
    a("v_mov_b32 v21, v9")
    a("v_mov_b32 v22, v10")
    a("v_lshlrev_b32 v23, 16, v11")
    a("v_and_b32 v24, 0xffff0000, v11")
    a("v_lshlrev_b32 v25, 16, v12")
    a("s_waitcnt lgkmcnt(0)")
    a(f"v_cmp_gt_u32 vcc, {CAP}, v17")
    a(f"v_mul_u32_u24 v18, {CAP}, v15")
    a("v_add_u32 v18, v18, v17")
    a("v_lshlrev_b32 v18, 5, v18")
    a("s_and_saveexec_b64 s[78:79], vcc")
    a(f"ds_write_b128 v18, v[20:23] offset:{SLOT_LDS}")
    a(f"ds_write_b64 v18, v[24:25] offset:{SLOT_LDS+16}")
    a("s_andn2_b64 exec, s[78:79], exec")
    a("s_cbranch_execz L_k2_noovf")
    a(f"v_mov_b32 v18, {OVF_LDS}")
    a("v_mov_b32 v19, 1")
    a("ds_write_b32 v18, v19")
    a.label("L_k2_noovf")
    a.label("L_k2_noins")
    a("s_mov_b64 exec, s[76:77]")
    vW = 96
    a("s_waitcnt vmcnt(5)")
    a("s_mov_b32 s68, 0x05040100")
    a("s_mov_b32 s69, 0x07060302")
    for p in range(3):
        for ch in range(4):
            d = ch >> 1
            sel = "s68" if (ch & 1) == 0 else "s69"
            for h in range(2):
                k0 = 2*h; k1 = 2*h+1
                r0 = vWraw + (k0*3+p)*2 + d; r1 = vWraw + (k1*3+p)*2 + d
                a(f"v_perm_b32 {v(vW+(p*4+ch)*2+h)}, {v(r1)}, {v(r0)}, {sel}")
    st(a, opt, 1)
    a("s_waitcnt vmcnt(0) lgkmcnt(0)")
    a("s_barrier")
    st(a, opt, 2)
    a(f"v_mov_b32 v14, {OVF_LDS}")
    a("ds_read_b32 v14, v14")
    a("s_waitcnt lgkmcnt(0)")
    a("v_readfirstlane_b32 s73, v14")
    a(f"s_cmp_gt_u32 s72, {HOTCAP}")
    a("s_cselect_b32 s74, 1, 0")
    a("s_or_b32 s73, s73, s74")
    a("s_cmp_lg_u32 s73, 0")
    a("s_cbranch_scc1 L_k2_slow")

    vAcc = 8
    vRaw = 24
    vRec = 72
    vWf = 80
    vU = 120
    vLane8 = 5
    vOffP = 6; vOffS = 7
    vTmp = 3

    def init_acc(nodeLdsOffReg):
        a(f"v_add_u32 {v(vTmp)}, {nodeLdsOffReg}, {v(vLane8)}")
        for c in range(4):
            a(f"ds_read_b64 {v(vRaw+2*c,2)}, {v(vTmp)} offset:{RES_LDS + c*512}")
        a("s_waitcnt lgkmcnt(0)")
        for c in range(4):
            for d in range(2):
                a(f"v_lshlrev_b32 {v(vAcc+c*4+2*d)}, 16, {v(vRaw+2*c+d)}")
                a(f"v_and_b32 {v(vAcc+c*4+2*d+1)}, 0xffff0000, {v(vRaw+2*c+d)}")

    def issue_rows(k, srcReg):
        a(f"v_mul_u32_u24 {v(vOffP)}, 1536, {v(srcReg)}")
        a(f"v_add_u32 {v(vOffP)}, {v(vOffP)}, {v(vLane8)}")
        a(f"v_lshl_add_u32 {v(vOffS)}, {v(srcReg)}, 11, {v(vLane8)}")
        R = vRaw + k*12
        for p in range(3):
            a(f"buffer_load_dwordx2 {v(R+2*p,2)}, {v(vOffP)}, {s(PHI,4)}, 0 offen offset:{p*512}")
        for j in range(3):
            a(f"buffer_load_dwordx2 {v(R+6+2*j,2)}, {v(vOffS)}, {s(SV,4)}, 0 offen offset:{512+j*512}")

    def compute(k):
        R = vRaw + k*12
        for p in range(3):
            for ch in range(4):
                a(f"v_dot2_f32_bf16 {v(vWf+p*4+ch)}, {v(vW+(p*4+ch)*2+1)}, {v(vRec+2)}, 0")
        for p in range(3):
            for ch in range(4):
                a(f"v_dot2_f32_bf16 {v(vWf+p*4+ch)}, {v(vW+(p*4+ch)*2)}, {v(vRec+1)}, {v(vWf+p*4+ch)}")
        for d in range(2):
            a(f"v_lshlrev_b32 {v(vU)}, 16, {v(R+d)}")
            a(f"v_and_b32 {v(vU+1)}, 0xffff0000, {v(R+d)}")
            a(f"v_fmac_f32 {v(vAcc+2*d)}, {v(vU)}, {v(vWf+2*d)}")
            a(f"v_fmac_f32 {v(vAcc+2*d+1)}, {v(vU+1)}, {v(vWf+2*d+1)}")
        for p in (1, 2):
            for d in range(2):
                a(f"v_lshlrev_b32 {v(vU)}, 16, {v(R+2*p+d)}")
                a(f"v_and_b32 {v(vU+1)}, 0xffff0000, {v(R+2*p+d)}")
                a(f"v_mul_f32 {v(vWf+p*4+2*d)}, {v(vU)}, {v(vWf+p*4+2*d)}")
                a(f"v_mul_f32 {v(vWf+p*4+2*d+1)}, {v(vU+1)}, {v(vWf+p*4+2*d+1)}")
        for j in range(3):
            for d in range(2):
                a(f"v_lshlrev_b32 {v(vU+2)}, 16, {v(R+6+2*j+d)}")
                a(f"v_and_b32 {v(vU+3)}, 0xffff0000, {v(R+6+2*j+d)}")
                A = vAcc + 4 + j*4 + 2*d
                a(f"v_fmac_f32 {v(A)}, {v(vU+2)}, {v(vWf+4+2*d)}")
                a(f"v_fmac_f32 {v(A+1)}, {v(vU+3)}, {v(vWf+4+2*d+1)}")
                a(f"v_fmac_f32 {v(A)}, {v(vRec+3+j)}, {v(vWf+8+2*d)}")
                a(f"v_fmac_f32 {v(A+1)}, {v(vRec+3+j)}, {v(vWf+8+2*d+1)}")

    def store_node(nodeReg):
        for c in range(4):
            for d in range(2):
                a(f"v_cvt_pk_bf16_f32 {v(vRaw+2*c+d)}, {v(vAcc+c*4+2*d)}, {v(vAcc+c*4+2*d+1)}")
        for c in range(4):
            a(f"buffer_store_dwordx2 {v(vRaw+2*c,2)}, {v(vLane8)}, {s(OUT,4)}, {nodeReg} offen offset:{c*512} {ost}")

    a.label("L_k2_next")
    a("s_mov_b64 exec, 1")
    a(f"v_mov_b32 {v(vTmp)}, {WORK_LDS}")
    a(f"v_mov_b32 {v(vU)}, 1")
    a(f"ds_add_rtn_u32 {v(vTmp)}, {v(vTmp)}, {v(vU)}")
    a("s_waitcnt lgkmcnt(0)")
    a(f"v_readfirstlane_b32 s80, {v(vTmp)}")
    a("s_mov_b64 exec, -1")
    a(f"s_cmp_ge_u32 s80, {NPW}")
    a("s_cbranch_scc1 L_k2_exit")
    a("s_lshl_b32 s81, s80, 2")
    a(f"v_mov_b32 {v(vTmp)}, s81")
    a(f"ds_read_b32 {v(vU)}, {v(vTmp)} offset:{CTR_LDS}")
    a(f"s_mul_i32 s82, s80, {CAP*SLOTB}")
    a("s_lshl_b32 s83, s80, 11")
    a("s_waitcnt lgkmcnt(0)")
    a(f"v_readfirstlane_b32 s84, {v(vU)}")
    a("s_mov_b32 s85, 0")
    init_acc("s83")
    a.label("L_k2_batch")
    a("s_sub_u32 s86, s84, s85")
    a("s_cmp_eq_u32 s86, 0")
    a("s_cbranch_scc1 L_k2_fin")
    a(f"s_lshl_b32 s87, s85, 5")
    a(f"s_add_u32 s87, s87, s82")
    a(f"v_mov_b32 {v(vTmp)}, s87")
    a(f"ds_read2_b32 {v(vU,2)}, {v(vTmp)} offset0:{0} offset1:{8}" .replace("offset0:0 ", "") if False else f"v_add_u32 {v(vTmp)}, {SLOT_LDS}, {v(vTmp)}")
    a(f"ds_read2_b32 {v(vU,2)}, {v(vTmp)} offset0:0 offset1:8")
    a(f"ds_read2_b32 {v(vU+2,2)}, {v(vTmp)} offset0:16 offset1:24")
    a("s_waitcnt lgkmcnt(0)")
    for k in range(4):
        if k > 0:
            a(f"s_cmp_le_u32 s86, {k}")
            a("s_cbranch_scc1 L_k2_issued")
        issue_rows(k, vU+k)
    a.label("L_k2_issued")
    a("s_waitcnt vmcnt(0)")
    for k in range(4):
        if k > 0:
            a(f"s_cmp_le_u32 s86, {k}")
            a("s_cbranch_scc1 L_k2_bdone")
        a(f"ds_read_b128 {v(vRec,4)}, {v(vTmp)} offset:{k*32}")
        a(f"ds_read_b64 {v(vRec+4,2)}, {v(vTmp)} offset:{k*32+16}")
        a("s_waitcnt lgkmcnt(0)")
        compute(k)
    a.label("L_k2_bdone")
    a("s_min_u32 s86, s86, 4")
    a("s_add_u32 s85, s85, s86")
    a("s_branch L_k2_batch")
    a.label("L_k2_fin")
    a("s_add_u32 s88, s67, s80")
    a("s_lshl_b32 s88, s88, 11")
    store_node("s88")
    a("s_branch L_k2_next")

    a.label("L_k2_slow")
    a("s_mov_b32 s80, s64")
    a.label("L_k2_snext")
    a(f"s_cmp_ge_u32 s80, {NPW}")
    a("s_cbranch_scc1 L_k2_exit")
    a("s_lshl_b32 s83, s80, 11")
    init_acc("s83")
    a("s_add_u32 s89, s66, s80")
    a("s_mov_b32 s85, 0")
    a(f"s_mul_i32 s90, s65, {COLD_BIN}")
    a(f"s_add_u32 s90, s90, {HOT_SIZE}")
    a("s_lshl_b32 s91, s65, 10")
    a.label("L_k2_sscan")
    a("s_cmp_ge_u32 s85, s72")
    a("s_cbranch_scc1 L_k2_sfin")
    a(f"v_add_u32 {v(vU)}, s85, v2")
    a(f"v_add_u32 {v(vU+1)}, s91, {v(vU)}")
    a(f"v_mul_u32_u24 {v(vU+1)}, {RECB}, {v(vU+1)}")
    a(f"v_mul_u32_u24 {v(vU+2)}, {RECB}, {v(vU)}")
    a(f"v_add_u32 {v(vU+2)}, s90, {v(vU+2)}")
    a(f"v_cmp_gt_u32 vcc, {HOTCAP}, {v(vU)}")
    a("s_nop 1")
    a(f"v_cndmask_b32 {v(vU+4)}, {v(vU+2)}, {v(vU+1)}, vcc")
    a(f"buffer_load_dword {v(vU+5)}, {v(vU+4)}, {s(REC,4)}, 0 offen")
    a("s_waitcnt vmcnt(0)")
    a(f"v_lshrrev_b32 {v(vU+5)}, 14, {v(vU+5)}")
    a(f"v_cmp_eq_u32 vcc, s89, {v(vU+5)}")
    a(f"v_cmp_gt_u32 s[92:93], s72, {v(vU)}")
    a("s_and_b64 s[92:93], s[92:93], vcc")
    a.label("L_k2_smatch")
    a("s_cmp_eq_u64 s[92:93], 0")
    a("s_cbranch_scc1 L_k2_sadv")
    a("s_ff1_i32_b64 s94, s[92:93]")
    a("s_bitset0_b64 s[92:93], s94")
    a(f"v_readlane_b32 s95, {v(vU+4)}, s94")
    a("s_nop 3")
    a(f"v_mov_b32 {v(vTmp)}, s95")
    a(f"buffer_load_dwordx4 {v(vRec,4)}, {v(vTmp)}, {s(REC,4)}, 0 offen")
    a(f"buffer_load_dword {v(vRec+5)}, {v(vTmp)}, {s(REC,4)}, 0 offen offset:16")
    a("s_waitcnt vmcnt(0)")
    a(f"v_and_b32 {v(vRec)}, 0x3fff, {v(vRec)}")
    a(f"v_and_b32 {v(vRec+4)}, 0xffff0000, {v(vRec+3)}")
    a(f"v_lshlrev_b32 {v(vRec+3)}, 16, {v(vRec+3)}")
    a(f"v_lshlrev_b32 {v(vRec+5)}, 16, {v(vRec+5)}")
    issue_rows(0, vRec)
    a("s_waitcnt vmcnt(0)")
    compute(0)
    a("s_branch L_k2_smatch")
    a.label("L_k2_sadv")
    a("s_add_u32 s85, s85, 64")
    a("s_branch L_k2_sscan")
    a.label("L_k2_sfin")
    a("s_add_u32 s88, s67, s80")
    a("s_lshl_b32 s88, s88, 11")
    store_node("s88")
    a("s_add_u32 s80, s80, 16")
    a("s_branch L_k2_snext")
    a.label("L_k2_exit")
    if opt.get('stamps'):
        a(f"s_cmp_ge_u32 s2, {K2_NWG}")
        a("s_cbranch_scc1 L_k2_exit2")
        stamp_end(a, opt, 1, 'k2')
        a.label("L_k2_exit2")
    a("s_endpgm")
```

```python
import sys
from asmlib import *
import k1, k1edge, k2x, k1w, k2w, k1w2, k2w2
W = (k1.DESIGN == 'W')

HDR = open("standalone__molecular_angular_painn__graph.s.ref").read().split("; Override launch")[0]

def kernel_desc(name, vgpr, sgpr):
    acc = (vgpr + 3)//4*4
    return f""".amdhsa_kernel {name}
  .amdhsa_next_free_vgpr {vgpr}
  .amdhsa_next_free_sgpr {sgpr}
  .amdhsa_accum_offset {acc}
  .amdhsa_group_segment_fixed_size 0
  .amdhsa_kernarg_size 88
  .amdhsa_user_sgpr_count 2
  .amdhsa_user_sgpr_kernarg_segment_ptr 1
  .amdhsa_system_sgpr_workgroup_id_x 1
  .amdhsa_float_denorm_mode_32 3
  .amdhsa_float_denorm_mode_16_64 3
.end_amdhsa_kernel
"""

def gen(opt):
    a = Asm()
    a.raw(HDR.rstrip("\n"))
    ngemm = k1w.NGEMM if W else k1.NGEMM
    k1lds = k1w.K1_LDS if W else k1.K1_LDS
    k2n = k2w.K2_NWG if W else k2x.K2_NWG
    k2m = k2w2 if opt.get('k2v','2') == '2' else k2w
    k2lds = k2m.K2_LDS if W else k2x.K2_LDS
    v2 = W and opt.get('k1v', '2') == '2'
    k1blk = 768 if v2 else 512
    opt['k1blk'] = k1blk
    a.raw(f"; @launch kernel=painn_k1_kernel grid=({k1.NCH + ngemm},1,1) block=({k1blk},1,1) lds={k1lds}")
    a.raw(f"; @launch kernel=painn_k2_kernel grid=({k2n},1,1) block=(1024,1,1) lds={k2lds}")
    a.raw('.amdgcn_target "amdgcn-amd-amdhsa--gfx950"')
    a.raw(".text")
    for name in ("painn_k1_kernel", "painn_k2_kernel"):
        a.raw(f".globl {name}")
        a.raw(".p2align 8")
        a.raw(f".type {name},@function")
        a.label(name)
        if name == "painn_k1_kernel":
            a(f"s_cmp_ge_u32 s2, {k1.NCH + ngemm}")
            a("s_cbranch_scc1 L_k1_exit")
            k1.stamp_begin(a, opt)
            k1.load_kernargs(a)
            a(f"s_cmp_lt_u32 s2, {k1.NCH}")
            a("s_cbranch_scc1 L_k1_edge")
            (k1w2 if v2 else (k1w if W else k1)).gemm_role(a, opt)
            a.label("L_k1_edge")
            k1edge.edge_role(a, opt)
            a.label("L_k1_exit")
            a("s_endpgm")
        else:
            (k2m.k2w if W else k2x.k2x)(a, opt)
    a.raw('.section .rodata,"a"')
    a.raw(".p2align 6")
    a.raw(kernel_desc("painn_k1_kernel", 168 if v2 else 256, 102))
    a.raw(".p2align 6")
    a.raw(kernel_desc("painn_k2_kernel", 128, 102))
    return a.text()

if __name__ == "__main__":
    out = sys.argv[1] if len(sys.argv) > 1 else "standalone__molecular_angular_painn__graph.s"
    opt = {}
    for kv in sys.argv[2:]:
        k, val = kv.split("=", 1); opt[k] = val
    open(out, "w").write(gen(opt))
    print("wrote", out)
```

```python
import sys
from asmlib import *
import k1, k1edge, k2x, k1w, k2w, k1w2, k2w2
W = (k1.DESIGN == 'W')

HDR = open("standalone__molecular_angular_painn__graph.s.ref").read().split("; Override launch")[0]

def kernel_desc(name, vgpr, sgpr):
    acc = (vgpr + 3)//4*4
    return f""".amdhsa_kernel {name}
  .amdhsa_next_free_vgpr {vgpr}
  .amdhsa_next_free_sgpr {sgpr}
  .amdhsa_accum_offset {acc}
  .amdhsa_group_segment_fixed_size 0
  .amdhsa_kernarg_size 88
  .amdhsa_user_sgpr_count 2
  .amdhsa_user_sgpr_kernarg_segment_ptr 1
  .amdhsa_system_sgpr_workgroup_id_x 1
  .amdhsa_float_denorm_mode_32 3
  .amdhsa_float_denorm_mode_16_64 3
.end_amdhsa_kernel
"""

def gen(opt):
    a = Asm()
    a.raw(HDR.rstrip("\n"))
    ngemm = k1w.NGEMM if W else k1.NGEMM
    k1lds = k1w.K1_LDS if W else k1.K1_LDS
    k2n = k2w.K2_NWG if W else k2x.K2_NWG
    k2m = k2w2 if opt.get('k2v','2') == '2' else k2w
    k2lds = k2m.K2_LDS if W else k2x.K2_LDS
    v2 = W and opt.get('k1v', '2') == '2'
    k1blk = 768 if v2 else 512
    opt['k1blk'] = k1blk
    a.raw(f"; @launch kernel=painn_k1_kernel grid=({k1.NCH + ngemm},1,1) block=({k1blk},1,1) lds={k1lds}")
    a.raw(f"; @launch kernel=painn_k2_kernel grid=({k2n},1,1) block=(1024,1,1) lds={k2lds}")
    nempty = int(opt.get('nempty', 0))
    for i in range(nempty):
        a.raw("; @launch kernel=painn_nop_kernel grid=(1,1,1) block=(64,1,1) lds=0")
    a.raw('.amdgcn_target "amdgcn-amd-amdhsa--gfx950"')
    a.raw(".text")
    for name in ("painn_k1_kernel", "painn_k2_kernel"):
        a.raw(f".globl {name}")
        a.raw(".p2align 8")
        a.raw(f".type {name},@function")
        a.label(name)
        if name == "painn_k1_kernel":
            a(f"s_cmp_ge_u32 s2, {k1.NCH + ngemm}")
            a("s_cbranch_scc1 L_k1_exit")
            k1.stamp_begin(a, opt)
            k1.load_kernargs(a)
            a(f"s_cmp_lt_u32 s2, {k1.NCH}")
            a("s_cbranch_scc1 L_k1_edge")
            (k1w2 if v2 else (k1w if W else k1)).gemm_role(a, opt)
            a.label("L_k1_edge")
            k1edge.edge_role(a, opt)
            a.label("L_k1_exit")
            a("s_endpgm")
        else:
            (k2m.k2w if W else k2x.k2x)(a, opt)
    if nempty:
        a.raw(".globl painn_nop_kernel\n.p2align 8\n.type painn_nop_kernel,@function")
        a.label("painn_nop_kernel")
        a("s_endpgm")
    a.raw('.section .rodata,"a"')
    a.raw(".p2align 6")
    a.raw(kernel_desc("painn_k1_kernel", 168 if v2 else 256, 102))
    a.raw(".p2align 6")
    a.raw(kernel_desc("painn_k2_kernel", 128, 102))
    if nempty:
        a.raw(".p2align 6")
        a.raw(kernel_desc("painn_nop_kernel", 8, 16))
    return a.text()

if __name__ == "__main__":
    out = sys.argv[1] if len(sys.argv) > 1 else "standalone__molecular_angular_painn__graph.s"
    opt = {}
    for kv in sys.argv[2:]:
        k, val = kv.split("=", 1); opt[k] = val
    open(out, "w").write(gen(opt))
    print("wrote", out)
```

```python
from asmlib import *
from k1 import *

BINC_LDS = 0
BASE_LDS = 256
LCNT_LDS = 512
LIST_LDS = 1024
POS_LDS = 33792

def rnd2(a, x, y, t):
    a(f"v_cvt_pk_bf16_f32 {v(t)}, {v(x)}, {v(y)}")
    a(f"v_lshlrev_b32 {v(x)}, 16, {v(t)}")
    a(f"v_and_b32 {v(y)}, 0xffff0000, {v(t)}")
def rnd1(a, x, t):
    a(f"v_cvt_pk_bf16_f32 {v(t)}, {v(x)}, {v(x)}")
    a(f"v_lshlrev_b32 {v(x)}, 16, {v(t)}")

def pos_addr(a, dst_addr, dst_sh, node):
    a(f"v_mul_u32_u24 {v(dst_addr)}, 6, {v(node)}")
    a(f"v_and_b32 {v(dst_addr)}, -4, {v(dst_addr)}")
    a(f"v_add_u32 {v(dst_addr)}, {POS_LDS}, {v(dst_addr)}")
    a(f"v_and_b32 {v(dst_sh)}, 1, {v(node)}")
    a(f"v_lshlrev_b32 {v(dst_sh)}, 4, {v(dst_sh)}")

def pos_unpack(a, d0, d1, sh, x, y, z):
    a(f"v_alignbit_b32 {v(d0)}, {v(d1)}, {v(d0)}, {v(sh)}")
    a(f"v_lshrrev_b32 {v(d1)}, {v(sh)}, {v(d1)}")
    a(f"v_lshlrev_b32 {v(x)}, 16, {v(d0)}")
    a(f"v_and_b32 {v(y)}, 0xffff0000, {v(d0)}")
    a(f"v_lshlrev_b32 {v(z)}, 16, {v(d1)}")

def dist(a, p, q, r, d, t):
    for i in range(3):
        a(f"v_sub_f32 {v(r+i)}, {v(p+i)}, {v(q+i)}")
    rnd2(a, r, r+1, t); rnd1(a, r+2, t)
    for i in range(3):
        a(f"v_mul_f32 {v(t+1+i)}, {v(r+i)}, {v(r+i)}")
    rnd2(a, t+1, t+2, t); rnd1(a, t+3, t)
    a(f"v_add_f32 {v(d)}, {v(t+1)}, {v(t+2)}")
    a(f"v_add_f32 {v(d)}, {v(d)}, {v(t+3)}")
    rnd1(a, d, t)
    a(f"v_add_f32 {v(d)}, 0x322bcc77, {v(d)}")
    rnd1(a, d, t)
    a(f"v_sqrt_f32 {v(d)}, {v(d)}")
    a("s_nop 0")
    rnd1(a, d, t)

def edge_role(a, opt):
    SPOS, SSRC, SDST, SDBG, SCNT, SREC = 40, 44, 48, 52, 56, 60
    sW = 64; sF = 66
    a.c("===== EDGE role =====")
    delay(a, opt.get('d_edge'), "L_d_edge")
    a("v_lshrrev_b32 v1, 6, v0")
    a("v_and_b32 v2, 63, v0")
    a("s_waitcnt lgkmcnt(0)")
    a("v_readfirstlane_b32 s64, v1")
    a(f"s_load_dwordx2 s[66:67], s[{P_FRQ}:{P_FRQ+1}], 0")
    srd(a, SPOS, P_POS, N * 6)
    srd(a, SSRC, P_SRC, E * 4)
    srd(a, SDST, P_DST, E * 4)
    srd(a, SDBG, P_DBG, 256)
    srd(a, SCNT, P_WS, CNT_SIZE, CNT_OFF)
    srd(a, SREC, P_WS, REC_SIZE, REC_OFF)
    a(f"s_mul_i32 s65, s2, {CHUNK*4}")
    a("v_lshlrev_b32 v3, 5, v0")
    a("v_add_u32 v3, s65, v3")
    vS, vD = 8, 16
    a("v_cmp_gt_u32 vcc, 500, v0")
    a("s_and_saveexec_b64 s[72:73], vcc")
    a("s_cbranch_execz L_e_noload")
    a(f"buffer_load_dwordx4 v[8:11], v3, {s(SSRC,4)}, 0 offen {opt.get('e_flags','')}")
    a(f"buffer_load_dwordx4 v[12:15], v3, {s(SSRC,4)}, 0 offen offset:16 {opt.get('e_flags','')}")
    a(f"buffer_load_dwordx4 v[16:19], v3, {s(SDST,4)}, 0 offen {opt.get('e_flags','')}")
    a(f"buffer_load_dwordx4 v[20:23], v3, {s(SDST,4)}, 0 offen offset:16 {opt.get('e_flags','')}")
    a.label("L_e_noload")
    a("s_mov_b64 exec, s[72:73]")
    a("v_lshlrev_b32 v4, 4, v2")
    a("s_cmp_ge_u32 s64, 8")
    a("s_cbranch_scc1 L_e_nopos")
    for i in range(8):
        a(f"s_lshl_b32 s65, s64, 13")
        a(f"s_add_u32 s65, s65, {i*1024}")
        a(f"s_add_u32 s78, s65, {POS_LDS}")
        a("s_mov_b32 m0, s78")
        a("s_nop 0")
        a(f"buffer_load_dwordx4 v4, {s(SPOS,4)}, s65 offen {opt.get('e_flags','')} lds")
    a.label("L_e_nopos")
    a("s_cmp_eq_u32 s64, 0")
    a("s_cbranch_scc0 L_e_nozero")
    a("v_mov_b32 v5, 0")
    a("v_lshlrev_b32 v6, 2, v2")
    a(f"ds_write_b32 v6, v5 offset:{BINC_LDS}")
    a(f"v_mov_b32 v6, {LCNT_LDS}")
    a("ds_write_b32 v6, v5")
    a.label("L_e_nozero")
    a("s_waitcnt vmcnt(0) lgkmcnt(0)")
    a("s_lshl_b32 s68, s66, 16")
    a("s_and_b32 s69, s66, 0xffff0000")
    a("s_lshl_b32 s70, s67, 16")
    a("s_and_b32 s71, s67, 0xffff0000")
    st(a, opt, 0)
    a("s_waitcnt lgkmcnt(0)")
    a("s_barrier")
    a("v_cmp_gt_u32 vcc, 500, v0")
    a("s_and_saveexec_b64 s[72:73], vcc")
    a("s_cbranch_execz L_e_pass1_done")
    vPA = 24
    vSH = 40
    vRAW = 56
    for e in range(8):
        pos_addr(a, vPA+2*e, vSH+2*e, vS+e)
        pos_addr(a, vPA+2*e+1, vSH+2*e+1, vD+e)
    for e in range(8):
        a(f"ds_read2_b32 {v(vRAW+4*e,2)}, {v(vPA+2*e)} offset0:0 offset1:1")
        a(f"ds_read2_b32 {v(vRAW+4*e+2,2)}, {v(vPA+2*e+1)} offset0:0 offset1:1")
    P, Q, Rr, Dd, T = 88, 91, 94, 97, 98
    vOne = 103; vBin = 104; vRank = 105; vLp = 106; vKey = 108
    a(f"v_mov_b32 {v(vOne)}, 1")
    for e in range(8):
        a(f"s_waitcnt lgkmcnt({min(15, 2*(7-e))})")
        pos_unpack(a, vRAW+4*e, vRAW+4*e+1, vSH+2*e, P, P+1, P+2)
        pos_unpack(a, vRAW+4*e+2, vRAW+4*e+3, vSH+2*e+1, Q, Q+1, Q+2)
        dist(a, P, Q, Rr, Dd, T)
        a(f"v_cmp_gt_f32 vcc, 0x40a00000, {v(Dd)}")
        a("s_and_saveexec_b64 s[74:75], vcc")
        a(f"s_cbranch_execz L_e_na{e}")
        a(f"v_mul_u32_u24 {v(vBin)}, {BMAGIC}, {v(vD+e)}")
        a(f"v_lshrrev_b32 {v(vBin)}, {BSHIFT}, {v(vBin)}")
        a(f"v_lshlrev_b32 {v(vLp)}, 2, {v(vBin)}")
        a(f"ds_add_rtn_u32 {v(vRank)}, {v(vLp)}, {v(vOne)} offset:{BINC_LDS}")
        a(f"v_mov_b32 {v(vLp)}, {LCNT_LDS}")
        a(f"ds_add_rtn_u32 {v(vLp)}, {v(vLp)}, {v(vOne)}")
        a(f"v_lshl_or_b32 {v(vKey)}, {v(vD+e)}, 14, {v(vS+e)}")
        a("s_waitcnt lgkmcnt(0)")
        a(f"v_mov_b32 {v(vKey+1)}, {v(vRank)}")
        a(f"v_lshlrev_b32 {v(vLp)}, 3, {v(vLp)}")
        a(f"ds_write_b64 {v(vLp)}, {v(vKey,2)} offset:{LIST_LDS}")
        a.label(f"L_e_na{e}")
        a("s_mov_b64 exec, s[74:75]")
    a.label("L_e_pass1_done")
    a("s_mov_b64 exec, s[72:73]")
    st(a, opt, 1)
    a("s_waitcnt lgkmcnt(0)")
    a("s_barrier")
    vCnt = 24; vOld = 25; vOff = 26
    a("s_cmp_eq_u32 s64, 0")
    a("s_cbranch_scc0 L_e_noatom")
    a(f"v_lshlrev_b32 {v(vOff)}, 2, v2")
    a(f"ds_read_b32 {v(vCnt)}, {v(vOff)} offset:{BINC_LDS}")
    a("s_waitcnt lgkmcnt(0)")
    a(f"v_mov_b32 {v(vOld)}, {v(vCnt)}")
    a(f"buffer_atomic_add {v(vOld)}, {v(vOff)}, {s(SDBG,4)}, 0 offen sc0")
    a(f"s_lshl_b32 s65, s2, 8")
    a(f"buffer_store_dword {v(vCnt)}, {v(vOff)}, {s(SCNT,4)}, s65 offen")
    a.label("L_e_noatom")
    a(f"v_mov_b32 v28, {LCNT_LDS}")
    a("ds_read_b32 v28, v28")
    a("s_waitcnt lgkmcnt(0)")
    a("v_readfirstlane_b32 s76, v28")
    a("v_mov_b32 v29, v0")
    a("s_mov_b32 s79, 0")
    a("s_mov_b32 s77, 0")
    a.label("L_e_loop")
    a("v_cmp_gt_u32 vcc, s76, v29")
    a("s_and_saveexec_b64 s[72:73], vcc")
    a("s_cbranch_execz L_e_geo_done")
    vE = 30
    a("v_lshlrev_b32 v32, 3, v29")
    a(f"ds_read_b64 v[30:31], v32 offset:{LIST_LDS}")
    a("s_waitcnt lgkmcnt(0)")
    vSrc, vDst = 33, 34
    a(f"v_and_b32 {v(vSrc)}, 0x3fff, v30")
    a(f"v_lshrrev_b32 {v(vDst)}, 14, v30")
    pos_addr(a, 36, 38, vSrc)
    pos_addr(a, 37, 39, vDst)
    a("ds_read2_b32 v[40:41], v36 offset0:0 offset1:1")
    a("ds_read2_b32 v[42:43], v37 offset0:0 offset1:1")
    a(f"v_mul_u32_u24 {v(vBin)}, {BMAGIC}, {v(vDst)}")
    a(f"v_lshrrev_b32 {v(vBin)}, {BSHIFT}, {v(vBin)}")
    a("s_waitcnt lgkmcnt(0)")
    pos_unpack(a, 40, 41, 38, P, P+1, P+2)
    pos_unpack(a, 42, 43, 39, Q, Q+1, Q+2)
    dist(a, P, Q, Rr, Dd, T)
    vInv = 44; vG = 46; vFc = 45
    a(f"v_rcp_f32 {v(vInv)}, {v(Dd)}")
    for k in range(4):
        a(f"v_mul_f32 {v(vG+k)}, s{68+k}, {v(Dd)}")
    rnd2(a, vG, vG+1, T); rnd2(a, vG+2, vG+3, T)
    for k in range(4):
        a(f"v_mul_f32 {v(vG+k)}, 0.15915494, {v(vG+k)}")
    for k in range(4):
        a(f"v_sin_f32 {v(vG+k)}, {v(vG+k)}")
    a(f"v_mul_f32 {v(vFc)}, 0x40490fdb, {v(Dd)}")
    rnd2(a, vG, vG+1, T); rnd2(a, vG+2, vG+3, T)
    rnd1(a, vFc, T)
    a(f"v_mul_f32 {v(vFc)}, 0x3e4ccccd, {v(vFc)}")
    rnd1(a, vFc, T)
    a(f"v_mul_f32 {v(vFc)}, 0.15915494, {v(vFc)}")
    a(f"v_cos_f32 {v(vFc)}, {v(vFc)}")
    for k in range(4):
        a(f"v_mul_f32 {v(vG+k)}, {v(vG+k)}, {v(vInv)}")
    rnd1(a, vFc, T)
    rnd2(a, vG, vG+1, T); rnd2(a, vG+2, vG+3, T)
    a(f"v_add_f32 {v(vFc)}, 1.0, {v(vFc)}")
    rnd1(a, vFc, T)
    a(f"v_mul_f32 {v(vFc)}, 0.5, {v(vFc)}")
    for i in range(3):
        a(f"v_mul_f32 {v(Rr+i)}, {v(Rr+i)}, {v(vInv)}")
    for k in range(4):
        a(f"v_mul_f32 {v(vG+k)}, {v(vG+k)}, {v(vFc)}")
    a(f"v_cvt_pk_bf16_f32 v53, {v(vG)}, {v(vG+1)}")
    a(f"v_cvt_pk_bf16_f32 v54, {v(vG+2)}, {v(vG+3)}")
    a(f"v_cvt_pk_bf16_f32 v55, {v(Rr)}, {v(Rr+1)}")
    a(f"v_cvt_pk_bf16_f32 v56, {v(Rr+2)}, {v(Rr+2)}")
    a(f"v_mul_u32_u24 v57, {BINW}, {v(vBin)}")
    a(f"v_sub_u32 v57, {v(vDst)}, v57")
    a(f"v_lshl_or_b32 v52, v57, 14, {v(vSrc)}")
    a.label("L_e_geo_done")
    a("s_mov_b64 exec, s[72:73]")
    a("s_cmp_eq_u32 s77, 0")
    a("s_cbranch_scc0 L_e_store")
    a("s_mov_b32 s77, 1")
    a("s_cmp_eq_u32 s64, 0")
    a("s_cbranch_scc0 L_e_nobase")
    a("s_waitcnt vmcnt(0)")
    a(f"ds_write_b32 {v(vOff)}, {v(vOld)} offset:{BASE_LDS}")
    a.label("L_e_nobase")
    st(a, opt, 2)
    a("s_waitcnt lgkmcnt(0)")
    a("s_barrier")
    st(a, opt, 3)
    a("s_waitcnt lgkmcnt(0)")
    a.label("L_e_store")
    a("v_cmp_gt_u32 vcc, s76, v29")
    a("s_and_saveexec_b64 s[72:73], vcc")
    a("s_cbranch_execz L_e_st_done")
    a(f"v_lshlrev_b32 v58, 2, {v(vBin)}")
    a(f"ds_read_b32 v58, v58 offset:{BASE_LDS}")
    a("s_waitcnt lgkmcnt(0)")
    a("v_add_u32 v58, v58, v31")
    a(f"v_lshl_add_u32 v59, {v(vBin)}, 10, v58")
    a(f"v_mul_u32_u24 v59, {RECB}, v59")
    a(f"s_mov_b32 s78, {COLD_BIN}")
    a(f"v_mul_lo_u32 v60, {v(vBin)}, s78")
    a(f"v_mul_u32_u24 v61, {RECB}, v58")
    a(f"v_add_u32 v60, v60, v61")
    a(f"v_add_u32 v60, {HOT_SIZE}, v60")
    a(f"v_cmp_gt_u32 vcc, {HOTCAP}, v58")
    a("s_nop 1")
    a("v_cndmask_b32 v59, v60, v59, vcc")
    a(f"buffer_store_dwordx4 v[52:55], v59, {s(SREC,4)}, 0 offen {opt.get('rec_flags','')}")
    a(f"buffer_store_dword v56, v59, {s(SREC,4)}, 0 offen offset:16 {opt.get('rec_flags','')}")
    a.label("L_e_st_done")
    a("s_mov_b64 exec, s[72:73]")
    blk = opt.get('k1blk', 512)
    a(f"v_add_u32 v29, {blk}, v29")
    a(f"s_add_u32 s79, s79, {blk}")
    a("s_cmp_lt_u32 s79, s76")
    a("s_cbranch_scc1 L_e_loop")
    if opt.get('fused'):
        a("s_waitcnt vmcnt(0)")
        a("s_barrier")
        a("s_cmp_eq_u32 s64, 0")
        a("s_cbranch_scc0 L_phaseB")
        a("s_mov_b64 exec, 1")
        a("v_mov_b32 v3, 1")
        a("v_mov_b32 v4, 128")
        a(f"global_atomic_add v4, v3, s[{P_DBG}:{P_DBG+1}]")
        a("s_mov_b64 exec, -1")
        a("s_branch L_phaseB")
    else:
        if opt.get('ewb'):
            a("s_cmp_lt_u32 s2, 8")
            a("s_cbranch_scc0 L_e_nowb")
            a("s_cmp_eq_u32 s64, 0")
            a("s_cbranch_scc0 L_e_nowb")
            a("s_waitcnt vmcnt(0)")
            a("buffer_wbl2 sc1")
            a("s_waitcnt vmcnt(0)")
            a.label("L_e_nowb")
        stamp_end(a, opt, 0, 'e')
        a("s_endpgm")
```

```python
from asmlib import *
import k1
from k1 import load_kernargs, stamp_begin, st, stamp_end, P_SV, P_POS, P_SRC, P_DST, P_FRQ, P_W1, P_W2, P_WR, P_OUT, P_DBG, P_WS, N, E
from k1w import NCH, NTILE, NGEMM, ROWB, NROWS, SLICEB, TAB_OFF, TAB_SIZE, SH_LDS, RING_LDS, NS, SLOTB, VX_LDS, K1_LDS

KSA = [0, 2, 4, 6, 1, 3, 5, 7]
NST = 24
XLDS = VX_LDS
K1_LDS3 = 163840
def slot_addr(n):
    if n < 4: return RING_LDS + n * SLOTB
    if n < 7: return XLDS + (n - 4) * SLOTB
    return RING_LDS + ((n - 7) % 4) * SLOTB
def issue_step(n):
    if n < 7: return -1
    if n < 11: return n - 7
    return n - 4

def gemm_role(a, opt):
    SV, W1, W2, TAB = 40, 44, 48, 52
    tf = opt.get('tab_store_flags', '')
    l2f = opt.get('l2_store_flags', '')
    vf = opt.get('v_flags', 'nt')
    a.c("===== GEMM role (W v2) =====")
    a(f"s_sub_u32 s60, s2, {NCH}")
    a("s_lshr_b32 s61, s60, 1")
    a("s_and_b32 s60, s60, 1")
    a("s_mul_i32 s57, s61, 96")
    a("v_lshrrev_b32 v1, 6, v0")
    a("v_and_b32 v2, 63, v0")
    a("s_lshl_b32 s63, s60, 8")
    a("s_waitcnt lgkmcnt(0)")
    a("v_readfirstlane_b32 s56, v1")
    srd(a, SV, P_SV, N * 2048)
    srd(a, TAB, P_WS, TAB_SIZE, TAB_OFF)
    a("s_cmp_ge_u32 s56, 8")
    a("s_cbranch_scc1 L_copy_role")
    srd(a, W1, P_W1, 256 * 512)
    srd(a, W2, P_W2, 256 * 1536)
    a("s_and_b32 s58, s56, 3")
    a("s_lshr_b32 s59, s56, 2")
    R = Regs(3, 168)
    vW1 = R.alloc(2); vWA = R.alloc(2); vT1 = R.alloc(4); vTA = R.alloc(2)
    vB = R.alloc(4); vHW = R.alloc(1); vVX = R.alloc(1); vST = R.alloc(1)
    vT = R.alloc(4, 4)
    vX = R.alloc(12, 4)
    vA = [R.alloc(16, 4), R.alloc(16, 4)]
    vBf = [R.alloc(12, 4), R.alloc(12, 4)]
    vAcc = R.alloc(48, 4)
    vAcB = R.alloc(24, 4)
    vWB = vW1; vTB = vT1
    def acc1(rt, t):
        return (vAcc + (rt * 3 + t) * 4) if rt < 2 else (vAcB + ((rt - 2) * 3 + t) * 4)
    def accA(rt, t): return vAcc + (rt * 3 + t) * 4
    def accB(u, t): return vAcB + (u * 3 + t) * 4
    vm = []
    def vm_after(tag):
        if tag not in vm: return 63
        idx = max(i for i, x in enumerate(vm) if x == tag)
        return len(vm) - 1 - idx
    T0, T1, T2, T3, T4, T5 = [vAcc + i for i in range(6)]

    a(f"v_lshrrev_b32 {v(T0)}, 5, v2")
    a(f"v_and_b32 {v(T1)}, 31, v2")
    a("s_mul_i32 s62, s56, 6")
    for i in range(6):
        a(f"s_add_u32 s64, s62, {i}")
        a("s_lshl_b32 s65, s64, 1")
        a(f"v_add_u32 {v(T2)}, s65, {v(T0)}")
        a(f"v_and_b32 {v(T3)}, 15, {v(T2)}")
        a(f"v_xor_b32 {v(T3)}, {v(T3)}, {v(T1)}")
        a(f"v_add_u32 {v(T2)}, s57, {v(T2)}")
        a(f"v_lshlrev_b32 {v(T2)}, 11, {v(T2)}")
        a(f"v_lshl_add_u32 {v(T2)}, {v(T3)}, 4, {v(T2)}")
        a("s_lshl_b32 s65, s64, 10")
        a("s_mov_b32 m0, s65")
        a("s_nop 0")
        a(f"buffer_load_dwordx4 {v(T2)}, {s(SV,4)}, 0 offen lds")
        vm.append(('S', i))
    def fbits(dst, row, tmp):
        a(f"v_and_b32 {v(dst)}, 3, {v(row)}")
        a(f"v_bfe_u32 {v(tmp)}, {v(row)}, 3, 1")
        a(f"v_lshl_or_b32 {v(dst)}, {v(tmp)}, 2, {v(dst)}")
    a("s_lshl_b32 s62, s56, 2")
    for i in range(2):
        a(f"v_add_u32 {v(T2)}, s62, {v(T0)}")
        if i: a(f"v_add_u32 {v(T2)}, 2, {v(T2)}")
        fbits(T3, T2, T5)
        a(f"v_lshlrev_b32 {v(T3)}, 1, {v(T3)}")
        a(f"v_xor_b32 {v(T3)}, {v(T3)}, {v(T1)}")
        a(f"v_lshlrev_b32 {v(T4)}, 4, {v(T3)}")
        a(f"v_lshl_add_u32 {v(vW1+i)}, {v(T2)}, 9, {v(T4)}")
        if i: a(f"v_subrev_u32 {v(vW1+i)}, 1024, {v(vW1+i)}")
        a(f"v_mul_u32_u24 {v(vWA+i)}, 1536, {v(T2)}")
        a(f"v_lshrrev_b32 {v(T4)}, 4, {v(T3)}")
        a(f"v_lshl_add_u32 {v(vWA+i)}, {v(T4)}, 9, {v(vWA+i)}")
        a(f"v_and_b32 {v(T4)}, 15, {v(T3)}")
        a(f"v_lshl_add_u32 {v(vWA+i)}, {v(T4)}, 4, {v(vWA+i)}")
        a(f"v_add_u32 {v(vWA+i)}, s63, {v(vWA+i)}")
        if i: a(f"v_subrev_u32 {v(vWA+i)}, 1024, {v(vWA+i)}")
    a("s_lshl_b32 s65, s56, 11")
    a("s_lshl_b32 s66, s56, 10")
    def kind(n): return n // 8
    def ks_of(n): return KSA[n - 8] if kind(n) == 1 else (n & 7)
    def issue_chunk(n):
        k = kind(n); ks = ks_of(n)
        slot = slot_addr(n)
        out = []
        if k < 2:
            out.append(f"s_add_u32 s67, s65, {slot}")
            out.append("s_mov_b32 m0, s67")
            out.append(f"s_mov_b32 s68, {ks * 16384 if k == 0 else ks * 49152}")
            for i in range(2):
                if k == 0:
                    out.append((f"buffer_load_dwordx4 {v(vW1+i)}, {s(W1,4)}, s68 offen offset:{i*1024} lds", ('C', n)))
                else:
                    out.append((f"buffer_load_dwordx4 {v(vWA+i)}, {s(W2,4)}, s68 offen offset:{i*1024} lds", ('C', n)))
        else:
            out.append(f"s_add_u32 s67, s66, {slot}")
            out.append("s_mov_b32 m0, s67")
            out.append(f"s_mov_b32 s68, {ks * 49152}")
            out.append((f"buffer_load_dwordx4 {v(vWB)}, {s(W2,4)}, s68 offen lds", ('C', n)))
        return out
    def emit(x):
        if isinstance(x, tuple):
            a(x[0]); vm.append(x[1])
        elif callable(x):
            x()
        else:
            a(x)
    for n in range(7):
        for x in issue_chunk(n): emit(x)
    a("s_barrier")
    a(f"v_lshrrev_b32 {v(T0)}, 4, v2")
    a(f"v_bfe_u32 {v(T1)}, v2, 2, 2")
    a(f"v_and_b32 {v(T2)}, 3, v2")
    a(f"v_lshl_add_u32 {v(T3)}, {v(T0)}, 3, {v(T1)}")
    a(f"v_and_b32 {v(T4)}, 1, {v(T0)}")
    a(f"v_lshl_or_b32 {v(T4)}, {v(T4)}, 2, {v(T1)}")
    a("s_and_b32 s72, s58, 1")
    a("s_lshl_b32 s72, s72, 2")
    a(f"v_xor_b32 {v(T5)}, s72, {v(T4)}")
    a(f"v_lshlrev_b32 {v(T5)}, 5, {v(T5)}")
    a(f"v_lshl_add_u32 {v(T5)}, {v(T3)}, 9, {v(T5)}")
    a(f"v_lshl_add_u32 {v(T5)}, {v(T2)}, 3, {v(T5)}")
    a("s_lshr_b32 s72, s58, 1")
    a("s_lshl_b32 s72, s72, 8")
    a(f"s_add_u32 s72, s72, {RING_LDS}")
    a(f"v_add_u32 {v(T5)}, s72, {v(T5)}")
    for rt in range(4):
        a(f"v_xor_b32 {v(vT1+rt)}, {rt<<5}, {v(T5)}")
    a("s_lshl_b32 s72, s58, 1")
    a(f"v_xor_b32 {v(T5)}, s72, {v(T4)}")
    a(f"v_lshlrev_b32 {v(T5)}, 5, {v(T5)}")
    a(f"v_lshl_add_u32 {v(T5)}, {v(T2)}, 3, {v(T5)}")
    a(f"v_add_u32 {v(T5)}, {RING_LDS}, {v(T5)}")
    a(f"v_lshl_add_u32 {v(vTA)}, {v(T3)}, 9, {v(T5)}")
    a(f"v_xor_b32 {v(vTA+1)}, 32, {v(vTA)}")
    a(f"v_and_b32 {v(T1)}, 15, v2")
    a(f"v_and_b32 {v(T2)}, 3, v2")
    a(f"v_xor_b32 {v(T2)}, {v(T2)}, {v(T0)}")
    a(f"v_lshlrev_b32 {v(T2)}, 4, {v(T2)}")
    a(f"v_lshl_add_u32 {v(T2)}, {v(T1)}, 9, {v(T2)}")
    a(f"v_bfe_u32 {v(T3)}, v2, 2, 2")
    a(f"v_lshl_add_u32 {v(T2)}, {v(T3)}, 6, {v(T2)}")
    a(f"s_mul_i32 s72, s59, {48*512}")
    a(f"v_add_u32 {v(T2)}, s72, {v(T2)}")
    for j in range(4):
        a(f"v_xor_b32 {v(vB+j)}, {j<<6}, {v(T2)}")
    a(f"v_lshrrev_b32 {v(T3)}, 1, {v(T0)}")
    a("s_lshl_b32 s73, s58, 3")
    a(f"v_add_u32 {v(T3)}, s73, {v(T3)}")
    a(f"v_xor_b32 {v(T3)}, {v(T3)}, {v(T1)}")
    a(f"v_lshlrev_b32 {v(T3)}, 4, {v(T3)}")
    a(f"v_lshl_add_u32 {v(T3)}, {v(T1)}, 9, {v(T3)}")
    a(f"v_and_b32 {v(T4)}, 1, {v(T0)}")
    a(f"v_lshl_add_u32 {v(vHW)}, {v(T4)}, 3, {v(T3)}")
    a(f"v_add_u32 {v(vHW)}, s72, {v(vHW)}")
    a(f"v_lshrrev_b32 {v(T3)}, 1, {v(T0)}")
    a("s_lshl_b32 s73, s58, 2")
    a(f"v_add_u32 {v(T3)}, s73, {v(T3)}")
    a(f"v_xor_b32 {v(T3)}, {v(T3)}, {v(T1)}")
    a(f"v_lshlrev_b32 {v(T3)}, 4, {v(T3)}")
    a(f"v_lshl_add_u32 {v(T3)}, {v(T1)}, 8, {v(T3)}")
    a(f"v_lshl_add_u32 {v(vVX)}, {v(T4)}, 3, {v(T3)}")
    a(f"s_mul_i32 s73, s59, {48*256}")
    a(f"s_add_u32 s73, s73, {VX_LDS}")
    a(f"v_add_u32 {v(vVX)}, s73, {v(vVX)}")
    a("s_mul_i32 s69, s59, 48")
    a("s_add_u32 s69, s69, s57")
    a("s_lshl_b32 s71, s60, 2")
    a("s_add_u32 s71, s71, s58")
    a(f"s_mul_i32 s71, s71, {SLICEB}")
    a(f"v_and_b32 {v(T3)}, 7, v2")
    a(f"v_add_u32 {v(T3)}, s69, {v(T3)}")
    a(f"v_mul_u32_u24 {v(vST)}, {ROWB}, {v(T3)}")
    a(f"v_bfe_u32 {v(T3)}, v2, 3, 1")
    a(f"v_lshl_add_u32 {v(T3)}, {v(T3)}, 2, {v(T0)}")
    a(f"v_lshl_add_u32 {v(vST)}, {v(T3)}, 4, {v(vST)}")
    a(f"v_add_u32 {v(vST)}, s71, {v(vST)}")

    def passB_addr_dma():
        t0, t1, t2 = vT, vT+1, vT+2
        return [f"v_lshrrev_b32 {v(t0)}, 4, v2", f"v_add_u32 {v(t0)}, s62, {v(t0)}",
                f"v_and_b32 {v(t1)}, 3, {v(t0)}", f"v_bfe_u32 {v(t2)}, {v(t0)}, 3, 1", f"v_lshl_or_b32 {v(t1)}, {v(t2)}, 2, {v(t1)}",
                f"v_lshlrev_b32 {v(t1)}, 1, {v(t1)}", f"v_and_b32 {v(t2)}, 15, v2", f"v_xor_b32 {v(t1)}, {v(t1)}, {v(t2)}",
                f"v_mul_u32_u24 {v(vWB)}, 1536, {v(t0)}", f"v_lshl_add_u32 {v(vWB)}, {v(t1)}, 4, {v(vWB)}",
                f"v_add_u32 {v(vWB)}, s63, {v(vWB)}", f"v_add_u32 {v(vWB)}, 1024, {v(vWB)}"]
    def passB_addr_tr():
        t0, t1 = vT, vT+1
        return [f"v_lshrrev_b32 {v(t0)}, 4, v2", f"v_bfe_u32 {v(t1)}, v2, 2, 2", f"v_lshl_add_u32 {v(t0)}, {v(t0)}, 3, {v(t1)}",
                f"v_lshlrev_b32 {v(t0)}, 8, {v(t0)}", f"v_sub_u32 {v(vTB)}, {v(vTA)}, {v(t0)}", f"v_xor_b32 {v(vTB+1)}, 32, {v(vTB)}"]

    def tr_reads(n):
        k = kind(n); slot = slot_addr(n) - RING_LDS; buf = vA[n & 1]
        out = []
        if 4 <= n < 7:
            slot -= 65536
            if n == 4:
                for rt in range(4): out.append(f"v_add_u32 {v(vT1+rt)}, 0x10000, {v(vT1+rt)}")
        if n == 7:
            for rt in range(4): out.append(f"v_subrev_u32 {v(vT1+rt)}, 0x10000, {v(vT1+rt)}")
        if k == 0:
            for rt in range(4):
                out.append(f"ds_read_b64_tr_b16 {v(buf+rt*4,2)}, {v(vT1+rt)} offset:{slot}")
                out.append(f"ds_read_b64_tr_b16 {v(buf+rt*4+2,2)}, {v(vT1+rt)} offset:{slot+4*512}")
        elif k == 1:
            for p in range(2):
                for u in range(2):
                    rt = p*2+u
                    out.append(f"ds_read_b64_tr_b16 {v(buf+rt*4,2)}, {v(vTA+u)} offset:{slot+p*256}")
                    out.append(f"ds_read_b64_tr_b16 {v(buf+rt*4+2,2)}, {v(vTA+u)} offset:{slot+p*256+4*512}")
        else:
            for u in range(2):
                out.append(f"ds_read_b64_tr_b16 {v(buf+u*4,2)}, {v(vTB+u)} offset:{slot}")
                out.append(f"ds_read_b64_tr_b16 {v(buf+u*4+2,2)}, {v(vTB+u)} offset:{slot+4*256}")
        return out
    def bf_reads(n):
        ks = ks_of(n); buf = vBf[n & 1]
        return [f"ds_read_b128 {v(buf+4*t,4)}, {v(vB+(ks&3))} offset:{t*8192 + (ks>>2)*256}" for t in range(3)]

    def silu_pair(tiles):
        out = []
        TX = [vX, vX + 4]
        A = [acc1(rt, t) for rt, t in tiles]
        for i in range(2):
            for r in range(4): out.append(f"v_mul_f32 {v(TX[i]+r)}, 0xbfb8aa3b, {v(A[i]+r)}")
        for i in range(2):
            for r in range(4): out.append(f"v_exp_f32 {v(TX[i]+r)}, {v(TX[i]+r)}")
        for i in range(2):
            for r in range(4): out.append(f"v_add_f32 {v(TX[i]+r)}, 1.0, {v(TX[i]+r)}")
        for i in range(2):
            for r in range(4): out.append(f"v_rcp_f32 {v(TX[i]+r)}, {v(TX[i]+r)}")
        for i in range(2):
            for r in range(4): out.append(f"v_mul_f32 {v(TX[i]+r)}, {v(TX[i]+r)}, {v(A[i]+r)}")
        for i, (rt, t) in enumerate(tiles):
            P = vX + 8 + 2*i
            out.append(f"v_cvt_pk_bf16_f32 {v(P)}, {v(TX[i])}, {v(TX[i]+1)}")
            out.append(f"v_cvt_pk_bf16_f32 {v(P+1)}, {v(TX[i]+2)}, {v(TX[i]+3)}")
            out.append(f"v_xor_b32 {v(vT+i)}, {rt<<5}, {v(vHW)}")
            out.append(f"ds_write_b64 {v(vT+i)}, {v(P,2)} offset:{t*8192}")
        return out
    def silu_half(rts):
        tl = [(rt, t) for rt in rts for t in range(3)]
        out = []
        for i in range(0, 6, 2): out.append(silu_pair(tl[i:i+2]))
        return out

    def dpp_swap_store(X0, X1, TM, line, t):
        out = []
        for r in range(4):
            out.append(f"v_mov_b32_dpp {v(TM+r)}, {v(X0+r)} row_ror:8 row_mask:0xf bank_mask:0xf")
        for r in range(4):
            out.append(f"v_mov_b32_dpp {v(X0+r)}, {v(X1+r)} row_ror:8 row_mask:0xf bank_mask:0xc")
        for r in range(4):
            out.append(f"v_mov_b32_dpp {v(X1+r)}, {v(TM+r)} quad_perm:[0,1,2,3] row_mask:0xf bank_mask:0x3")
        out.append(f"s_mov_b32 s72, {t*16*ROWB}")
        if not opt.get('exp_nostore'):
            out.append((f"buffer_store_dwordx4 {v(X0,4)}, {v(vST)}, {s(TAB,4)}, s72 offen offset:{line*128} {tf}", ('ST', line, t, 0)))
            out.append((f"buffer_store_dwordx4 {v(X1,4)}, {v(vST)}, {s(TAB,4)}, s72 offen offset:{line*128 + 8*ROWB} {tf}", ('ST', line, t, 1)))
        return out
    X0, X1, TM = vX, vX + 4, vX + 8
    def line0_epi(t):
        out = []
        for u, X in ((0, X0), (1, X1)):
            S_ = accA(0*2+u, t); V_ = accA(1*2+u, t)
            out.append(f"v_cvt_pk_bf16_f32 {v(X)}, {v(S_)}, {v(S_+1)}")
            out.append(f"v_cvt_pk_bf16_f32 {v(X+1)}, {v(S_+2)}, {v(S_+3)}")
            out.append(f"v_cvt_pk_bf16_f32 {v(X+2)}, {v(V_)}, {v(V_+1)}")
            out.append(f"v_cvt_pk_bf16_f32 {v(X+3)}, {v(V_+2)}, {v(V_+3)}")
        out.append("s_nop 1")
        out += dpp_swap_store(X0, X1, TM, 0, t)
        out.append("s_nop 1")
        return out
    def line1_epi(t):
        out = []
        out.append(f"ds_read_b64 {v(X0+2,2)}, {v(vVX)} offset:{t*16*256}")
        out.append(f"v_xor_b32 {v(vT)}, 32, {v(vVX)}")
        out.append(f"ds_read_b64 {v(X1+2,2)}, {v(vT)} offset:{t*16*256}")
        for u, X in ((0, X0), (1, X1)):
            Rr = accB(u, t)
            out.append(f"v_cvt_pk_bf16_f32 {v(X)}, {v(Rr)}, {v(Rr+1)}")
            out.append(f"v_cvt_pk_bf16_f32 {v(X+1)}, {v(Rr+2)}, {v(Rr+3)}")
        out.append("s_waitcnt lgkmcnt(0)")
        out.append("s_nop 0")
        out += dpp_swap_store(X0, X1, TM, 1, t)
        out.append("s_nop 1")
        return out

    a(f"s_waitcnt vmcnt({vm_after(('C',0))})")
    st(a, opt, 0)
    a("s_barrier")
    for x in tr_reads(0): a(x)
    for x in bf_reads(0): a(x)

    extra = {n: [] for n in range(NST)}
    sil2 = silu_half((2, 3))
    if not opt.get('exp_nosilu2'):
        for i in range(3): extra[8 + i] += sil2[i]
    extra[11] += passB_addr_dma()
    extra[13] += passB_addr_tr()
    l0 = line0_epi(0) + line0_epi(1) + line0_epi(2)
    per = (len(l0) + 6) // 7
    for k in range(7): extra[17 + k] += l0[k*per:(k+1)*per]

    for n in range(NST):
        k = kind(n); buf = vA[n & 1]; bb = vBf[n & 1]
        first = (n & 7) == 0
        a.c(f"--- step {n} (ks {ks_of(n)})")
        a("s_waitcnt lgkmcnt(0)")
        if n == 0: st(a, opt, 1)
        if n == 8: st(a, opt, 3)
        if n == 16: st(a, opt, 4)
        mf = []
        nrt = 4 if k < 2 else 2
        for rt in range(nrt):
            for t in range(3):
                A = acc1(rt, t) if k == 0 else (accA(rt, t) if k == 1 else accB(rt, t))
                cc = "0" if first else v(A, 4)
                mf.append(f"v_mfma_f32_16x16x32_bf16 {v(A,4)}, {v(buf+rt*4,4)}, {v(bb+4*t,4)}, {cc}")
        npre = 2 if k < 2 else 1
        for m in mf[:npre]: a(m)
        side = []
        if n + 1 < NST:
            a(f"s_waitcnt vmcnt({vm_after(('C', n+1))})")
            a("s_barrier")
            side += tr_reads(n + 1)
            if n + 1 != 8: side += bf_reads(n + 1)
        if not opt.get('exp_nodma'):
            for m in range(7, NST):
                if issue_step(m) == n: side += issue_chunk(m)
        side += extra[n]
        rest = mf[npre:]
        kk = 0
        nper = (len(side) + len(rest) - 1) // len(rest)
        for m in rest:
            a(m)
            for x in side[kk:kk+nper]: emit(x)
            kk += nper
        for x in side[kk:]: emit(x)
        if n == 7:
            a("s_nop 7"); a("s_nop 1")
            st(a, opt, 2)
            for grp in silu_half((0, 1)):
                for x in grp: a(x)
            a("s_waitcnt lgkmcnt(0)")
            a("s_barrier")
            for x in bf_reads(8): a(x)
    a("s_nop 7"); a("s_nop 1")
    st(a, opt, 5)
    a("s_barrier")
    for t in range(3):
        for x in line1_epi(t): emit(x)
    stamp_end(a, opt, 0, 'g')
    a("s_endpgm")

    a.label("L_copy_role")
    a("s_sub_u32 s58, s56, 8")
    vm2 = []
    def vm2_after(tag):
        idx = max(i for i, x in enumerate(vm2) if x == tag)
        return len(vm2) - 1 - idx
    vS, vD, vQ = 3, 4, 5
    vStg = 8
    a("v_lshrrev_b32 v6, 3, v2")
    a("v_add_u32 v6, s57, v6")
    a("v_and_b32 v7, 7, v2")
    a(f"v_lshlrev_b32 {v(vS)}, 11, v6")
    a(f"v_lshl_add_u32 {v(vS)}, v7, 3, {v(vS)}")
    a("s_lshl_b32 s70, s58, 6")
    a("s_add_u32 s70, s70, s63")
    a(f"v_add_u32 {v(vS)}, s70, {v(vS)}")
    a("s_lshl_b32 s71, s60, 2")
    a("s_add_u32 s71, s71, s58")
    a(f"s_mul_i32 s71, s71, {SLICEB}")
    a(f"v_mul_u32_u24 {v(vD)}, {ROWB}, v6")
    a(f"v_lshl_add_u32 {v(vD)}, v7, 4, {v(vD)}")
    a(f"v_add_u32 {v(vD)}, s71, {v(vD)}")
    def c_vx(i, prefetch=False):
        a("s_mul_i32 s72, s58, 24")
        a(f"s_add_u32 s72, s72, {4*i}")
        a("v_lshrrev_b32 v6, 4, v2")
        a("v_add_u32 v6, s72, v6")
        a("v_and_b32 v7, 15, v6")
        a(f"v_and_b32 {v(vQ)}, 15, v2")
        a(f"v_xor_b32 v7, v7, {v(vQ)}")
        a("v_add_u32 v6, s57, v6")
        a("v_lshlrev_b32 v6, 11, v6")
        a("v_lshl_add_u32 v6, v7, 4, v6")
        a("v_add_u32 v6, s63, v6")
        a("v_add_u32 v6, 512, v6")
        if prefetch:
            a(f"buffer_load_dwordx4 v[{56+4*i}:{59+4*i}], v6, {s(SV,4)}, 0 offen"); vm2.append(('VXP', i))
            return
        a("s_lshl_b32 s72, s72, 8")
        a(f"s_add_u32 s72, s72, {VX_LDS}")
        a("s_mov_b32 m0, s72")
        a("s_nop 0")
        a(f"buffer_load_dwordx4 v6, {s(SV,4)}, 0 offen lds"); vm2.append(('VX', i))
    def c_load(i):
        a(f"s_mov_b32 s72, {i*8*2048}")
        a(f"buffer_load_dwordx2 {v(vStg+4*i,2)}, {v(vS)}, {s(SV,4)}, s72 offen offset:1024 {vf}"); vm2.append(('a', i))
        a(f"buffer_load_dwordx2 {v(vStg+4*i+2,2)}, {v(vS)}, {s(SV,4)}, s72 offen offset:1536 {vf}"); vm2.append(('b', i))
    def c_store(i):
        a(f"s_waitcnt vmcnt({vm2_after(('b', i))})")
        a(f"s_mov_b32 s72, {i*8*ROWB}")
        a(f"buffer_store_dwordx4 {v(vStg+4*i,4)}, {v(vD)}, {s(TAB,4)}, s72 offen offset:256 {l2f}"); vm2.append(('s', i))
    sched = opt.get('csched', '3')
    a("s_barrier")
    if sched == '3':
        for i in range(12): c_load(i)
        for i in range(6): c_vx(i, prefetch=True)
    a("s_barrier")
    for n in range(NST):
        if sched == '0':
            if n < 6:
                c_vx(n); c_load(2*n); c_load(2*n+1)
            if 8 <= n < 20: c_store(n - 8)
        elif sched == '1':
            if n < 12: c_load(n)
            if 10 <= n < 16: c_vx(n - 10)
            if 8 <= n < 20: c_store(n - 8)
        elif sched == '3':
            c0 = int(opt.get('cst0', 4))
            if c0 <= n < c0 + 12: c_store(n - c0)
            if 6 <= n < 12: c_vx(n - 6)
        elif sched == 'none':
            pass
        elif sched == '2':
            if n < 12: c_load(n)
            if 12 <= n < 18: c_vx(n - 12)
            if 10 <= n < 22: c_store(n - 10)
        if n + 1 < NST:
            a("s_barrier")
        if n == 7:
            a("s_barrier")
    if sched != 'none': a(f"s_waitcnt vmcnt({vm2_after(('VX', 5))})")
    a("s_barrier")
    stamp_end(a, opt, 0, 'c')
    a("s_endpgm")
```

```python
from asmlib import *
import k1
from k1 import load_kernargs, stamp_begin, st, stamp_end, P_SV, P_POS, P_SRC, P_DST, P_FRQ, P_W1, P_W2, P_WR, P_OUT, P_DBG, P_WS, N, E
from k1w import NCH, NTILE, NGEMM, ROWB, NROWS, SLICEB, TAB_OFF, TAB_SIZE, SH_LDS, RING_LDS, NS, SLOTB, VX_LDS, K1_LDS

EDG_DBG = 128
TBL_DBG = 192
KSA = [0, 2, 4, 6, 1, 3, 5, 7]
NST = 24
XLDS = VX_LDS
SYNC_LDS = XLDS + 2 * SLOTB
K1_LDS3 = SYNC_LDS + 64
import os
PBRES = os.environ.get('PBRES', '1') == '1'
def slot_addr(n):
    if n < 4: return RING_LDS + n * SLOTB
    if n < 6: return XLDS + (n - 4) * SLOTB
    if n < 8: return RING_LDS + (n - 6) * SLOTB
    if n < 16 or not PBRES: return RING_LDS + ((n - 8) % 4) * SLOTB
    return RING_LDS + ((n - 16) >> 1) * SLOTB + ((n - 16) & 1) * 8192

def lsignal(a, idx, vt, v1_):
    a("s_mov_b64 exec, 1")
    a(f"v_mov_b32 {v(vt)}, {SYNC_LDS + 4*idx}")
    a(f"v_mov_b32 {v(v1_)}, 1")
    a(f"ds_add_u32 {v(vt)}, {v(v1_)}")
    a("s_mov_b64 exec, -1")
def lspin(a, idx, target, lbl, vt, v1_):
    a(f"v_mov_b32 {v(vt)}, {SYNC_LDS + 4*idx}")
    a.label(lbl)
    a(f"ds_read_b32 {v(v1_)}, {v(vt)}")
    a("s_waitcnt lgkmcnt(0)")
    a(f"v_readfirstlane_b32 s74, {v(v1_)}")
    a(f"s_cmp_ge_u32 s74, {target}")
    a(f"s_cbranch_scc0 {lbl}")

def gemm_role(a, opt):
    SV, W1, W2, TAB = 40, 44, 48, 52
    tf = opt.get('tab_store_flags', '')
    l2f = opt.get('l2_store_flags', '')
    vf = opt.get('v_flags', 'nt')
    a.c("===== GEMM role (W v2) =====")
    a(f"s_sub_u32 s60, s2, {NCH}")
    if opt.get('xmap', '1') == '1':
        a("s_lshr_b32 s61, s60, 3")
        a("s_lshl_b32 s61, s61, 2")
        a("s_and_b32 s62, s60, 3")
        a("s_add_u32 s61, s61, s62")
        a("s_lshr_b32 s62, s60, 2")
        a("s_and_b32 s62, s62, 1")
        a("s_cmp_ge_u32 s60, 208")
        a("s_cselect_b32 s61, 104, s61")
        a("s_and_b32 s60, s60, 1")
        a("s_cselect_b32 s60, s60, s62") if False else None
        a(f"s_sub_u32 s63, s2, {NCH}")
        a("s_cmp_ge_u32 s63, 208")
        a("s_cselect_b32 s60, s60, s62")
    else:
        a("s_lshr_b32 s61, s60, 1")
        a("s_and_b32 s60, s60, 1")
    a("s_mul_i32 s57, s61, 96")
    a("v_lshrrev_b32 v1, 6, v0")
    a("v_and_b32 v2, 63, v0")
    a("s_lshl_b32 s63, s60, 8")
    a("s_waitcnt lgkmcnt(0)")
    a("v_readfirstlane_b32 s56, v1")
    srd(a, SV, P_SV, N * 2048)
    srd(a, TAB, P_WS, TAB_SIZE, TAB_OFF)
    a("v_mov_b32 v3, 0")
    a(f"v_mov_b32 v4, {SYNC_LDS}")
    a("v_mov_b32 v5, 0")
    a("ds_write_b64 v4, v[2:3]") if False else None
    a("v_mov_b32 v6, 0"); a("v_mov_b32 v7, 0"); a("v_mov_b32 v8, 0"); a("v_mov_b32 v9, 0")
    a("ds_write_b128 v4, v[6:9]")
    a("s_cmp_ge_u32 s56, 8")
    a("s_cbranch_scc1 L_copy_role")
    srd(a, W1, P_W1, 256 * 512)
    srd(a, W2, P_W2, 256 * 1536)
    a("s_and_b32 s58, s56, 3")
    a("s_lshr_b32 s59, s56, 2")
    R = Regs(3, 168)
    vW1 = R.alloc(2); vWA = R.alloc(2); vT1 = R.alloc(4); vTA = R.alloc(2)
    vB = R.alloc(4); vHW = R.alloc(1); vVX = R.alloc(1); vST = R.alloc(1)
    vT = R.alloc(4, 4)
    vX = R.alloc(12, 4)
    vA = [R.alloc(16, 4), R.alloc(16, 4)]
    vBf = [R.alloc(12, 4), R.alloc(12, 4)]
    vAcc = R.alloc(48, 4)
    vAcB = R.alloc(24, 4)
    vWB = vW1; vTB = vT1
    def acc1(rt, t):
        return (vAcc + (rt * 3 + t) * 4) if rt < 2 else (vAcB + ((rt - 2) * 3 + t) * 4)
    def accA(rt, t): return vAcc + (rt * 3 + t) * 4
    def accB(u, t): return vAcB + (u * 3 + t) * 4
    vm = []
    def vm_after(tag):
        if tag not in vm: return 63
        idx = max(i for i, x in enumerate(vm) if x == tag)
        return len(vm) - 1 - idx
    T0, T1, T2, T3, T4, T5 = [vAcc + i for i in range(6)]

    a(f"v_lshrrev_b32 {v(T0)}, 5, v2")
    a(f"v_and_b32 {v(T1)}, 31, v2")
    a("s_mul_i32 s62, s56, 6")
    for i in range(6):
        a(f"s_add_u32 s64, s62, {i}")
        a("s_lshl_b32 s65, s64, 1")
        a(f"v_add_u32 {v(T2)}, s65, {v(T0)}")
        a(f"v_and_b32 {v(T3)}, 15, {v(T2)}")
        a(f"v_xor_b32 {v(T3)}, {v(T3)}, {v(T1)}")
        a(f"v_add_u32 {v(T2)}, s57, {v(T2)}")
        a(f"v_lshlrev_b32 {v(T2)}, 11, {v(T2)}")
        a(f"v_lshl_add_u32 {v(T2)}, {v(T3)}, 4, {v(T2)}")
        a("s_lshl_b32 s65, s64, 10")
        a("s_mov_b32 m0, s65")
        a("s_nop 0")
        a(f"buffer_load_dwordx4 {v(T2)}, {s(SV,4)}, 0 offen {opt.get('s_flags','')} lds")
        vm.append(('S', i))
    def fbits(dst, row, tmp):
        a(f"v_and_b32 {v(dst)}, 3, {v(row)}")
        a(f"v_bfe_u32 {v(tmp)}, {v(row)}, 3, 1")
        a(f"v_lshl_or_b32 {v(dst)}, {v(tmp)}, 2, {v(dst)}")
    a("s_lshl_b32 s62, s56, 2")
    for i in range(2):
        a(f"v_add_u32 {v(T2)}, s62, {v(T0)}")
        if i: a(f"v_add_u32 {v(T2)}, 2, {v(T2)}")
        fbits(T3, T2, T5)
        a(f"v_lshlrev_b32 {v(T3)}, 1, {v(T3)}")
        a(f"v_xor_b32 {v(T3)}, {v(T3)}, {v(T1)}")
        a(f"v_lshlrev_b32 {v(T4)}, 4, {v(T3)}")
        a(f"v_lshl_add_u32 {v(vW1+i)}, {v(T2)}, 9, {v(T4)}")
        if i: a(f"v_subrev_u32 {v(vW1+i)}, 1024, {v(vW1+i)}")
        a(f"v_mul_u32_u24 {v(vWA+i)}, 1536, {v(T2)}")
        a(f"v_lshrrev_b32 {v(T4)}, 4, {v(T3)}")
        a(f"v_lshl_add_u32 {v(vWA+i)}, {v(T4)}, 9, {v(vWA+i)}")
        a(f"v_and_b32 {v(T4)}, 15, {v(T3)}")
        a(f"v_lshl_add_u32 {v(vWA+i)}, {v(T4)}, 4, {v(vWA+i)}")
        a(f"v_add_u32 {v(vWA+i)}, s63, {v(vWA+i)}")
        if i: a(f"v_subrev_u32 {v(vWA+i)}, 1024, {v(vWA+i)}")
    a("s_lshl_b32 s65, s56, 11")
    a("s_lshl_b32 s66, s56, 10")
    def kind(n): return n // 8
    def ks_of(n): return KSA[n - 8] if kind(n) == 1 else (n & 7)
    def issue_chunk(n):
        k = kind(n); ks = ks_of(n)
        slot = slot_addr(n)
        out = []
        if k < 2:
            out.append(f"s_add_u32 s67, s65, {slot}")
            out.append("s_mov_b32 m0, s67")
            out.append(f"s_mov_b32 s68, {ks * 16384 if k == 0 else ks * 49152}")
            for i in range(2):
                if k == 0:
                    out.append((f"buffer_load_dwordx4 {v(vW1+i)}, {s(W1,4)}, s68 offen offset:{i*1024} {opt.get('w_flags','')} lds", ('C', n)))
                else:
                    out.append((f"buffer_load_dwordx4 {v(vWA+i)}, {s(W2,4)}, s68 offen offset:{i*1024} {opt.get('w_flags','')} lds", ('C', n)))
        else:
            out.append(f"s_add_u32 s67, s66, {slot}")
            out.append("s_mov_b32 m0, s67")
            out.append(f"s_mov_b32 s68, {ks * 49152}")
            out.append((f"buffer_load_dwordx4 {v(vWB)}, {s(W2,4)}, s68 offen {opt.get('w_flags','')} lds", ('C', n)))
        return out
    def emit(x):
        if isinstance(x, tuple):
            a(x[0]); vm.append(x[1])
        elif callable(x):
            x()
        else:
            a(x)
    for n in range(6):
        for x in issue_chunk(n): emit(x)
    a("s_waitcnt lgkmcnt(0)")
    a("s_barrier")
    a(f"v_lshrrev_b32 {v(T0)}, 4, v2")
    a(f"v_bfe_u32 {v(T1)}, v2, 2, 2")
    a(f"v_and_b32 {v(T2)}, 3, v2")
    a(f"v_lshl_add_u32 {v(T3)}, {v(T0)}, 3, {v(T1)}")
    a(f"v_and_b32 {v(T4)}, 1, {v(T0)}")
    a(f"v_lshl_or_b32 {v(T4)}, {v(T4)}, 2, {v(T1)}")
    a("s_and_b32 s72, s58, 1")
    a("s_lshl_b32 s72, s72, 2")
    a(f"v_xor_b32 {v(T5)}, s72, {v(T4)}")
    a(f"v_lshlrev_b32 {v(T5)}, 5, {v(T5)}")
    a(f"v_lshl_add_u32 {v(T5)}, {v(T3)}, 9, {v(T5)}")
    a(f"v_lshl_add_u32 {v(T5)}, {v(T2)}, 3, {v(T5)}")
    a("s_lshr_b32 s72, s58, 1")
    a("s_lshl_b32 s72, s72, 8")
    a(f"s_add_u32 s72, s72, {RING_LDS}")
    a(f"v_add_u32 {v(T5)}, s72, {v(T5)}")
    for rt in range(4):
        a(f"v_xor_b32 {v(vT1+rt)}, {rt<<5}, {v(T5)}")
    a("s_lshl_b32 s72, s58, 1")
    a(f"v_xor_b32 {v(T5)}, s72, {v(T4)}")
    a(f"v_lshlrev_b32 {v(T5)}, 5, {v(T5)}")
    a(f"v_lshl_add_u32 {v(T5)}, {v(T2)}, 3, {v(T5)}")
    a(f"v_add_u32 {v(T5)}, {RING_LDS}, {v(T5)}")
    a(f"v_lshl_add_u32 {v(vTA)}, {v(T3)}, 9, {v(T5)}")
    a(f"v_xor_b32 {v(vTA+1)}, 32, {v(vTA)}")
    a(f"v_and_b32 {v(T1)}, 15, v2")
    a(f"v_and_b32 {v(T2)}, 3, v2")
    a(f"v_xor_b32 {v(T2)}, {v(T2)}, {v(T0)}")
    a(f"v_lshlrev_b32 {v(T2)}, 4, {v(T2)}")
    a(f"v_lshl_add_u32 {v(T2)}, {v(T1)}, 9, {v(T2)}")
    a(f"v_bfe_u32 {v(T3)}, v2, 2, 2")
    a(f"v_lshl_add_u32 {v(T2)}, {v(T3)}, 6, {v(T2)}")
    a(f"s_mul_i32 s72, s59, {48*512}")
    a(f"v_add_u32 {v(T2)}, s72, {v(T2)}")
    for j in range(4):
        a(f"v_xor_b32 {v(vB+j)}, {j<<6}, {v(T2)}")
    a(f"v_lshrrev_b32 {v(T3)}, 1, {v(T0)}")
    a("s_lshl_b32 s73, s58, 3")
    a(f"v_add_u32 {v(T3)}, s73, {v(T3)}")
    a(f"v_xor_b32 {v(T3)}, {v(T3)}, {v(T1)}")
    a(f"v_lshlrev_b32 {v(T3)}, 4, {v(T3)}")
    a(f"v_lshl_add_u32 {v(T3)}, {v(T1)}, 9, {v(T3)}")
    a(f"v_and_b32 {v(T4)}, 1, {v(T0)}")
    a(f"v_lshl_add_u32 {v(vHW)}, {v(T4)}, 3, {v(T3)}")
    a(f"v_add_u32 {v(vHW)}, s72, {v(vHW)}")
    a(f"v_lshrrev_b32 {v(T3)}, 1, {v(T0)}")
    a("s_lshl_b32 s73, s58, 2")
    a(f"v_add_u32 {v(T3)}, s73, {v(T3)}")
    a(f"v_xor_b32 {v(T3)}, {v(T3)}, {v(T1)}")
    a(f"v_lshlrev_b32 {v(T3)}, 4, {v(T3)}")
    a(f"v_lshl_add_u32 {v(T3)}, {v(T1)}, 8, {v(T3)}")
    a(f"v_lshl_add_u32 {v(vVX)}, {v(T4)}, 3, {v(T3)}")
    a(f"s_mul_i32 s73, s59, {48*256}")
    a(f"s_add_u32 s73, s73, {VX_LDS}")
    a(f"v_add_u32 {v(vVX)}, s73, {v(vVX)}")
    a("s_mul_i32 s69, s59, 48")
    a("s_add_u32 s69, s69, s57")
    a("s_lshl_b32 s71, s60, 2")
    a("s_add_u32 s71, s71, s58")
    a(f"s_mul_i32 s71, s71, {SLICEB}")
    a(f"v_and_b32 {v(T3)}, 7, v2")
    a(f"v_add_u32 {v(T3)}, s69, {v(T3)}")
    a(f"v_mul_u32_u24 {v(vST)}, {ROWB}, {v(T3)}")
    a(f"v_bfe_u32 {v(T3)}, v2, 3, 1")
    a(f"v_lshl_add_u32 {v(T3)}, {v(T3)}, 2, {v(T0)}")
    a(f"v_lshl_add_u32 {v(vST)}, {v(T3)}, 4, {v(vST)}")
    a(f"v_add_u32 {v(vST)}, s71, {v(vST)}")

    def passB_addr_dma():
        t0, t1, t2 = vT, vT+1, vT+2
        return [f"v_lshrrev_b32 {v(t0)}, 4, v2", f"v_add_u32 {v(t0)}, s62, {v(t0)}",
                f"v_and_b32 {v(t1)}, 3, {v(t0)}", f"v_bfe_u32 {v(t2)}, {v(t0)}, 3, 1", f"v_lshl_or_b32 {v(t1)}, {v(t2)}, 2, {v(t1)}",
                f"v_lshlrev_b32 {v(t1)}, 1, {v(t1)}", f"v_and_b32 {v(t2)}, 15, v2", f"v_xor_b32 {v(t1)}, {v(t1)}, {v(t2)}",
                f"v_mul_u32_u24 {v(vWB)}, 1536, {v(t0)}", f"v_lshl_add_u32 {v(vWB)}, {v(t1)}, 4, {v(vWB)}",
                f"v_add_u32 {v(vWB)}, s63, {v(vWB)}", f"v_add_u32 {v(vWB)}, 1024, {v(vWB)}"]
    def passB_addr_tr():
        t0, t1 = vT, vT+1
        return [f"v_lshrrev_b32 {v(t0)}, 4, v2", f"v_bfe_u32 {v(t1)}, v2, 2, 2", f"v_lshl_add_u32 {v(t0)}, {v(t0)}, 3, {v(t1)}",
                f"v_lshlrev_b32 {v(t0)}, 8, {v(t0)}", f"v_sub_u32 {v(vTB)}, {v(vTA)}, {v(t0)}", f"v_xor_b32 {v(vTB+1)}, 32, {v(vTB)}"]

    def tr_reads(n):
        k = kind(n); slot = slot_addr(n) - RING_LDS; buf = vA[n & 1]
        out = []
        if 4 <= n < 6:
            slot -= 65536
            if n == 4:
                for rt in range(4): out.append(f"v_add_u32 {v(vT1+rt)}, 0x10000, {v(vT1+rt)}")
        if n == 6:
            for rt in range(4): out.append(f"v_subrev_u32 {v(vT1+rt)}, 0x10000, {v(vT1+rt)}")
        if k == 0:
            for rt in range(4):
                out.append(f"ds_read_b64_tr_b16 {v(buf+rt*4,2)}, {v(vT1+rt)} offset:{slot}")
                out.append(f"ds_read_b64_tr_b16 {v(buf+rt*4+2,2)}, {v(vT1+rt)} offset:{slot+4*512}")
        elif k == 1:
            for p in range(2):
                for u in range(2):
                    rt = p*2+u
                    out.append(f"ds_read_b64_tr_b16 {v(buf+rt*4,2)}, {v(vTA+u)} offset:{slot+p*256}")
                    out.append(f"ds_read_b64_tr_b16 {v(buf+rt*4+2,2)}, {v(vTA+u)} offset:{slot+p*256+4*512}")
        else:
            for u in range(2):
                out.append(f"ds_read_b64_tr_b16 {v(buf+u*4,2)}, {v(vTB+u)} offset:{slot}")
                out.append(f"ds_read_b64_tr_b16 {v(buf+u*4+2,2)}, {v(vTB+u)} offset:{slot+4*256}")
        return out
    def bf_reads(n):
        ks = ks_of(n); buf = vBf[n & 1]
        return [f"ds_read_b128 {v(buf+4*t,4)}, {v(vB+(ks&3))} offset:{t*8192 + (ks>>2)*256}" for t in range(3)]

    def silu_pair(tiles):
        out = []
        TX = [vX, vX + 4]
        A = [acc1(rt, t) for rt, t in tiles]
        for i in range(2):
            for r in range(4): out.append(f"v_mul_f32 {v(TX[i]+r)}, 0xbfb8aa3b, {v(A[i]+r)}")
        for i in range(2):
            for r in range(4): out.append(f"v_exp_f32 {v(TX[i]+r)}, {v(TX[i]+r)}")
        for i in range(2):
            for r in range(4): out.append(f"v_add_f32 {v(TX[i]+r)}, 1.0, {v(TX[i]+r)}")
        for i in range(2):
            for r in range(4): out.append(f"v_rcp_f32 {v(TX[i]+r)}, {v(TX[i]+r)}")
        for i in range(2):
            for r in range(4): out.append(f"v_mul_f32 {v(TX[i]+r)}, {v(TX[i]+r)}, {v(A[i]+r)}")
        for i, (rt, t) in enumerate(tiles):
            P = vX + 8 + 2*i
            out.append(f"v_cvt_pk_bf16_f32 {v(P)}, {v(TX[i])}, {v(TX[i]+1)}")
            out.append(f"v_cvt_pk_bf16_f32 {v(P+1)}, {v(TX[i]+2)}, {v(TX[i]+3)}")
            out.append(f"v_xor_b32 {v(vT+i)}, {rt<<5}, {v(vHW)}")
            out.append(f"ds_write_b64 {v(vT+i)}, {v(P,2)} offset:{t*8192}")
        return out
    def silu_half(rts):
        tl = [(rt, t) for rt in rts for t in range(3)]
        out = []
        for i in range(0, 6, 2): out.append(silu_pair(tl[i:i+2]))
        return out

    def dpp_swap_store(X0, X1, TM, line, t):
        out = []
        for r in range(4):
            out.append(f"v_mov_b32_dpp {v(TM+r)}, {v(X0+r)} row_ror:8 row_mask:0xf bank_mask:0xf")
        for r in range(4):
            out.append(f"v_mov_b32_dpp {v(X0+r)}, {v(X1+r)} row_ror:8 row_mask:0xf bank_mask:0xc")
        for r in range(4):
            out.append(f"v_mov_b32_dpp {v(X1+r)}, {v(TM+r)} quad_perm:[0,1,2,3] row_mask:0xf bank_mask:0x3")
        out.append(f"s_mov_b32 s72, {t*16*ROWB}")
        if not opt.get('exp_nostore'):
            out.append((f"buffer_store_dwordx4 {v(X0,4)}, {v(vST)}, {s(TAB,4)}, s72 offen offset:{line*128} {tf}", ('ST', line, t, 0)))
            out.append((f"buffer_store_dwordx4 {v(X1,4)}, {v(vST)}, {s(TAB,4)}, s72 offen offset:{line*128 + 8*ROWB} {tf}", ('ST', line, t, 1)))
        return out
    X0, X1, TM = vX, vX + 4, vX + 8
    def line0_epi(t):
        out = []
        for u, X in ((0, X0), (1, X1)):
            S_ = accA(0*2+u, t); V_ = accA(1*2+u, t)
            out.append(f"v_cvt_pk_bf16_f32 {v(X)}, {v(S_)}, {v(S_+1)}")
            out.append(f"v_cvt_pk_bf16_f32 {v(X+1)}, {v(S_+2)}, {v(S_+3)}")
            out.append(f"v_cvt_pk_bf16_f32 {v(X+2)}, {v(V_)}, {v(V_+1)}")
            out.append(f"v_cvt_pk_bf16_f32 {v(X+3)}, {v(V_+2)}, {v(V_+3)}")
        out.append("s_nop 1")
        out += dpp_swap_store(X0, X1, TM, 0, t)
        out.append("s_nop 1")
        return out
    def line1_epi(t):
        out = []
        out.append(f"ds_read_b64 {v(X0+2,2)}, {v(vVX)} offset:{t*16*256}")
        out.append(f"v_xor_b32 {v(vT)}, 32, {v(vVX)}")
        out.append(f"ds_read_b64 {v(X1+2,2)}, {v(vT)} offset:{t*16*256}")
        for u, X in ((0, X0), (1, X1)):
            Rr = accB(u, t)
            out.append(f"v_cvt_pk_bf16_f32 {v(X)}, {v(Rr)}, {v(Rr+1)}")
            out.append(f"v_cvt_pk_bf16_f32 {v(X+1)}, {v(Rr+2)}, {v(Rr+3)}")
        out.append("s_waitcnt lgkmcnt(0)")
        out.append("s_nop 0")
        out += dpp_swap_store(X0, X1, TM, 1, t)
        out.append("s_nop 1")
        return out

    a(f"s_waitcnt vmcnt({vm_after(('C',5))})")
    st(a, opt, 0)
    lsignal(a, 0, vT, vT+1)
    lspin(a, 0, 8, "L_g_sp1", vT, vT+1)
    for x in tr_reads(0): a(x)
    for x in bf_reads(0): a(x)

    extra = {n: [] for n in range(NST)}
    sil2 = silu_half((2, 3))
    if not opt.get('exp_nosilu2'):
        for i in range(3): extra[8 + i] += sil2[i]
    def g_vx(i):
        def f():
            t0, t1, t2 = vT, vT+1, vT+2
            a("s_mul_i32 s72, s56, 12")
            a(f"s_add_u32 s72, s72, {4*i}")
            a(f"v_lshrrev_b32 {v(t0)}, 4, v2")
            a(f"v_add_u32 {v(t0)}, s72, {v(t0)}")
            a(f"v_and_b32 {v(t1)}, 15, {v(t0)}")
            a(f"v_and_b32 {v(t2)}, 15, v2")
            a(f"v_xor_b32 {v(t1)}, {v(t1)}, {v(t2)}")
            a(f"v_add_u32 {v(t0)}, s57, {v(t0)}")
            a(f"v_lshlrev_b32 {v(t0)}, 11, {v(t0)}")
            a(f"v_lshl_add_u32 {v(t0)}, {v(t1)}, 4, {v(t0)}")
            a(f"v_add_u32 {v(t0)}, s63, {v(t0)}")
            a(f"v_add_u32 {v(t0)}, 512, {v(t0)}")
            a("s_lshl_b32 s72, s72, 8")
            a(f"s_add_u32 s72, s72, {VX_LDS}")
            a("s_mov_b32 m0, s72")
            a("s_nop 0")
            a(f"buffer_load_dwordx4 {v(t0)}, {s(SV,4)}, 0 offen lds"); vm.append(('VX', i))
        return f
    for i in range(3): extra[12 + i].append(g_vx(i))
    extra[11] += passB_addr_dma()
    extra[13] += passB_addr_tr()
    l0 = line0_epi(0) + line0_epi(1) + line0_epi(2)
    per = (len(l0) + 6) // 7
    for k in range(7): extra[17 + k] += l0[k*per:(k+1)*per]

    for n in range(NST):
        k = kind(n); buf = vA[n & 1]; bb = vBf[n & 1]
        first = (n & 7) == 0
        a.c(f"--- step {n} (ks {ks_of(n)})")
        a("s_waitcnt lgkmcnt(0)")
        if n == 0: st(a, opt, 1)
        if n == 8: st(a, opt, 3)
        if n == 16: st(a, opt, 4)
        mf = []
        nrt = 4 if k < 2 else 2
        for rt in range(nrt):
            for t in range(3):
                A = acc1(rt, t) if k == 0 else (accA(rt, t) if k == 1 else accB(rt, t))
                cc = "0" if first else v(A, 4)
                mf.append(f"v_mfma_f32_16x16x32_bf16 {v(A,4)}, {v(buf+rt*4,4)}, {v(bb+4*t,4)}, {cc}")
        npre = 2 if k < 2 else 1
        for m in mf[:npre]: a(m)
        side = []
        if n < 7:
            if n == 1: lsignal(a, 1, vT, vT+1)
            if n == 2:
                lspin(a, 1, 8, "L_g_sp2", vT, vT+1)
                side += issue_chunk(6) + issue_chunk(7)
            if n == 4:
                a(f"s_waitcnt vmcnt({vm_after(('C', 7))})")
                lsignal(a, 2, vT, vT+1)
            if n == 5: lspin(a, 2, 8, "L_g_sp3", vT, vT+1)
            side = tr_reads(n + 1) + bf_reads(n + 1) + side
        elif n == 7:
            lsignal(a, 3, vT, vT+1)
        elif n + 1 < NST:
            if not PBRES or n < 15:
                a(f"s_waitcnt vmcnt({vm_after(('C', n+1))})")
                a("s_barrier")
            elif n == 15:
                a(f"s_waitcnt vmcnt({vm_after(('C', 17))})")
                a("s_barrier")
            elif n == 16:
                a(f"s_waitcnt vmcnt({vm_after(('C', 23))})")
                a("s_barrier")
            side += tr_reads(n + 1)
            side += bf_reads(n + 1)
            if not opt.get('exp_nodma'):
                if not PBRES:
                    if n + 4 < NST: side += issue_chunk(n + 4)
                elif n < 12:
                    side += issue_chunk(n + 4)
                elif n < 16:
                    side += issue_chunk(16 + 2*(n-12)) + issue_chunk(17 + 2*(n-12))
        side += extra[n]
        rest = mf[npre:]
        kk = 0
        nper = (len(side) + len(rest) - 1) // len(rest)
        for m in rest:
            a(m)
            for x in side[kk:kk+nper]: emit(x)
            kk += nper
        for x in side[kk:]: emit(x)
        if n == 7:
            lspin(a, 3, 8, "L_g_sp4", vT, vT+1)
            for m in range(8, 12):
                for x in issue_chunk(m): emit(x)
            st(a, opt, 2)
            for grp in silu_half((0, 1)):
                for x in grp: a(x)
            a(f"s_waitcnt vmcnt({vm_after(('C', 8))}) lgkmcnt(0)")
            a("s_barrier")
            for x in tr_reads(8): a(x)
            for x in bf_reads(8): a(x)
    a("s_nop 7"); a("s_nop 1")
    st(a, opt, 5)
    a(f"s_waitcnt vmcnt({vm_after(('VX', 2))})")
    a("s_barrier")
    for t in range(3):
        for x in line1_epi(t): emit(x)
    if opt.get('fused'):
        a("s_waitcnt vmcnt(0)")
        if opt.get('stamps'): a("s_memrealtime s[14:15]")
        a("s_barrier")
        a("s_cmp_eq_u32 s56, 0")
        a("s_cbranch_scc0 L_phaseB")
        if opt.get('wbl2'):
            a("buffer_wbl2 sc1")
            a("s_waitcnt vmcnt(0)")
            if opt.get('stamps'): a("s_memrealtime s[12:13]")
        a("s_mov_b64 exec, 1")
        a("v_mov_b32 v3, 1")
        a(f"v_mov_b32 v4, {TBL_DBG}")
        a(f"global_atomic_add v4, v3, s[{P_DBG}:{P_DBG+1}]")
        a("s_mov_b64 exec, -1")
        a("s_branch L_phaseB")
    else:
        stamp_end(a, opt, 0, 'g')
        a("s_endpgm")

    a.label("L_copy_role")
    a("s_sub_u32 s58, s56, 8")
    vm2 = []
    def vm2_after(tag):
        idx = max(i for i, x in enumerate(vm2) if x == tag)
        return len(vm2) - 1 - idx
    vS, vD, vQ = 3, 4, 5
    vStg = 8
    a("s_lshr_b32 s73, s58, 1")
    a("s_mul_i32 s73, s73, 48")
    a("s_add_u32 s73, s73, s57")
    a("v_lshrrev_b32 v6, 4, v2")
    a("v_add_u32 v6, s73, v6")
    a("v_and_b32 v7, 15, v2")
    a(f"v_lshlrev_b32 {v(vS)}, 11, v6")
    a(f"v_lshl_add_u32 {v(vS)}, v7, 3, {v(vS)}")
    a("s_and_b32 s70, s58, 1")
    a("s_lshl_b32 s70, s70, 7")
    a("s_add_u32 s70, s70, s63")
    a(f"v_add_u32 {v(vS)}, s70, {v(vS)}")
    a("s_lshl_b32 s71, s60, 2")
    a("s_and_b32 s74, s58, 1")
    a("s_lshl_b32 s74, s74, 1")
    a("s_add_u32 s71, s71, s74")
    a(f"s_mul_i32 s71, s71, {SLICEB}")
    a(f"v_mul_u32_u24 {v(vD)}, {ROWB}, v6")
    a("v_and_b32 v7, 7, v2")
    a(f"v_lshl_add_u32 {v(vD)}, v7, 4, {v(vD)}")
    a(f"v_add_u32 {v(vD)}, s71, {v(vD)}")
    a("v_bfe_u32 v7, v2, 3, 1")
    a(f"s_mov_b32 s74, {SLICEB}")
    a("v_mul_lo_u32 v7, v7, s74")
    a(f"v_add_u32 {v(vD)}, {v(vD)}, v7")
    def c_vx(i, prefetch=False):
        a("s_mul_i32 s72, s58, 24")
        a(f"s_add_u32 s72, s72, {4*i}")
        a("v_lshrrev_b32 v6, 4, v2")
        a("v_add_u32 v6, s72, v6")
        a("v_and_b32 v7, 15, v6")
        a(f"v_and_b32 {v(vQ)}, 15, v2")
        a(f"v_xor_b32 v7, v7, {v(vQ)}")
        a("v_add_u32 v6, s57, v6")
        a("v_lshlrev_b32 v6, 11, v6")
        a("v_lshl_add_u32 v6, v7, 4, v6")
        a("v_add_u32 v6, s63, v6")
        a("v_add_u32 v6, 512, v6")
        if prefetch:
            a(f"buffer_load_dwordx4 v[{56+4*i}:{59+4*i}], v6, {s(SV,4)}, 0 offen {vf}"); vm2.append(('VXP', i))
            return
        a("s_lshl_b32 s72, s72, 8")
        a(f"s_add_u32 s72, s72, {VX_LDS}")
        a("s_mov_b32 m0, s72")
        a("s_nop 0")
        a(f"buffer_load_dwordx4 v6, {s(SV,4)}, 0 offen lds"); vm2.append(('VX', i))
    def c_load(i):
        a(f"s_mov_b32 s72, {i*4*2048}")
        a(f"buffer_load_dwordx2 {v(vStg+4*i,2)}, {v(vS)}, {s(SV,4)}, s72 offen offset:1024 {vf}"); vm2.append(('a', i))
        a(f"buffer_load_dwordx2 {v(vStg+4*i+2,2)}, {v(vS)}, {s(SV,4)}, s72 offen offset:1536 {vf}"); vm2.append(('b', i))
    def c_store(i):
        a(f"s_waitcnt vmcnt({vm2_after(('b', i))})")
        a(f"s_mov_b32 s72, {i*4*ROWB}")
        a(f"buffer_store_dwordx4 {v(vStg+4*i,4)}, {v(vD)}, {s(TAB,4)}, s72 offen offset:256 {l2f}"); vm2.append(('s', i))
    a("s_waitcnt lgkmcnt(0)")
    a("s_barrier")
    for i in range(12): c_load(i)
    for i in range(6): c_vx(i, prefetch=True)
    for i in range(12): c_store(i)
    if opt.get('fused'):
        for i in range(17): a("s_barrier")
        a("s_waitcnt vmcnt(0)")
        a("s_barrier")
        a("s_branch L_phaseB")
    else:
        stamp_end(a, opt, 0, 'c')
        a("s_endpgm")
```

```python
from asmlib import *
import k1
from k1 import load_kernargs, stamp_begin, st, stamp_end, P_SV, P_POS, P_SRC, P_DST, P_FRQ, P_W1, P_W2, P_WR, P_OUT, P_DBG, P_WS, N, E
from k1w import NCH, NTILE, NGEMM, ROWB, NROWS, SLICEB, TAB_OFF, TAB_SIZE, SH_LDS, RING_LDS, NS, SLOTB, VX_LDS, K1_LDS

EDG_DBG = 128
TBL_DBG = 192
KSA = [0, 2, 4, 6, 1, 3, 5, 7]
NST = 24
XLDS = VX_LDS
SYNC_LDS = XLDS + 2 * SLOTB
K1_LDS3 = SYNC_LDS + 64
def slot_addr(n):
    if n < 4: return RING_LDS + n * SLOTB
    if n < 6: return XLDS + (n - 4) * SLOTB
    if n < 8: return RING_LDS + (n - 6) * SLOTB
    if n < 16: return RING_LDS + ((n - 8) >> 1) * SLOTB + ((n - 8) & 1) * 8192
    return RING_LDS + ((n - 16) % 4) * SLOTB

def lsignal(a, idx, vt, v1_):
    a("s_mov_b64 exec, 1")
    a(f"v_mov_b32 {v(vt)}, {SYNC_LDS + 4*idx}")
    a(f"v_mov_b32 {v(v1_)}, 1")
    a(f"ds_add_u32 {v(vt)}, {v(v1_)}")
    a("s_mov_b64 exec, -1")
def lspin(a, idx, target, lbl, vt, v1_):
    a(f"v_mov_b32 {v(vt)}, {SYNC_LDS + 4*idx}")
    a.label(lbl)
    a(f"ds_read_b32 {v(v1_)}, {v(vt)}")
    a("s_waitcnt lgkmcnt(0)")
    a(f"v_readfirstlane_b32 s74, {v(v1_)}")
    a(f"s_cmp_ge_u32 s74, {target}")
    a(f"s_cbranch_scc0 {lbl}")

def gemm_role(a, opt):
    SV, W1, W2, TAB = 40, 44, 48, 52
    tf = opt.get('tab_store_flags', '')
    l2f = opt.get('l2_store_flags', '')
    vf = opt.get('v_flags', 'nt')
    a.c("===== GEMM role (W v2) =====")
    a(f"s_sub_u32 s60, s2, {NCH}")
    if opt.get('xmap', '1') == '1':
        a("s_lshr_b32 s61, s60, 3")
        a("s_lshl_b32 s61, s61, 2")
        a("s_and_b32 s62, s60, 3")
        a("s_add_u32 s61, s61, s62")
        a("s_lshr_b32 s62, s60, 2")
        a("s_and_b32 s62, s62, 1")
        a("s_cmp_ge_u32 s60, 208")
        a("s_cselect_b32 s61, 104, s61")
        a("s_and_b32 s60, s60, 1")
        a("s_cselect_b32 s60, s60, s62") if False else None
        a(f"s_sub_u32 s63, s2, {NCH}")
        a("s_cmp_ge_u32 s63, 208")
        a("s_cselect_b32 s60, s60, s62")
    else:
        a("s_lshr_b32 s61, s60, 1")
        a("s_and_b32 s60, s60, 1")
    a("s_mul_i32 s57, s61, 96")
    a("v_lshrrev_b32 v1, 6, v0")
    a("v_and_b32 v2, 63, v0")
    a("s_lshl_b32 s63, s60, 8")
    a("s_waitcnt lgkmcnt(0)")
    a("v_readfirstlane_b32 s56, v1")
    srd(a, SV, P_SV, N * 2048)
    srd(a, TAB, P_WS, TAB_SIZE, TAB_OFF)
    a("v_mov_b32 v3, 0")
    a(f"v_mov_b32 v4, {SYNC_LDS}")
    a("v_mov_b32 v5, 0")
    a("ds_write_b64 v4, v[2:3]") if False else None
    a("v_mov_b32 v6, 0"); a("v_mov_b32 v7, 0"); a("v_mov_b32 v8, 0"); a("v_mov_b32 v9, 0")
    a("ds_write_b128 v4, v[6:9]")
    a("ds_write_b128 v4, v[6:9] offset:16")
    a("s_cmp_ge_u32 s56, 8")
    a("s_cbranch_scc1 L_copy_role")
    delay(a, opt.get('d_gemm'), "L_d_gemm")
    srd(a, W1, P_W1, 256 * 512)
    srd(a, W2, P_W2, 256 * 1536)
    a("s_and_b32 s58, s56, 3")
    a("s_lshr_b32 s59, s56, 2")
    R = Regs(3, 168)
    vW1 = R.alloc(2); vWA = R.alloc(2); vT1 = R.alloc(4); vTA = R.alloc(2)
    vB = R.alloc(4); vHW = R.alloc(1); vVX = R.alloc(1); vST = R.alloc(1)
    vT = R.alloc(4, 4)
    vX = R.alloc(12, 4)
    vA = [R.alloc(16, 4), R.alloc(16, 4)]
    vBf = [R.alloc(12, 4), R.alloc(12, 4)]
    vAcc = R.alloc(48, 4)
    vAcB = R.alloc(24, 4)
    vWB = vW1; vTB = vT1
    def acc1(rt, t): return vAcc + (rt * 3 + t) * 4
    def accA(rt, t): return vAcc + (rt * 3 + t) * 4
    def accB(u, t): return vAcB + (u * 3 + t) * 4
    vm = []
    def vm_after(tag):
        if tag not in vm: return 63
        idx = max(i for i, x in enumerate(vm) if x == tag)
        return len(vm) - 1 - idx
    T0, T1, T2, T3, T4, T5 = [vAcc + i for i in range(6)]

    a(f"v_lshrrev_b32 {v(T0)}, 5, v2")
    a(f"v_and_b32 {v(T1)}, 31, v2")
    a("s_mul_i32 s62, s56, 6")
    for i in range(6):
        a(f"s_add_u32 s64, s62, {i}")
        a("s_lshl_b32 s65, s64, 1")
        a(f"v_add_u32 {v(T2)}, s65, {v(T0)}")
        a(f"v_and_b32 {v(T3)}, 15, {v(T2)}")
        a(f"v_xor_b32 {v(T3)}, {v(T3)}, {v(T1)}")
        a(f"v_add_u32 {v(T2)}, s57, {v(T2)}")
        a(f"v_lshlrev_b32 {v(T2)}, 11, {v(T2)}")
        a(f"v_lshl_add_u32 {v(T2)}, {v(T3)}, 4, {v(T2)}")
        a("s_lshl_b32 s65, s64, 10")
        a("s_mov_b32 m0, s65")
        a("s_nop 0")
        a(f"buffer_load_dwordx4 {v(T2)}, {s(SV,4)}, 0 offen {opt.get('s_flags','')} lds")
        vm.append(('S', i))
    def fbits(dst, row, tmp):
        a(f"v_and_b32 {v(dst)}, 3, {v(row)}")
        a(f"v_bfe_u32 {v(tmp)}, {v(row)}, 3, 1")
        a(f"v_lshl_or_b32 {v(dst)}, {v(tmp)}, 2, {v(dst)}")
    a("s_lshl_b32 s62, s56, 2")
    for i in range(2):
        a(f"v_add_u32 {v(T2)}, s62, {v(T0)}")
        if i: a(f"v_add_u32 {v(T2)}, 2, {v(T2)}")
        fbits(T3, T2, T5)
        a(f"v_lshlrev_b32 {v(T3)}, 1, {v(T3)}")
        a(f"v_xor_b32 {v(T3)}, {v(T3)}, {v(T1)}")
        a(f"v_lshlrev_b32 {v(T4)}, 4, {v(T3)}")
        a(f"v_lshl_add_u32 {v(vW1+i)}, {v(T2)}, 9, {v(T4)}")
        if i: a(f"v_subrev_u32 {v(vW1+i)}, 1024, {v(vW1+i)}")
        a(f"v_mul_u32_u24 {v(vWA+i)}, 1536, {v(T2)}")
        a(f"v_lshrrev_b32 {v(T4)}, 4, {v(T3)}")
        a(f"v_lshl_add_u32 {v(vWA+i)}, {v(T4)}, 9, {v(vWA+i)}")
        a(f"v_and_b32 {v(T4)}, 15, {v(T3)}")
        a(f"v_lshl_add_u32 {v(vWA+i)}, {v(T4)}, 4, {v(vWA+i)}")
        a(f"v_add_u32 {v(vWA+i)}, s63, {v(vWA+i)}")
        if i: a(f"v_subrev_u32 {v(vWA+i)}, 1024, {v(vWA+i)}")
    a("s_lshl_b32 s65, s56, 11")
    a("s_lshl_b32 s66, s56, 10")
    def kind(n): return (0, 2, 1)[n // 8]
    def ks_of(n): return n & 7
    def issue_chunk(n):
        k = kind(n); ks = ks_of(n)
        slot = slot_addr(n)
        out = []
        if k < 2:
            out.append(f"s_add_u32 s67, s65, {slot}")
            out.append("s_mov_b32 m0, s67")
            out.append(f"s_mov_b32 s68, {ks * 16384 if k == 0 else ks * 49152}")
            for i in range(2):
                if k == 0:
                    out.append((f"buffer_load_dwordx4 {v(vW1+i)}, {s(W1,4)}, s68 offen offset:{i*1024} {opt.get('w_flags','')} lds", ('C', n)))
                else:
                    out.append((f"buffer_load_dwordx4 {v(vWA+i)}, {s(W2,4)}, s68 offen offset:{i*1024} {opt.get('w_flags','')} lds", ('C', n)))
        else:
            out.append(f"s_add_u32 s67, s66, {slot}")
            out.append("s_mov_b32 m0, s67")
            out.append(f"s_mov_b32 s68, {ks * 49152}")
            out.append((f"buffer_load_dwordx4 {v(vWB)}, {s(W2,4)}, s68 offen {opt.get('w_flags','')} lds", ('C', n)))
        return out
    def emit(x):
        if isinstance(x, tuple):
            a(x[0]); vm.append(x[1])
        elif callable(x):
            x()
        else:
            a(x)
    for n in range(6):
        for x in issue_chunk(n): emit(x)
    a("s_waitcnt lgkmcnt(0)")
    a("s_barrier")
    a(f"v_lshrrev_b32 {v(T0)}, 4, v2")
    a(f"v_bfe_u32 {v(T1)}, v2, 2, 2")
    a(f"v_and_b32 {v(T2)}, 3, v2")
    a(f"v_lshl_add_u32 {v(T3)}, {v(T0)}, 3, {v(T1)}")
    a(f"v_and_b32 {v(T4)}, 1, {v(T0)}")
    a(f"v_lshl_or_b32 {v(T4)}, {v(T4)}, 2, {v(T1)}")
    a("s_and_b32 s72, s58, 1")
    a("s_lshl_b32 s72, s72, 2")
    a(f"v_xor_b32 {v(T5)}, s72, {v(T4)}")
    a(f"v_lshlrev_b32 {v(T5)}, 5, {v(T5)}")
    a(f"v_lshl_add_u32 {v(T5)}, {v(T3)}, 9, {v(T5)}")
    a(f"v_lshl_add_u32 {v(T5)}, {v(T2)}, 3, {v(T5)}")
    a("s_lshr_b32 s72, s58, 1")
    a("s_lshl_b32 s72, s72, 8")
    a(f"s_add_u32 s72, s72, {RING_LDS}")
    a(f"v_add_u32 {v(T5)}, s72, {v(T5)}")
    for rt in range(4):
        a(f"v_xor_b32 {v(vT1+rt)}, {rt<<5}, {v(T5)}")
    a("s_lshl_b32 s72, s58, 1")
    a(f"v_xor_b32 {v(T5)}, s72, {v(T4)}")
    a(f"v_lshlrev_b32 {v(T5)}, 5, {v(T5)}")
    a(f"v_lshl_add_u32 {v(T5)}, {v(T2)}, 3, {v(T5)}")
    a(f"v_add_u32 {v(T5)}, {RING_LDS}, {v(T5)}")
    a(f"v_lshl_add_u32 {v(vTA)}, {v(T3)}, 9, {v(T5)}")
    a(f"v_xor_b32 {v(vTA+1)}, 32, {v(vTA)}")
    a(f"v_and_b32 {v(T1)}, 15, v2")
    a(f"v_and_b32 {v(T2)}, 3, v2")
    a(f"v_xor_b32 {v(T2)}, {v(T2)}, {v(T0)}")
    a(f"v_lshlrev_b32 {v(T2)}, 4, {v(T2)}")
    a(f"v_lshl_add_u32 {v(T2)}, {v(T1)}, 9, {v(T2)}")
    a(f"v_bfe_u32 {v(T3)}, v2, 2, 2")
    a(f"v_lshl_add_u32 {v(T2)}, {v(T3)}, 6, {v(T2)}")
    a(f"s_mul_i32 s72, s59, {48*512}")
    a(f"v_add_u32 {v(T2)}, s72, {v(T2)}")
    for j in range(4):
        a(f"v_xor_b32 {v(vB+j)}, {j<<6}, {v(T2)}")
    a(f"v_lshrrev_b32 {v(T3)}, 1, {v(T0)}")
    a("s_lshl_b32 s73, s58, 3")
    a(f"v_add_u32 {v(T3)}, s73, {v(T3)}")
    a(f"v_xor_b32 {v(T3)}, {v(T3)}, {v(T1)}")
    a(f"v_lshlrev_b32 {v(T3)}, 4, {v(T3)}")
    a(f"v_lshl_add_u32 {v(T3)}, {v(T1)}, 9, {v(T3)}")
    a(f"v_and_b32 {v(T4)}, 1, {v(T0)}")
    a(f"v_lshl_add_u32 {v(vHW)}, {v(T4)}, 3, {v(T3)}")
    a(f"v_add_u32 {v(vHW)}, s72, {v(vHW)}")
    a(f"v_lshrrev_b32 {v(T3)}, 1, {v(T0)}")
    a("s_lshl_b32 s73, s58, 2")
    a(f"v_add_u32 {v(T3)}, s73, {v(T3)}")
    a(f"v_xor_b32 {v(T3)}, {v(T3)}, {v(T1)}")
    a(f"v_lshlrev_b32 {v(T3)}, 4, {v(T3)}")
    a(f"v_lshl_add_u32 {v(T3)}, {v(T1)}, 8, {v(T3)}")
    a(f"v_lshl_add_u32 {v(vVX)}, {v(T4)}, 3, {v(T3)}")
    a(f"s_mul_i32 s73, s59, {48*256}")
    a(f"s_add_u32 s73, s73, {VX_LDS}")
    a(f"v_add_u32 {v(vVX)}, s73, {v(vVX)}")
    a("s_mul_i32 s69, s59, 48")
    a("s_add_u32 s69, s69, s57")
    a("s_lshl_b32 s71, s60, 2")
    a("s_add_u32 s71, s71, s58")
    a(f"s_mul_i32 s71, s71, {SLICEB}")
    a(f"v_and_b32 {v(T3)}, 7, v2")
    a(f"v_add_u32 {v(T3)}, s69, {v(T3)}")
    a(f"v_mul_u32_u24 {v(vST)}, {ROWB}, {v(T3)}")
    a(f"v_bfe_u32 {v(T3)}, v2, 3, 1")
    a(f"v_lshl_add_u32 {v(T3)}, {v(T3)}, 2, {v(T0)}")
    a(f"v_lshl_add_u32 {v(vST)}, {v(T3)}, 4, {v(vST)}")
    a(f"v_add_u32 {v(vST)}, s71, {v(vST)}")

    def passB_addr_dma():
        t0, t1, t2 = vT, vT+1, vT+2
        return [f"v_lshrrev_b32 {v(t0)}, 4, v2", f"v_add_u32 {v(t0)}, s62, {v(t0)}",
                f"v_and_b32 {v(t1)}, 3, {v(t0)}", f"v_bfe_u32 {v(t2)}, {v(t0)}, 3, 1", f"v_lshl_or_b32 {v(t1)}, {v(t2)}, 2, {v(t1)}",
                f"v_lshlrev_b32 {v(t1)}, 1, {v(t1)}", f"v_and_b32 {v(t2)}, 15, v2", f"v_xor_b32 {v(t1)}, {v(t1)}, {v(t2)}",
                f"v_mul_u32_u24 {v(vWB)}, 1536, {v(t0)}", f"v_lshl_add_u32 {v(vWB)}, {v(t1)}, 4, {v(vWB)}",
                f"v_add_u32 {v(vWB)}, s63, {v(vWB)}", f"v_add_u32 {v(vWB)}, 1024, {v(vWB)}"]
    def passB_addr_tr():
        t0, t1 = vT, vT+1
        return [f"v_lshrrev_b32 {v(t0)}, 4, v2", f"v_bfe_u32 {v(t1)}, v2, 2, 2", f"v_lshl_add_u32 {v(t0)}, {v(t0)}, 3, {v(t1)}",
                f"v_lshlrev_b32 {v(t0)}, 8, {v(t0)}", f"v_sub_u32 {v(vTB)}, {v(vTA)}, {v(t0)}", f"v_xor_b32 {v(vTB+1)}, 32, {v(vTB)}"]

    def tr_reads(n):
        k = kind(n); slot = slot_addr(n) - RING_LDS; buf = vA[n & 1]
        out = []
        if 4 <= n < 6:
            slot -= 65536
            if n == 4:
                for rt in range(4): out.append(f"v_add_u32 {v(vT1+rt)}, 0x10000, {v(vT1+rt)}")
        if n == 6:
            for rt in range(4): out.append(f"v_subrev_u32 {v(vT1+rt)}, 0x10000, {v(vT1+rt)}")
        if k == 0:
            for rt in range(4):
                out.append(f"ds_read_b64_tr_b16 {v(buf+rt*4,2)}, {v(vT1+rt)} offset:{slot}")
                out.append(f"ds_read_b64_tr_b16 {v(buf+rt*4+2,2)}, {v(vT1+rt)} offset:{slot+4*512}")
        elif k == 1:
            for p in range(2):
                for u in range(2):
                    rt = p*2+u
                    out.append(f"ds_read_b64_tr_b16 {v(buf+rt*4,2)}, {v(vTA+u)} offset:{slot+p*256}")
                    out.append(f"ds_read_b64_tr_b16 {v(buf+rt*4+2,2)}, {v(vTA+u)} offset:{slot+p*256+4*512}")
        else:
            for u in range(2):
                out.append(f"ds_read_b64_tr_b16 {v(buf+u*4,2)}, {v(vTB+u)} offset:{slot}")
                out.append(f"ds_read_b64_tr_b16 {v(buf+u*4+2,2)}, {v(vTB+u)} offset:{slot+4*256}")
        return out
    def bf_reads(n):
        ks = ks_of(n); buf = vBf[n & 1]
        return [f"ds_read_b128 {v(buf+4*t,4)}, {v(vB+(ks&3))} offset:{t*8192 + (ks>>2)*256}" for t in range(3)]

    def silu_pair(tiles):
        out = []
        TX = [vX, vX + 4]
        A = [acc1(rt, t) for rt, t in tiles]
        for i in range(2):
            for r in range(4): out.append(f"v_mul_f32 {v(TX[i]+r)}, 0xbfb8aa3b, {v(A[i]+r)}")
        for i in range(2):
            for r in range(4): out.append(f"v_exp_f32 {v(TX[i]+r)}, {v(TX[i]+r)}")
        for i in range(2):
            for r in range(4): out.append(f"v_add_f32 {v(TX[i]+r)}, 1.0, {v(TX[i]+r)}")
        for i in range(2):
            for r in range(4): out.append(f"v_rcp_f32 {v(TX[i]+r)}, {v(TX[i]+r)}")
        for i in range(2):
            for r in range(4): out.append(f"v_mul_f32 {v(TX[i]+r)}, {v(TX[i]+r)}, {v(A[i]+r)}")
        for i, (rt, t) in enumerate(tiles):
            P = vX + 8 + 2*i
            out.append(f"v_cvt_pk_bf16_f32 {v(P)}, {v(TX[i])}, {v(TX[i]+1)}")
            out.append(f"v_cvt_pk_bf16_f32 {v(P+1)}, {v(TX[i]+2)}, {v(TX[i]+3)}")
            out.append(f"v_xor_b32 {v(vT+i)}, {rt<<5}, {v(vHW)}")
            out.append(f"ds_write_b64 {v(vT+i)}, {v(P,2)} offset:{t*8192}")
        return out
    def silu_half(rts):
        tl = [(rt, t) for rt in rts for t in range(3)]
        out = []
        for i in range(0, 6, 2): out.append(silu_pair(tl[i:i+2]))
        return out

    def dpp_swap_store(X0, X1, TM, line, t):
        out = []
        for r in range(4):
            out.append(f"v_mov_b32_dpp {v(TM+r)}, {v(X0+r)} row_ror:8 row_mask:0xf bank_mask:0xf")
        for r in range(4):
            out.append(f"v_mov_b32_dpp {v(X0+r)}, {v(X1+r)} row_ror:8 row_mask:0xf bank_mask:0xc")
        for r in range(4):
            out.append(f"v_mov_b32_dpp {v(X1+r)}, {v(TM+r)} quad_perm:[0,1,2,3] row_mask:0xf bank_mask:0x3")
        out.append(f"s_mov_b32 s72, {t*16*ROWB}")
        if not opt.get('exp_nostore'):
            out.append((f"buffer_store_dwordx4 {v(X0,4)}, {v(vST)}, {s(TAB,4)}, s72 offen offset:{line*128} {tf}", ('ST', line, t, 0)))
            out.append((f"buffer_store_dwordx4 {v(X1,4)}, {v(vST)}, {s(TAB,4)}, s72 offen offset:{line*128 + 8*ROWB} {tf}", ('ST', line, t, 1)))
        return out
    X0, X1, TM = vX, vX + 4, vX + 8
    def line0_epi(t):
        out = []
        for u, X in ((0, X0), (1, X1)):
            S_ = accA(0*2+u, t); V_ = accA(1*2+u, t)
            out.append(f"v_cvt_pk_bf16_f32 {v(X)}, {v(S_)}, {v(S_+1)}")
            out.append(f"v_cvt_pk_bf16_f32 {v(X+1)}, {v(S_+2)}, {v(S_+3)}")
            out.append(f"v_cvt_pk_bf16_f32 {v(X+2)}, {v(V_)}, {v(V_+1)}")
            out.append(f"v_cvt_pk_bf16_f32 {v(X+3)}, {v(V_+2)}, {v(V_+3)}")
        out.append("s_nop 1")
        out += dpp_swap_store(X0, X1, TM, 0, t)
        out.append("s_nop 1")
        return out
    def line1_epi(t):
        out = []
        out.append(f"ds_read_b64 {v(X0+2,2)}, {v(vVX)} offset:{t*16*256}")
        out.append(f"v_xor_b32 {v(vT)}, 32, {v(vVX)}")
        out.append(f"ds_read_b64 {v(X1+2,2)}, {v(vT)} offset:{t*16*256}")
        for u, X in ((0, X0), (1, X1)):
            Rr = accB(u, t)
            out.append(f"v_cvt_pk_bf16_f32 {v(X)}, {v(Rr)}, {v(Rr+1)}")
            out.append(f"v_cvt_pk_bf16_f32 {v(X+1)}, {v(Rr+2)}, {v(Rr+3)}")
        out.append("s_waitcnt lgkmcnt(0)")
        out.append("s_nop 0")
        out += dpp_swap_store(X0, X1, TM, 1, t)
        out.append("s_nop 1")
        return out

    a(f"s_waitcnt vmcnt({vm_after(('C',5))})")
    st(a, opt, 0)
    lsignal(a, 0, vT, vT+1)
    lspin(a, 0, 8, "L_g_sp1", vT, vT+1)
    for x in tr_reads(0): a(x)
    for x in bf_reads(0): a(x)

    extra = {n: [] for n in range(NST)}
    def g_vx(i):
        def f():
            t0, t1, t2 = vT, vT+1, vT+2
            a("s_mul_i32 s72, s56, 12")
            a(f"s_add_u32 s72, s72, {4*i}")
            a(f"v_lshrrev_b32 {v(t0)}, 4, v2")
            a(f"v_add_u32 {v(t0)}, s72, {v(t0)}")
            a(f"v_and_b32 {v(t1)}, 15, {v(t0)}")
            a(f"v_and_b32 {v(t2)}, 15, v2")
            a(f"v_xor_b32 {v(t1)}, {v(t1)}, {v(t2)}")
            a(f"v_add_u32 {v(t0)}, s57, {v(t0)}")
            a(f"v_lshlrev_b32 {v(t0)}, 11, {v(t0)}")
            a(f"v_lshl_add_u32 {v(t0)}, {v(t1)}, 4, {v(t0)}")
            a(f"v_add_u32 {v(t0)}, s63, {v(t0)}")
            a(f"v_add_u32 {v(t0)}, 512, {v(t0)}")
            a("s_lshl_b32 s72, s72, 8")
            a(f"s_add_u32 s72, s72, {VX_LDS}")
            a("s_mov_b32 m0, s72")
            a("s_nop 0")
            a(f"buffer_load_dwordx4 {v(t0)}, {s(SV,4)}, 0 offen lds"); vm.append(('VX', i))
        return f
    extra[4] += passB_addr_dma()
    l1 = line1_epi(0) + line1_epi(1) + line1_epi(2)
    per = (len(l1) + 6) // 7
    for k in range(7): extra[17 + k] += l1[k*per:(k+1)*per]
    BARS = []

    for n in range(NST):
        k = kind(n); buf = vA[n & 1]; bb = vBf[n & 1]
        first = (n & 7) == 0
        a.c(f"--- step {n} (ks {ks_of(n)})")
        a("s_waitcnt lgkmcnt(0)")
        if n == 0: st(a, opt, 1)
        if n == 8: st(a, opt, 3)
        if n == 16: st(a, opt, 4)
        mf = []
        nrt = 4 if k < 2 else 2
        for rt in range(nrt):
            for t in range(3):
                A = acc1(rt, t) if k == 0 else (accA(rt, t) if k == 1 else accB(rt, t))
                cc = "0" if first else v(A, 4)
                mf.append(f"v_mfma_f32_16x16x32_bf16 {v(A,4)}, {v(buf+rt*4,4)}, {v(bb+4*t,4)}, {cc}")
        npre = 2 if k < 2 else 1
        for m in mf[:npre]: a(m)
        side = []
        if n < 7:
            if n == 1: lsignal(a, 1, vT, vT+1)
            if n == 2:
                lspin(a, 1, 8, "L_g_sp2", vT, vT+1)
                for x in issue_chunk(6) + issue_chunk(7): emit(x)
                lsignal(a, 4, vT, vT+1)
            if n == 4:
                a(f"s_waitcnt vmcnt({vm_after(('C', 7))})")
                lsignal(a, 2, vT, vT+1)
            if n == 5: lspin(a, 2, 8, "L_g_sp3", vT, vT+1)
            side = tr_reads(n + 1) + bf_reads(n + 1) + side
        elif n == 7:
            lsignal(a, 3, vT, vT+1)
        elif n < 15:
            if n in (9, 11, 13):
                a("s_barrier"); BARS.append(n)
                side += issue_chunk(16 + (n - 9) // 2)
            side = tr_reads(n + 1) + bf_reads(n + 1) + side
        elif n + 1 < NST:
            a(f"s_waitcnt vmcnt({vm_after(('C', n+1))})")
            a("s_barrier"); BARS.append(n)
            side += tr_reads(n + 1)
            side += bf_reads(n + 1)
            if n == 15: side += issue_chunk(19)
            elif n + 4 < NST: side += issue_chunk(n + 4)
        side += extra[n]
        rest = mf[npre:]
        kk = 0
        nper = (len(side) + len(rest) - 1) // len(rest)
        for m in rest:
            a(m)
            for x in side[kk:kk+nper]: emit(x)
            kk += nper
        for x in side[kk:]: emit(x)
        if n == 7:
            lspin(a, 3, 8, "L_g_sp4", vT, vT+1)
            for x in passB_addr_tr(): a(x)
            st(a, opt, 2)
            groups = silu_half((0, 1)) + silu_half((2, 3))
            ipos = int(opt.get('ipos', 3))
            for gi, grp in enumerate(groups + [[]]):
                if gi == ipos:
                    for m in range(8, 16):
                        for x in issue_chunk(m): emit(x)
                    for i in range(3): g_vx(i)()
                for x in grp: a(x)
            a(f"s_waitcnt vmcnt({vm_after(('VX', 2))}) lgkmcnt(0)")
            a("s_barrier")
            for x in tr_reads(8): a(x)
            for x in bf_reads(8): a(x)
    a("s_nop 7"); a("s_nop 1")
    st(a, opt, 5)
    for t in range(3):
        for x in line0_epi(t): emit(x)
    if opt.get('fused'):
        a("s_waitcnt vmcnt(0)")
        if opt.get('stamps'): a("s_memrealtime s[14:15]")
        a("s_barrier")
        a("s_cmp_eq_u32 s56, 0")
        a("s_cbranch_scc0 L_phaseB")
        if opt.get('wbl2'):
            a("buffer_wbl2 sc1")
            a("s_waitcnt vmcnt(0)")
            if opt.get('stamps'): a("s_memrealtime s[12:13]")
        a("s_mov_b64 exec, 1")
        a("v_mov_b32 v3, 1")
        a(f"v_mov_b32 v4, {TBL_DBG}")
        a(f"global_atomic_add v4, v3, s[{P_DBG}:{P_DBG+1}]")
        a("s_mov_b64 exec, -1")
        a("s_branch L_phaseB")
    else:
        stamp_end(a, opt, 0, 'g')
        a("s_endpgm")

    a.label("L_copy_role")
    a("s_sub_u32 s58, s56, 8")
    vm2 = []
    def vm2_after(tag):
        idx = max(i for i, x in enumerate(vm2) if x == tag)
        return len(vm2) - 1 - idx
    vS, vD, vQ = 3, 4, 5
    vStg = 8
    a("s_lshr_b32 s73, s58, 1")
    a("s_mul_i32 s73, s73, 48")
    a("s_add_u32 s73, s73, s57")
    a("v_lshrrev_b32 v6, 4, v2")
    a("v_add_u32 v6, s73, v6")
    a("v_and_b32 v7, 15, v2")
    a(f"v_lshlrev_b32 {v(vS)}, 11, v6")
    a(f"v_lshl_add_u32 {v(vS)}, v7, 3, {v(vS)}")
    a("s_and_b32 s70, s58, 1")
    a("s_lshl_b32 s70, s70, 7")
    a("s_add_u32 s70, s70, s63")
    a(f"v_add_u32 {v(vS)}, s70, {v(vS)}")
    a("s_lshl_b32 s71, s60, 2")
    a("s_and_b32 s74, s58, 1")
    a("s_lshl_b32 s74, s74, 1")
    a("s_add_u32 s71, s71, s74")
    a(f"s_mul_i32 s71, s71, {SLICEB}")
    a(f"v_mul_u32_u24 {v(vD)}, {ROWB}, v6")
    a("v_and_b32 v7, 7, v2")
    a(f"v_lshl_add_u32 {v(vD)}, v7, 4, {v(vD)}")
    a(f"v_add_u32 {v(vD)}, s71, {v(vD)}")
    a("v_bfe_u32 v7, v2, 3, 1")
    a(f"s_mov_b32 s74, {SLICEB}")
    a("v_mul_lo_u32 v7, v7, s74")
    a(f"v_add_u32 {v(vD)}, {v(vD)}, v7")
    def c_vx(i, prefetch=False):
        a("s_mul_i32 s72, s58, 24")
        a(f"s_add_u32 s72, s72, {4*i}")
        a("v_lshrrev_b32 v6, 4, v2")
        a("v_add_u32 v6, s72, v6")
        a("v_and_b32 v7, 15, v6")
        a(f"v_and_b32 {v(vQ)}, 15, v2")
        a(f"v_xor_b32 v7, v7, {v(vQ)}")
        a("v_add_u32 v6, s57, v6")
        a("v_lshlrev_b32 v6, 11, v6")
        a("v_lshl_add_u32 v6, v7, 4, v6")
        a("v_add_u32 v6, s63, v6")
        a("v_add_u32 v6, 512, v6")
        if prefetch:
            a(f"buffer_load_dwordx4 v[{56+4*i}:{59+4*i}], v6, {s(SV,4)}, 0 offen {vf}"); vm2.append(('VXP', i))
            return
        a("s_lshl_b32 s72, s72, 8")
        a(f"s_add_u32 s72, s72, {VX_LDS}")
        a("s_mov_b32 m0, s72")
        a("s_nop 0")
        a(f"buffer_load_dwordx4 v6, {s(SV,4)}, 0 offen lds"); vm2.append(('VX', i))
    def c_load(i):
        a(f"s_mov_b32 s72, {i*4*2048}")
        a(f"buffer_load_dwordx2 {v(vStg+4*i,2)}, {v(vS)}, {s(SV,4)}, s72 offen offset:1024 {vf}"); vm2.append(('a', i))
        a(f"buffer_load_dwordx2 {v(vStg+4*i+2,2)}, {v(vS)}, {s(SV,4)}, s72 offen offset:1536 {vf}"); vm2.append(('b', i))
    def c_store(i):
        a(f"s_waitcnt vmcnt({vm2_after(('b', i))})")
        a(f"s_mov_b32 s72, {i*4*ROWB}")
        a(f"buffer_store_dwordx4 {v(vStg+4*i,4)}, {v(vD)}, {s(TAB,4)}, s72 offen offset:256 {l2f}"); vm2.append(('s', i))
    a("s_waitcnt lgkmcnt(0)")
    a("s_barrier")
    if opt.get('cearly') != '1': lspin(a, 4, 8, "L_c_sp", 6, 7)
    delay(a, opt.get('d_copy'), "L_d_copy")
    recompute = True
    for i in range(12): c_load(i)
    for i in range(6): c_vx(i, prefetch=True)
    a("s_barrier")
    nb = len(BARS)
    done = 0
    for b in range(nb):
        todo = (12 * (b + 1) + nb - 1) // nb
        while done < min(12, todo):
            c_store(done); done += 1
        a("s_barrier")
    if opt.get('fused'):
        a("s_waitcnt vmcnt(0)")
        a("s_barrier")
        a("s_branch L_phaseB")
    else:
        stamp_end(a, opt, 0, 'c')
        a("s_endpgm")
```

```python
from asmlib import *
from k1 import *
import k1w
from k1w import SLICEB, TAB_OFF, TAB_SIZE, ROWB

K2_NWG = 256
RNG = 313
CNT_L = 0; START_L = 1280; ORDER_L = 2560; BKT_L = 3840; MISC_L = 3904
WPK_L = 4096
REC_L = 5120
NULL_L = REC_L + 1024 * 32
OWN_L = 38912
NOWN = 118
K2_LDS = OWN_L + NOWN * 1024
WORK_O, BUMP_O, C2_O, C3_O, RDY_O, OWN_O, TBL_O, EDG_O = 0, 4, 8, 12, 16, 20, 24, 28
OOBV = 0x7f000000

def dpp_scan(a, x, op="v_add_u32"):
    for sh in (1, 2, 4, 8):
        a("s_nop 1")
        a(f"{op}_dpp {v(x)}, {v(x)}, {v(x)} row_shr:{sh} row_mask:0xf bank_mask:0xf bound_ctrl:0")
    a("s_nop 1")
    a(f"{op}_dpp {v(x)}, {v(x)}, {v(x)} row_bcast:15 row_mask:0xa bank_mask:0xf")
    a("s_nop 1")
    a(f"{op}_dpp {v(x)}, {v(x)}, {v(x)} row_bcast:31 row_mask:0xc bank_mask:0xf")
    a("s_nop 1")

def spin(a, off, target, lbl, vt=7, st_="s69", sleep=0):
    a(f"v_mov_b32 v{vt}, {MISC_L + off}")
    a(f"s_branch {lbl}_in")
    a.label(lbl)
    if sleep: a(f"s_sleep {sleep}")
    a.label(lbl + "_in")
    a(f"ds_read_b32 v1, v{vt}")
    a("s_waitcnt lgkmcnt(0)")
    a(f"v_readfirstlane_b32 {st_}, v1")
    a(f"s_cmp_ge_u32 {st_}, {target}")
    a(f"s_cbranch_scc0 {lbl}")
def signal(a, off, vt=7):
    a("s_waitcnt lgkmcnt(0)")
    a("s_mov_b64 exec, 1")
    a(f"v_mov_b32 v{vt}, {MISC_L + off}")
    a("v_mov_b32 v1, 1")
    a(f"ds_add_u32 v{vt}, v1")
    a("s_mov_b64 exec, -1")

import os
GP_FLAGS = os.environ.get('GPF', 'sc1')
GP_SLEEP = int(os.environ.get('GPS', 16))
def gpoll(a, off, target, lbl):
    a(f"v_mov_b32 v7, {off}")
    a("s_mov_b32 s70, 0")
    a.label(lbl)
    a(f"global_load_dword v1, v7, s[{P_DBG}:{P_DBG+1}] {GP_FLAGS}")
    a("s_waitcnt vmcnt(0)")
    a("v_readfirstlane_b32 s69, v1")
    a(f"s_cmp_ge_u32 s69, {target}")
    a(f"s_cbranch_scc1 {lbl}_ok")
    a(f"s_sleep {GP_SLEEP}")
    a("s_add_u32 s70, s70, 1")
    a("s_cmp_lt_u32 s70, 0x400000")
    a(f"s_cbranch_scc1 {lbl}")
    a.label(lbl + "_ok")

def k2w(a, opt):
    TAB, SV, OUT, REC, CNT, WR = 40, 44, 48, 52, 56, 60
    ost = opt.get('out_store_flags', '')
    sres = opt.get('sres_flags', '')
    NPF = 4
    a.label("L_phaseB")
    st(a, opt, 0)
    a("v_lshrrev_b32 v1, 6, v0")
    a("v_and_b32 v2, 63, v0")
    a("s_and_b32 s65, s2, 7")
    a("s_lshr_b32 s66, s2, 3")
    a(f"s_mul_i32 s67, s66, {RNG}")
    a(f"s_sub_u32 s68, {N}, s67")
    a(f"s_min_u32 s68, s68, {RNG}")
    a("v_readfirstlane_b32 s64, v1")
    a("v_lshlrev_b32 v5, 2, v0")
    a("v_mov_b32 v6, 0")
    a("v_cmp_gt_u32 vcc, 320, v0")
    a("s_and_saveexec_b64 s[70:71], vcc")
    a(f"ds_write_b32 v5, v6 offset:{CNT_L}")
    a("s_mov_b64 exec, s[70:71]")
    a("v_cmp_gt_u32 vcc, 32, v0")
    a("s_and_saveexec_b64 s[70:71], vcc")
    a(f"ds_write_b32 v5, v6 offset:{BKT_L}")
    a("s_mov_b64 exec, s[70:71]")
    srd(a, REC, P_WS, REC_SIZE, REC_OFF)
    a(f"s_mul_i32 s69, s65, {SLICEB}")
    a(f"s_add_u32 s{TAB}, s{P_WS}, s69")
    a(f"s_addc_u32 s{TAB+1}, s{P_WS+1}, 0")
    if TAB_OFF:
        a(f"s_add_u32 s{TAB}, s{TAB}, {TAB_OFF}")
        a(f"s_addc_u32 s{TAB+1}, s{TAB+1}, 0")
    a(f"s_mov_b32 s{TAB+2}, {SLICEB}")
    a(f"s_mov_b32 s{TAB+3}, 0x00020000")
    srd(a, SV, P_SV, N * 2048)
    srd(a, OUT, P_OUT, N * 2048)
    srd(a, WR, P_WR, 4 * 1536)
    a("s_waitcnt lgkmcnt(0)")
    a("s_barrier")
    def total():
        a("s_lshl_b32 s69, s66, 2")
        a("v_mov_b32 v13, s69")
        a(f"global_load_dword v13, v13, s[{P_DBG}:{P_DBG+1}] sc0 sc1")
    a("s_cmp_ge_u32 s64, 8")
    a("s_cbranch_scc0 L_k2_sorter")
    a("s_cmp_eq_u32 s64, 8")
    a("s_cbranch_scc0 L_k2_now")
    vWraw = 64
    a("v_and_b32 v7, 7, v2")
    a("v_lshlrev_b32 v7, 3, v7")
    a("s_lshl_b32 s69, s65, 6")
    a("v_add_u32 v7, s69, v7")
    a("s_movk_i32 s69, 3072")
    for k in range(4):
        for p in range(3):
            off = k*1536 + p*512
            if off < 3072:
                a(f"buffer_load_dwordx2 {v(vWraw+(k*3+p)*2,2)}, v7, {s(WR,4)}, 0 offen offset:{off}")
            else:
                a(f"buffer_load_dwordx2 {v(vWraw+(k*3+p)*2,2)}, v7, {s(WR,4)}, s69 offen offset:{off-3072}")
    a("s_waitcnt vmcnt(0)")
    vW = 96
    a("s_mov_b32 s70, 0x05040100")
    a("s_mov_b32 s71, 0x07060302")
    for p in range(3):
        for ch in range(4):
            d = ch >> 1
            sel = "s70" if (ch & 1) == 0 else "s71"
            for h in range(2):
                r0 = vWraw + ((2*h)*3+p)*2 + d; r1 = vWraw + ((2*h+1)*3+p)*2 + d
                a(f"v_perm_b32 {v(vW+(p*4+ch)*2+h)}, {v(r1)}, {v(r0)}, {sel}")
    a("v_and_b32 v7, 7, v2")
    a("v_mul_u32_u24 v7, 96, v7")
    a("v_cmp_gt_u32 vcc, 8, v2")
    a("s_and_saveexec_b64 s[70:71], vcc")
    for q in range(6):
        a(f"ds_write_b128 v7, {v(vW+4*q,4)} offset:{WPK_L + 16*q}")
    a("s_mov_b64 exec, 1")
    a(f"v_mov_b32 v40, {OOBV}")
    for r in (41, 42, 43, 44, 45): a(f"v_mov_b32 v{r}, 0")
    a(f"v_mov_b32 v7, {NULL_L}")
    a("ds_write_b128 v7, v[40:43]")
    a("ds_write_b64 v7, v[44:45] offset:16")
    a("s_mov_b64 exec, -1")
    signal(a, RDY_O)
    gpoll(a, 192, 210, "L_k2_gp_tbl")
    signal(a, TBL_O)
    a.label("L_k2_now")
    spin(a, TBL_O, 1, "L_k2_sp_tbl", sleep=4)
    st(a, opt, 3)
    a("s_waitcnt lgkmcnt(0)")
    a("v_lshlrev_b32 v6, 4, v2")
    a(f"s_mul_i32 s70, s67, {ROWB}")
    a("s_sub_u32 s69, s64, 8")
    a("s_lshl_b32 s69, s69, 10")
    a.label("L_k2_dmaloop")
    a(f"s_add_u32 s71, s69, {OWN_L}")
    a("s_mov_b32 m0, s71")
    a("s_add_u32 s71, s70, s69")
    a(f"buffer_load_dwordx4 v6, {s(TAB,4)}, s71 offen lds")
    a(f"s_add_u32 s69, s69, {NPF*1024}")
    a(f"s_cmp_lt_u32 s69, {NOWN*1024}")
    a("s_cbranch_scc1 L_k2_dmaloop")
    a("s_waitcnt vmcnt(0)")
    signal(a, OWN_O)
    spin(a, RDY_O, 9, "L_k2_sp_rdy", sleep=4)
    total()
    a("s_waitcnt vmcnt(0)")
    a("v_readfirstlane_b32 s72, v13")
    st(a, opt, 2)
    a("s_waitcnt lgkmcnt(0)")
    a(f"s_cmp_gt_u32 s72, {HOTCAP}")
    a("s_cbranch_scc1 L_k2_slow")
    a("s_branch L_k2_main")
    a.label("L_k2_sorter")
    a("s_cmp_eq_u32 s64, 0")
    a("s_cbranch_scc0 L_k2_nogp")
    gpoll(a, 128, NCH, "L_k2_gp_edg")
    signal(a, EDG_O)
    a.label("L_k2_nogp")
    spin(a, EDG_O, 1, "L_k2_sp_edg", sleep=4)
    total()
    a("s_lshl_b32 s69, s66, 10")
    a("v_add_u32 v3, s69, v0")
    a(f"v_mul_u32_u24 v3, {RECB}, v3")
    a(f"buffer_load_dwordx4 v[8:11], v3, {s(REC,4)}, 0 offen")
    a(f"buffer_load_dword v12, v3, {s(REC,4)}, 0 offen offset:16")
    a(f"v_add_u32 v3, {512*RECB}, v3")
    a(f"buffer_load_dwordx4 v[16:19], v3, {s(REC,4)}, 0 offen")
    a(f"buffer_load_dword v20, v3, {s(REC,4)}, 0 offen offset:16")
    a("s_waitcnt vmcnt(0)")
    a("v_readfirstlane_b32 s72, v13")
    a(f"s_cmp_gt_u32 s72, {HOTCAP}")
    a("s_cbranch_scc0 L_k2_sort")
    signal(a, RDY_O)
    spin(a, RDY_O, 9, "L_k2_sp_rdy2")
    spin(a, TBL_O, 1, "L_k2_sp_tbl3", sleep=4)
    a("s_branch L_k2_slow")
    a.label("L_k2_sort")
    a("v_lshrrev_b32 v14, 14, v8")
    a("v_lshrrev_b32 v15, 14, v16")
    a("v_lshlrev_b32 v30, 2, v14")
    a("v_lshlrev_b32 v31, 2, v15")
    a("v_mov_b32 v21, 1")
    a("v_mov_b32 v22, 1")
    a("v_add_u32 v23, 512, v0")
    a("v_cmp_gt_u32 s[76:77], s72, v0")
    a("v_cmp_gt_u32 s[78:79], s72, v23")
    a("s_mov_b64 exec, s[76:77]")
    a(f"ds_add_rtn_u32 v21, v30, v21 offset:{CNT_L}")
    a("s_mov_b64 exec, s[78:79]")
    a(f"ds_add_rtn_u32 v22, v31, v22 offset:{CNT_L}")
    a("s_mov_b64 exec, -1")
    for (raw, last, dst) in ((8, 12, 32), (16, 20, 40)):
        a(f"v_and_b32 v{dst}, 0x3fff, v{raw}")
        a(f"v_mul_u32_u24 v{dst}, {ROWB}, v{dst}")
        a(f"v_mov_b32 v{dst+1}, v{raw+1}")
        a(f"v_mov_b32 v{dst+2}, v{raw+2}")
        a(f"v_lshlrev_b32 v{dst+3}, 16, v{raw+3}")
        a(f"v_and_b32 v{dst+4}, 0xffff0000, v{raw+3}")
        a(f"v_lshlrev_b32 v{dst+5}, 16, v{last}")
    signal(a, C2_O)
    spin(a, C2_O, 8, "L_k2_sp_c2")
    a("s_waitcnt lgkmcnt(0)")
    a("s_cmp_lt_u32 s64, 5")
    a("s_cbranch_scc0 L_k2_nonode")
    a(f"ds_read_b32 v26, v5 offset:{CNT_L}")
    a("v_cmp_gt_u32 s[80:81], s68, v0")
    a("s_waitcnt lgkmcnt(0)")
    a("v_cndmask_b32 v26, 0, v26, s[80:81]")
    a("v_mov_b32 v27, v26")
    dpp_scan(a, 27)
    a("v_readlane_b32 s82, v27, 63")
    a("s_mov_b64 exec, 1")
    a(f"v_mov_b32 v28, {MISC_L+BUMP_O}")
    a("v_mov_b32 v29, s82")
    a("ds_add_rtn_u32 v29, v28, v29")
    a("s_mov_b64 exec, -1")
    a("v_min_u32 v48, 15, v26")
    a("v_sub_u32 v48, 15, v48")
    a("v_lshlrev_b32 v49, 2, v48")
    a("v_mov_b32 v50, 1")
    a("s_mov_b64 exec, s[80:81]")
    a(f"ds_add_rtn_u32 v50, v49, v50 offset:{BKT_L}")
    a("s_mov_b64 exec, -1")
    a("s_waitcnt lgkmcnt(0)")
    a("v_readfirstlane_b32 s82, v29")
    a("v_sub_u32 v27, v27, v26")
    a("v_add_u32 v27, s82, v27")
    a("s_mov_b64 exec, s[80:81]")
    a(f"ds_write_b32 v5, v27 offset:{START_L}")
    a("s_mov_b64 exec, -1")
    a.label("L_k2_nonode")
    signal(a, C3_O)
    spin(a, C3_O, 8, "L_k2_sp_c3")
    a("s_cmp_lt_u32 s64, 5")
    a("s_cbranch_scc0 L_k2_noord")
    a("v_lshlrev_b32 v51, 2, v2")
    a(f"ds_read_b32 v51, v51 offset:{BKT_L}")
    a("s_waitcnt lgkmcnt(0)")
    a("v_mov_b32 v52, v51")
    for sh in (1, 2, 4, 8):
        a("s_nop 1")
        a(f"v_add_u32_dpp v52, v52, v52 row_shr:{sh} row_mask:0xf bank_mask:0xf bound_ctrl:0")
    a("s_nop 1")
    a("v_sub_u32 v52, v52, v51")
    a("ds_bpermute_b32 v52, v49, v52")
    a("s_waitcnt lgkmcnt(0)")
    a("v_add_u32 v52, v52, v50")
    a("v_lshlrev_b32 v52, 2, v52")
    a("s_mov_b64 exec, s[80:81]")
    a(f"ds_write_b32 v52, v0 offset:{ORDER_L}")
    a("s_mov_b64 exec, -1")
    a.label("L_k2_noord")
    a(f"ds_read_b32 v53, v30 offset:{START_L}")
    a(f"ds_read_b32 v54, v31 offset:{START_L}")
    a("s_waitcnt lgkmcnt(0)")
    a("v_add_u32 v53, v53, v21")
    a("v_add_u32 v54, v54, v22")
    a("v_lshlrev_b32 v53, 5, v53")
    a("v_lshlrev_b32 v54, 5, v54")
    a("s_mov_b64 exec, s[76:77]")
    a(f"ds_write_b128 v53, v[32:35] offset:{REC_L}")
    a(f"ds_write_b64 v53, v[36:37] offset:{REC_L+16}")
    a("s_mov_b64 exec, s[78:79]")
    a(f"ds_write_b128 v54, v[40:43] offset:{REC_L}")
    a(f"ds_write_b64 v54, v[44:45] offset:{REC_L+16}")
    a("s_mov_b64 exec, -1")
    signal(a, RDY_O)
    spin(a, RDY_O, 9, "L_k2_sp_rdy3")
    st(a, opt, 1)
    spin(a, TBL_O, 1, "L_k2_sp_tbl2", sleep=4)
    st(a, opt, 2)
    a("s_waitcnt lgkmcnt(0)")
    a.label("L_k2_main")

    vW = 96
    vAcc = 8; vRawA = 24; vRawB = 36; vRA = 48; vRB = 56
    vWf = 64; vU = 120
    vJ16 = 3; vSb = 4; vDeg = 5; vOV = 6; vRes = 76; vT = 78; vOwn = 7; vE = 80; vAd = 81
    def load_w():
        a("v_and_b32 v7, 7, v2")
        a("v_mul_u32_u24 v7, 96, v7")
        for q in range(6):
            a(f"ds_read_b128 {v(vW+4*q,4)}, v7 offset:{WPK_L + 16*q}")
        a("v_and_b32 v3, 7, v2")
        a("v_lshlrev_b32 v3, 4, v3")
    def compute(R, RC):
        for p in range(3):
            for ch in range(4):
                a(f"v_dot2_f32_bf16 {v(vWf+p*4+ch)}, {v(vW+(p*4+ch)*2+1)}, {v(RC+2)}, 0")
        for p in range(3):
            for ch in range(4):
                a(f"v_dot2_f32_bf16 {v(vWf+p*4+ch)}, {v(vW+(p*4+ch)*2)}, {v(RC+1)}, {v(vWf+p*4+ch)}")
        for d in range(2):
            a(f"v_lshlrev_b32 {v(vU)}, 16, {v(R+d)}")
            a(f"v_and_b32 {v(vU+1)}, 0xffff0000, {v(R+d)}")
            a(f"v_fmac_f32 {v(vAcc+2*d)}, {v(vU)}, {v(vWf+2*d)}")
            a(f"v_fmac_f32 {v(vAcc+2*d+1)}, {v(vU+1)}, {v(vWf+2*d+1)}")
        for p in (1, 2):
            for d in range(2):
                a(f"v_lshlrev_b32 {v(vU+2)}, 16, {v(R+2*p+d)}")
                a(f"v_and_b32 {v(vU+3)}, 0xffff0000, {v(R+2*p+d)}")
                a(f"v_mul_f32 {v(vWf+p*4+2*d)}, {v(vU+2)}, {v(vWf+p*4+2*d)}")
                a(f"v_mul_f32 {v(vWf+p*4+2*d+1)}, {v(vU+3)}, {v(vWf+p*4+2*d+1)}")
        for j in range(3):
            for d in range(2):
                a(f"v_lshlrev_b32 {v(vU+4)}, 16, {v(R+6+2*j+d)}")
                a(f"v_and_b32 {v(vU+5)}, 0xffff0000, {v(R+6+2*j+d)}")
                A = vAcc + 4 + j*4 + 2*d
                a(f"v_fmac_f32 {v(A)}, {v(vU+4)}, {v(vWf+4+2*d)}")
                a(f"v_fmac_f32 {v(A+1)}, {v(vU+5)}, {v(vWf+4+2*d+1)}")
                a(f"v_fmac_f32 {v(A)}, {v(RC+3+j)}, {v(vWf+8+2*d)}")
                a(f"v_fmac_f32 {v(A+1)}, {v(RC+3+j)}, {v(vWf+8+2*d+1)}")
    def issue_rows(R, RC):
        a(f"v_add_u32 {v(vAd)}, {v(RC)}, {v(vJ16)}")
        for q in range(3):
            a(f"buffer_load_dwordx4 {v(R+4*q,4)}, {v(vAd)}, {s(TAB,4)}, 0 offen offset:{q*128}")
    def fetch_rec(RC, e_expr_sgpr):
        a(f"s_lshl_b32 s87, {e_expr_sgpr}, 5")
        a(f"v_add_u32 {v(vAd)}, s87, {v(vSb)}")
        a(f"v_cmp_lt_u32 vcc, {e_expr_sgpr}, {v(vDeg)}")
        a(f"v_mov_b32 {v(vT)}, {NULL_L}")
        a(f"v_cndmask_b32 {v(vAd)}, {v(vT)}, {v(vAd)}, vcc")
        a(f"ds_read_b128 {v(RC,4)}, {v(vAd)}")
        a(f"ds_read_b64 {v(RC+4,2)}, {v(vAd)} offset:16")
        a("s_waitcnt lgkmcnt(0)")
    vRx = 82; vRyz = 84
    def load_residual():
        if opt.get('exp_k2_nos'): return
        a(f"buffer_load_dwordx2 {v(vRes,2)}, {v(vOV)}, {s(SV,4)}, 0 offen {sres}")
    def own_residual(lbl):
        a("s_cmp_lg_u32 s91, 0") if False else None
        a(f"s_cbranch_scc1 {lbl}_ok") if False else None
        a("s_cmp_eq_u32 s75, 1")
        a(f"s_cbranch_scc1 {lbl}_ok")
        spin(a, OWN_O, 4, lbl + "_sp", vt=vT, st_="s75")
        a("s_mov_b32 s75, 1")
        a.label(lbl + "_ok")
        a(f"ds_read_b64 {v(vRx,2)}, {v(vOwn)} offset:136")
        a(f"ds_read_b128 {v(vRyz,4)}, {v(vOwn)} offset:256")
        a("s_waitcnt lgkmcnt(0)")
    def zero_acc():
        for r in range(16): a(f"v_mov_b32 {v(vAcc+r)}, 0")
    def finish_store():
        res = [vRes, vRx, vRyz, vRyz + 2]
        for c in range(4):
            for d in range(2):
                U = vU + 2*((2*c+d) & 3)
                a(f"v_lshlrev_b32 {v(U)}, 16, {v(res[c]+d)}")
                a(f"v_and_b32 {v(U+1)}, 0xffff0000, {v(res[c]+d)}")
                a(f"v_add_f32 {v(vAcc+4*c+2*d)}, {v(vAcc+4*c+2*d)}, {v(U)}")
                a(f"v_add_f32 {v(vAcc+4*c+2*d+1)}, {v(vAcc+4*c+2*d+1)}, {v(U+1)}")
        for c in range(4):
            for d in range(2):
                a(f"v_cvt_pk_bf16_f32 {v(vWf+2*c+d)}, {v(vAcc+c*4+2*d)}, {v(vAcc+c*4+2*d+1)}")
        for c in range(4):
            if opt.get('exp_k2_nostore'): continue
            a(f"buffer_store_dwordx2 {v(vWf+2*c,2)}, {v(vOV)}, {s(OUT,4)}, 0 offen offset:{c*512} {ost}")

    load_w()
    a("s_mov_b32 s75, 0")
    a.label("L_k2_next")
    a("s_mov_b64 exec, 1")
    a(f"v_mov_b32 {v(vT)}, {MISC_L}")
    a(f"v_mov_b32 {v(vU)}, 1")
    a(f"ds_add_rtn_u32 {v(vT)}, {v(vT)}, {v(vU)}")
    a("s_waitcnt lgkmcnt(0)")
    a(f"v_readfirstlane_b32 s80, {v(vT)}")
    a("s_mov_b64 exec, -1")
    a("s_lshl_b32 s80, s80, 3")
    a("s_cmp_ge_u32 s80, s68")
    a("s_cbranch_scc1 L_k2_exit")
    a(f"v_lshrrev_b32 {v(vT)}, 3, v2")
    a(f"v_add_u32 {v(vT)}, s80, {v(vT)}")
    a(f"v_cmp_gt_u32 s[82:83], s68, {v(vT)}")
    a(f"v_lshlrev_b32 {v(vT+1)}, 2, {v(vT)}")
    a(f"ds_read_b32 {v(vT+1)}, {v(vT+1)} offset:{ORDER_L}")
    a("s_waitcnt lgkmcnt(0)")
    a(f"v_cndmask_b32 {v(vT+1)}, 0, {v(vT+1)}, s[82:83]")
    a(f"v_lshlrev_b32 {v(vT)}, 2, {v(vT+1)}")
    a(f"ds_read_b32 {v(vDeg)}, {v(vT)} offset:{CNT_L}")
    a(f"ds_read_b32 {v(vSb)}, {v(vT)} offset:{START_L}")
    a(f"v_add_u32 {v(vOV)}, s67, {v(vT+1)}")
    a(f"v_lshlrev_b32 {v(vOV)}, 11, {v(vOV)}")
    a(f"v_lshrrev_b32 {v(vT)}, 1, {v(vJ16)}")
    a(f"v_add_u32 {v(vOV)}, {v(vOV)}, {v(vT)}")
    a("s_lshl_b32 s84, s65, 6")
    a(f"v_add_u32 {v(vOV)}, s84, {v(vOV)}")
    a(f"v_mov_b32 {v(vT)}, {OOBV}")
    a(f"v_cndmask_b32 {v(vOV)}, {v(vT)}, {v(vOV)}, s[82:83]")
    a(f"v_mul_u32_u24 {v(vOwn)}, {ROWB}, {v(vT+1)}")
    a(f"v_add_u32 {v(vOwn)}, {v(vOwn)}, {v(vJ16)}")
    a(f"v_add_u32 {v(vOwn)}, {OWN_L}, {v(vOwn)}")
    load_residual()
    a("s_waitcnt lgkmcnt(0)")
    a(f"v_cndmask_b32 {v(vDeg)}, 0, {v(vDeg)}, s[82:83]")
    a(f"v_lshlrev_b32 {v(vSb)}, 5, {v(vSb)}")
    a(f"v_add_u32 {v(vSb)}, {REC_L}, {v(vSb)}")
    a(f"v_mov_b32 {v(vT)}, {v(vDeg)}")
    for sh in (8,):
        a("s_nop 1")
        a(f"v_max_u32_dpp {v(vT)}, {v(vT)}, {v(vT)} row_shr:8 row_mask:0xf bank_mask:0xf bound_ctrl:0")
    a("s_nop 1")
    a(f"v_readlane_b32 s85, {v(vT)}, 15")
    a(f"v_readlane_b32 s86, {v(vT)}, 31")
    a("s_max_u32 s85, s85, s86")
    a(f"v_readlane_b32 s86, {v(vT)}, 47")
    a("s_max_u32 s85, s85, s86")
    a(f"v_readlane_b32 s86, {v(vT)}, 63")
    a("s_max_u32 s85, s85, s86")
    if opt.get('exp_k2_noedge'): a("s_mov_b32 s85, 0")
    a("s_cmp_eq_u32 s85, 0")
    a("s_cbranch_scc1 L_k2_noedge")
    a("s_mov_b32 s88, 0")
    fetch_rec(vRA, "s88")
    issue_rows(vRawA, vRA)
    a("s_cmp_gt_u32 s85, 1")
    a("s_cbranch_scc0 L_k2_one")
    a("s_mov_b32 s88, 1")
    fetch_rec(vRB, "s88")
    issue_rows(vRawB, vRB)
    a.label("L_k2_one")
    zero_acc()
    a("s_mov_b32 s89, 0")
    a.label("L_k2_loop")
    for bufi, (R, RC) in enumerate(((vRawA, vRA), (vRawB, vRB))):
        a("s_add_u32 s88, s89, 1")
        a("s_cmp_lt_u32 s88, s85")
        a(f"s_cbranch_scc1 L_k2_w3_{bufi}")
        a("s_waitcnt vmcnt(0)")
        a(f"s_branch L_k2_wd_{bufi}")
        a.label(f"L_k2_w3_{bufi}")
        a("s_waitcnt vmcnt(3)")
        a.label(f"L_k2_wd_{bufi}")
        compute(R, RC)
        a("s_add_u32 s88, s89, 2")
        a("s_cmp_lt_u32 s88, s85")
        a(f"s_cbranch_scc0 L_k2_ni_{bufi}")
        fetch_rec(RC, "s88")
        issue_rows(R, RC)
        a.label(f"L_k2_ni_{bufi}")
        a("s_add_u32 s89, s89, 1")
        a("s_cmp_lt_u32 s89, s85")
        if bufi == 0:
            a("s_cbranch_scc0 L_k2_fin")
        else:
            a("s_cbranch_scc1 L_k2_loop")
    a("s_branch L_k2_fin")
    a.label("L_k2_noedge")
    zero_acc()
    a("s_waitcnt vmcnt(0)")
    a.label("L_k2_fin")
    own_residual("L_k2_own1")
    finish_store()
    a("s_branch L_k2_next")

    a.label("L_k2_slow")
    load_w()
    a("s_mov_b32 s75, 0")
    a("s_mov_b32 s80, s64")
    a.label("L_k2_snext")
    a("s_cmp_ge_u32 s80, s68")
    a("s_cbranch_scc1 L_k2_exit")
    a("s_add_u32 s81, s67, s80")
    a("s_lshl_b32 s81, s81, 11")
    a("s_lshl_b32 s84, s65, 6")
    a("s_add_u32 s81, s81, s84")
    a(f"v_lshrrev_b32 {v(vT)}, 1, {v(vJ16)}")
    a(f"v_add_u32 {v(vOV)}, s81, {v(vT)}")
    a(f"s_mul_i32 s81, s80, {ROWB}")
    a(f"s_add_u32 s81, s81, {OWN_L}")
    a(f"v_add_u32 {v(vOwn)}, s81, {v(vJ16)}")
    load_residual()
    zero_acc()
    a("s_mov_b32 s85, 0")
    a(f"s_mul_i32 s90, s66, {COLD_BIN}")
    a(f"s_add_u32 s90, s90, {HOT_SIZE}")
    a("s_lshl_b32 s91, s66, 10")
    a.label("L_k2_sscan")
    a("s_cmp_ge_u32 s85, s72")
    a("s_cbranch_scc1 L_k2_sfin")
    a(f"v_add_u32 {v(vT)}, s85, v2")
    a(f"v_add_u32 {v(vT+1)}, s91, {v(vT)}")
    a(f"v_mul_u32_u24 {v(vT+1)}, {RECB}, {v(vT+1)}")
    a(f"v_mul_u32_u24 {v(vE)}, {RECB}, {v(vT)}")
    a(f"v_add_u32 {v(vE)}, s90, {v(vE)}")
    a(f"v_cmp_gt_u32 vcc, {HOTCAP}, {v(vT)}")
    a("s_nop 1")
    a(f"v_cndmask_b32 {v(vE)}, {v(vE)}, {v(vT+1)}, vcc")
    a(f"buffer_load_dword {v(vT+1)}, {v(vE)}, {s(REC,4)}, 0 offen")
    a("s_waitcnt vmcnt(0)")
    a(f"v_lshrrev_b32 {v(vT+1)}, 14, {v(vT+1)}")
    a(f"v_cmp_eq_u32 vcc, s80, {v(vT+1)}")
    a(f"v_cmp_gt_u32 s[92:93], s72, {v(vT)}")
    a("s_and_b64 s[92:93], s[92:93], vcc")
    a.label("L_k2_smatch")
    a("s_cmp_eq_u64 s[92:93], 0")
    a("s_cbranch_scc1 L_k2_sadv")
    a("s_ff1_i32_b64 s94, s[92:93]")
    a("s_bitset0_b64 s[92:93], s94")
    a(f"v_readlane_b32 s95, {v(vE)}, s94")
    a("s_nop 3")
    a(f"v_mov_b32 {v(vT)}, s95")
    a(f"buffer_load_dwordx4 {v(vRA,4)}, {v(vT)}, {s(REC,4)}, 0 offen")
    a(f"buffer_load_dword {v(vRA+5)}, {v(vT)}, {s(REC,4)}, 0 offen offset:16")
    a("s_waitcnt vmcnt(0)")
    a(f"v_and_b32 {v(vRA)}, 0x3fff, {v(vRA)}")
    a(f"v_mul_u32_u24 {v(vRA)}, {ROWB}, {v(vRA)}")
    a(f"v_and_b32 {v(vRA+4)}, 0xffff0000, {v(vRA+3)}")
    a(f"v_lshlrev_b32 {v(vRA+3)}, 16, {v(vRA+3)}")
    a(f"v_lshlrev_b32 {v(vRA+5)}, 16, {v(vRA+5)}")
    issue_rows(vRawA, vRA)
    a("s_waitcnt vmcnt(0)")
    compute(vRawA, vRA)
    a("s_branch L_k2_smatch")
    a.label("L_k2_sadv")
    a("s_add_u32 s85, s85, 64")
    a("s_branch L_k2_sscan")
    a.label("L_k2_sfin")
    a("s_waitcnt vmcnt(0)")
    own_residual("L_k2_own2")
    a("s_mov_b64 exec, 0xff")
    finish_store()
    a("s_mov_b64 exec, -1")
    a("s_add_u32 s80, s80, 12")
    a("s_branch L_k2_snext")
    a.label("L_k2_exit")
    stamp_end(a, opt, 1, 'k2')
    a("s_endpgm")
```

```python
import sys
from asmlib import *
import k1, k1edge, k2x, k1w, k2w, k1w2, k2w2, k1w3, k2f, k1w4
W = (k1.DESIGN == 'W')

HDR = open("standalone__molecular_angular_painn__graph.s.ref").read().split("; Override launch")[0]

def kernel_desc(name, vgpr, sgpr):
    acc = (vgpr + 3)//4*4
    return f""".amdhsa_kernel {name}
  .amdhsa_next_free_vgpr {vgpr}
  .amdhsa_next_free_sgpr {sgpr}
  .amdhsa_accum_offset {acc}
  .amdhsa_group_segment_fixed_size 0
  .amdhsa_kernarg_size 88
  .amdhsa_user_sgpr_count 2
  .amdhsa_user_sgpr_kernarg_segment_ptr 1
  .amdhsa_system_sgpr_workgroup_id_x 1
  .amdhsa_float_denorm_mode_32 3
  .amdhsa_float_denorm_mode_16_64 3
.end_amdhsa_kernel
"""

def code_prefetch(a, start, end, nw, tag):
    a("s_getpc_b64 s[90:91]")
    a.label(f"L_pc_{tag}")
    a(f"s_sub_u32 s90, s90, (L_pc_{tag} - {start})")
    a("s_subb_u32 s91, s91, 0")
    a("v_lshrrev_b32 v160, 6, v0" if nw != 16 else "v_lshrrev_b32 v120, 6, v0")
    R = 160 if nw != 16 else 120
    a("s_lshr_b32 s92, s2, 3")
    a(f"s_mul_i32 s92, s92, {nw}")
    a(f"v_add_u32 v{R}, s92, v{R}")
    a(f"v_lshlrev_b32 v{R}, 10, v{R}")
    a(f"v_and_b32 v{R+1}, 63, v0")
    a(f"v_lshl_add_u32 v{R}, v{R+1}, 4, v{R}")
    a(f"v_cmp_gt_u32 vcc, (({end} - {start}) & 0xfffffff0), v{R}")
    a("s_and_saveexec_b64 s[92:93], vcc")
    a(f"s_cbranch_execz L_pf_{tag}")
    a(f"global_load_dwordx4 v[{R+4}:{R+7}], v{R}, s[90:91]")
    a.label(f"L_pf_{tag}")
    a("s_mov_b64 exec, s[92:93]")

def gen_fused(opt):
    opt['fused'] = 1
    opt['k1blk'] = 768
    opt.setdefault('tab_store_flags', 'sc1'); opt.setdefault('l2_store_flags', 'sc1'); opt.setdefault('rec_flags', 'sc1')
    a = Asm()
    a.raw(HDR.rstrip("\n"))
    name = "standalone__molecular_angular_painn__graph_kernel"
    lds = max(k1w3.K1_LDS3, k2f.K2_LDS)
    a.raw(f"; @launch grid=(256,1,1) block=(768,1,1) lds={lds}")
    a.raw('.amdgcn_target "amdgcn-amd-amdhsa--gfx950"')
    a.raw(".text")
    a.raw(f".globl {name}")
    a.raw(".p2align 8")
    a.raw(f".type {name},@function")
    a.label(name)
    a("s_cmp_ge_u32 s2, 256")
    a("s_cbranch_scc1 L_exit")
    k1.stamp_begin(a, opt)
    k1.load_kernargs(a)
    a(f"s_cmp_lt_u32 s2, {k1.NCH}")
    a("s_cbranch_scc1 L_k1_edge")
    a(f"s_cmp_lt_u32 s2, {k1.NCH + k1w.NGEMM}")
    a("s_cbranch_scc1 L_k1_gemm")
    a("s_waitcnt lgkmcnt(0)")
    a("s_branch L_phaseB")
    a.label("L_k1_gemm")
    k1w3.gemm_role(a, opt)
    a.label("L_k1_edge")
    k1edge.edge_role(a, opt)
    k2f.k2w(a, opt)
    a.label("L_exit")
    a("s_endpgm")
    a.raw('.section .rodata,"a"')
    a.raw(".p2align 6")
    a.raw(kernel_desc(name, 168, 102))
    return a.text()

def gen(opt):
    if opt.get('fusedk'): return gen_fused(opt)
    a = Asm()
    a.raw(HDR.rstrip("\n"))
    ngemm = k1w.NGEMM if W else k1.NGEMM
    k1lds = k1w.K1_LDS if W else k1.K1_LDS
    k2n = k2w.K2_NWG if W else k2x.K2_NWG
    k2m = k2w2 if opt.get('k2v','2') == '2' else k2w
    k2lds = k2m.K2_LDS if W else k2x.K2_LDS
    v2 = W and opt.get('k1v', '4') in ('2', '3', '4')
    k1m = {'2': k1w2, '3': k1w3, '4': k1w4}.get(opt.get('k1v', '4'), k1w4)
    if v2: k1lds = k1m.K1_LDS3
    k1blk = 768 if v2 else 512
    opt['k1blk'] = k1blk
    a.raw(f"; @launch kernel=painn_k1_kernel grid=({k1.NCH + ngemm},1,1) block=({k1blk},1,1) lds={k1lds}")
    a.raw(f"; @launch kernel=painn_k2_kernel grid=({k2n},1,1) block=(1024,1,1) lds={k2lds}")
    nempty = int(opt.get('nempty', 0))
    for i in range(nempty):
        a.raw("; @launch kernel=painn_nop_kernel grid=(1,1,1) block=(64,1,1) lds=0")
    a.raw('.amdgcn_target "amdgcn-amd-amdhsa--gfx950"')
    a.raw(".text")
    for name in ("painn_k1_kernel", "painn_k2_kernel"):
        a.raw(f".globl {name}")
        a.raw(".p2align 8")
        a.raw(f".type {name},@function")
        a.label(name)
        if name == "painn_k1_kernel":
            a(f"s_cmp_ge_u32 s2, {k1.NCH + ngemm}")
            a("s_cbranch_scc1 L_k1_exit")
            k1.stamp_begin(a, opt)
            k1.load_kernargs(a)
            if opt.get('pf', '1') == '1': code_prefetch(a, "painn_k1_kernel", "L_code_end", 12 if v2 else 8, "k1")
            a(f"s_cmp_lt_u32 s2, {k1.NCH}")
            a("s_cbranch_scc1 L_k1_edge")
            (k1m if v2 else (k1w if W else k1)).gemm_role(a, opt)
            a.label("L_k1_edge")
            k1edge.edge_role(a, opt)
            a.label("L_k1_exit")
            a("s_endpgm")
        else:
            (k2m.k2w if W else k2x.k2x)(a, opt)
    a.label("L_code_end")
    if nempty:
        a.raw(".globl painn_nop_kernel\n.p2align 8\n.type painn_nop_kernel,@function")
        a.label("painn_nop_kernel")
        a("s_endpgm")
    a.raw('.section .rodata,"a"')
    a.raw(".p2align 6")
    a.raw(kernel_desc("painn_k1_kernel", 168 if v2 else 256, 102))
    a.raw(".p2align 6")
    a.raw(kernel_desc("painn_k2_kernel", 128, 102))
    if nempty:
        a.raw(".p2align 6")
        a.raw(kernel_desc("painn_nop_kernel", 8, 16))
    return a.text()

if __name__ == "__main__":
    out = sys.argv[1] if len(sys.argv) > 1 else "standalone__molecular_angular_painn__graph.s"
    opt = {}
    for kv in sys.argv[2:]:
        k, val = kv.split("=", 1); opt[k] = val
    open(out, "w").write(gen(opt))
    print("wrote", out)
```

```python
import sys
from asmlib import *
import k1, k1edge, k2x, k1w, k2w, k1w2, k2w2, k1w3, k2f, k1w4
W = (k1.DESIGN == 'W')

HDR = open("standalone__molecular_angular_painn__graph.s.ref").read().split("; Override launch")[0]

def kernel_desc(name, vgpr, sgpr):
    acc = (vgpr + 3)//4*4
    return f""".amdhsa_kernel {name}
  .amdhsa_next_free_vgpr {vgpr}
  .amdhsa_next_free_sgpr {sgpr}
  .amdhsa_accum_offset {acc}
  .amdhsa_group_segment_fixed_size 0
  .amdhsa_kernarg_size 88
  .amdhsa_user_sgpr_count 2
  .amdhsa_user_sgpr_kernarg_segment_ptr 1
  .amdhsa_system_sgpr_workgroup_id_x 1
  .amdhsa_float_denorm_mode_32 3
  .amdhsa_float_denorm_mode_16_64 3
.end_amdhsa_kernel
"""

def code_prefetch(a, start, end, nw, tag):
    a("s_getpc_b64 s[90:91]")
    a.label(f"L_pc_{tag}")
    a(f"s_sub_u32 s90, s90, (L_pc_{tag} - {start})")
    a("s_subb_u32 s91, s91, 0")
    a("v_lshrrev_b32 v160, 6, v0" if nw != 16 else "v_lshrrev_b32 v120, 6, v0")
    R = 160 if nw != 16 else 120
    a("s_lshr_b32 s92, s2, 3")
    a(f"s_mul_i32 s92, s92, {nw}")
    a(f"v_add_u32 v{R}, s92, v{R}")
    a(f"v_lshlrev_b32 v{R}, 10, v{R}")
    a(f"v_and_b32 v{R+1}, 63, v0")
    a(f"v_lshl_add_u32 v{R}, v{R+1}, 4, v{R}")
    a(f"v_cmp_gt_u32 vcc, (({end} - {start}) & 0xfffffff0), v{R}")
    a("s_and_saveexec_b64 s[92:93], vcc")
    a(f"s_cbranch_execz L_pf_{tag}")
    a(f"global_load_dwordx4 v[{R+4}:{R+7}], v{R}, s[90:91]")
    a.label(f"L_pf_{tag}")
    a("s_mov_b64 exec, s[92:93]")

def gen_fused(opt):
    opt['fused'] = 1
    opt['k1blk'] = 768
    opt.setdefault('tab_store_flags', 'sc1'); opt.setdefault('l2_store_flags', 'sc1'); opt.setdefault('rec_flags', 'sc1')
    a = Asm()
    a.raw(HDR.rstrip("\n"))
    name = "standalone__molecular_angular_painn__graph_kernel"
    lds = max(k1w3.K1_LDS3, k2f.K2_LDS)
    a.raw(f"; @launch grid=(256,1,1) block=(768,1,1) lds={lds}")
    a.raw('.amdgcn_target "amdgcn-amd-amdhsa--gfx950"')
    a.raw(".text")
    a.raw(f".globl {name}")
    a.raw(".p2align 8")
    a.raw(f".type {name},@function")
    a.label(name)
    a("s_cmp_ge_u32 s2, 256")
    a("s_cbranch_scc1 L_exit")
    k1.stamp_begin(a, opt)
    k1.load_kernargs(a)
    a(f"s_cmp_lt_u32 s2, {k1.NCH}")
    a("s_cbranch_scc1 L_k1_edge")
    a(f"s_cmp_lt_u32 s2, {k1.NCH + k1w.NGEMM}")
    a("s_cbranch_scc1 L_k1_gemm")
    a("s_waitcnt lgkmcnt(0)")
    a("s_branch L_phaseB")
    a.label("L_k1_gemm")
    k1w3.gemm_role(a, opt)
    a.label("L_k1_edge")
    k1edge.edge_role(a, opt)
    k2f.k2w(a, opt)
    a.label("L_exit")
    a("s_endpgm")
    a.raw('.section .rodata,"a"')
    a.raw(".p2align 6")
    a.raw(kernel_desc(name, 168, 102))
    return a.text()

def gen(opt):
    if opt.get('fusedk'): return gen_fused(opt)
    a = Asm()
    a.raw(HDR.rstrip("\n"))
    ngemm = k1w.NGEMM if W else k1.NGEMM
    k1lds = k1w.K1_LDS if W else k1.K1_LDS
    k2n = k2w.K2_NWG if W else k2x.K2_NWG
    k2m = k2w2 if opt.get('k2v','2') == '2' else k2w
    k2lds = k2m.K2_LDS if W else k2x.K2_LDS
    v2 = W and opt.get('k1v', '4') in ('2', '3', '4')
    k1m = {'2': k1w2, '3': k1w3, '4': k1w4}.get(opt.get('k1v', '4'), k1w4)
    if v2: k1lds = k1m.K1_LDS3
    k1blk = 768 if v2 else 512
    opt['k1blk'] = k1blk
    a.raw(f"; @launch kernel=painn_k1_kernel grid=({k1.NCH + ngemm},1,1) block=({k1blk},1,1) lds={k1lds}")
    a.raw(f"; @launch kernel=painn_k2_kernel grid=({k2n},1,1) block=(1024,1,1) lds={k2lds}")
    if opt.get('red'):
        a.raw("; @launch kernel=painn_red_kernel grid=(1,1,1) block=(256,1,1) lds=0")
    nempty = int(opt.get('nempty', 0))
    for i in range(nempty):
        a.raw("; @launch kernel=painn_nop_kernel grid=(1,1,1) block=(64,1,1) lds=0")
    a.raw('.amdgcn_target "amdgcn-amd-amdhsa--gfx950"')
    a.raw(".text")
    for name in ("painn_k1_kernel", "painn_k2_kernel"):
        a.raw(f".globl {name}")
        a.raw(".p2align 8")
        a.raw(f".type {name},@function")
        a.label(name)
        if name == "painn_k1_kernel":
            a(f"s_cmp_ge_u32 s2, {k1.NCH + ngemm}")
            a("s_cbranch_scc1 L_k1_exit")
            k1.stamp_begin(a, opt)
            k1.load_kernargs(a)
            if opt.get('pf', '1') == '1': code_prefetch(a, "painn_k1_kernel", "L_code_end", 12 if v2 else 8, "k1")
            a(f"s_cmp_lt_u32 s2, {k1.NCH}")
            a("s_cbranch_scc1 L_k1_edge")
            (k1m if v2 else (k1w if W else k1)).gemm_role(a, opt)
            a.label("L_k1_edge")
            k1edge.edge_role(a, opt)
            a.label("L_k1_exit")
            a("s_endpgm")
        else:
            (k2m.k2w if W else k2x.k2x)(a, opt)
    a.label("L_code_end")
    if opt.get('red'):
        a.raw(".globl painn_red_kernel\n.p2align 8\n.type painn_red_kernel,@function")
        a.label("painn_red_kernel")
        a("s_cmp_ge_u32 s2, 1"); a("s_cbranch_scc1 L_red_exit")
        a("s_load_dwordx4 s[4:7], s[0:1], 72")
        a("s_waitcnt lgkmcnt(0)")
        a(f"s_add_u32 s8, s6, {k1.STAMP_OFF}"); a("s_addc_u32 s9, s7, 0")
        a("v_lshlrev_b32 v1, 9, v0")
        a("global_load_dwordx4 v[4:7], v1, s[8:9]"); a("global_load_dwordx4 v[8:11], v1, s[8:9] offset:16")
        a(f"v_add_u32 v2, {256*16*32}, v1")
        a("global_load_dwordx4 v[12:15], v2, s[8:9]"); a("global_load_dwordx4 v[16:19], v2, s[8:9] offset:16")
        a("s_waitcnt vmcnt(0)")
        def amax(dw, reg, neg=False):
            if neg: a(f"v_not_b32 v20, v{reg}")
            else: a(f"v_mov_b32 v20, v{reg}")
            a(f"v_mov_b32 v21, {4*dw}")
            a("global_atomic_umax v21, v20, s[4:5]")
        a("v_cmp_gt_u32 vcc, 250, v0"); a("s_and_saveexec_b64 s[10:11], vcc")
        amax(0, 4, True); amax(1, 4)
        a("s_mov_b64 exec, s[10:11]")
        a("v_cmp_gt_u32 vcc, 250, v0"); a("v_cmp_le_u32 s[12:13], 40, v0"); a("s_and_b64 vcc, vcc, s[12:13]"); a("s_and_saveexec_b64 s[10:11], vcc")
        for c in range(6): amax(2 + c, 5 + c)
        amax(8, 11)
        a("s_mov_b64 exec, s[10:11]")
        a("v_cmp_gt_u32 vcc, 40, v0"); a("s_and_saveexec_b64 s[10:11], vcc")
        amax(9, 11)
        a("s_mov_b64 exec, s[10:11]")
        amax(10, 12, True); amax(11, 15); amax(12, 19); amax(13, 19, True); amax(14, 13)
        a.label("L_red_exit")
        a("s_endpgm")
    if nempty:
        a.raw(".globl painn_nop_kernel\n.p2align 8\n.type painn_nop_kernel,@function")
        a.label("painn_nop_kernel")
        a("s_endpgm")
    a.raw('.section .rodata,"a"')
    a.raw(".p2align 6")
    a.raw(kernel_desc("painn_k1_kernel", 168 if v2 else 256, 102))
    a.raw(".p2align 6")
    a.raw(kernel_desc("painn_k2_kernel", 128, 102))
    if opt.get('red'):
        a.raw(".p2align 6")
        a.raw(kernel_desc("painn_red_kernel", 32, 32))
    if nempty:
        a.raw(".p2align 6")
        a.raw(kernel_desc("painn_nop_kernel", 8, 16))
    return a.text()

if __name__ == "__main__":
    out = sys.argv[1] if len(sys.argv) > 1 else "standalone__molecular_angular_painn__graph.s"
    opt = {}
    for kv in sys.argv[2:]:
        k, val = kv.split("=", 1); opt[k] = val
    open(out, "w").write(gen(opt))
    print("wrote", out)
```

```python
from asmlib import *
from k1 import *
import k1w
from k1w import SLICEB, TAB_OFF, TAB_SIZE, ROWB

K2_NWG = 256
RNG = 313
CNT_L = 0; START_L = 1280; ORDER_L = 2560; BKT_L = 3840; MISC_L = 3904
WPK_L = 4096
REC_L = 5120
NULL_L = REC_L + 1024 * 32
OWN_L = 38912
NOWN = 118
K2_LDS = OWN_L + NOWN * 1024
WORK_O, BUMP_O, C2_O, C3_O, RDY_O, OWN_O = 0, 4, 8, 12, 16, 20
OOBV = 0x7f000000

def dpp_scan(a, x, op="v_add_u32"):
    for sh in (1, 2, 4, 8):
        a("s_nop 1")
        a(f"{op}_dpp {v(x)}, {v(x)}, {v(x)} row_shr:{sh} row_mask:0xf bank_mask:0xf bound_ctrl:0")
    a("s_nop 1")
    a(f"{op}_dpp {v(x)}, {v(x)}, {v(x)} row_bcast:15 row_mask:0xa bank_mask:0xf")
    a("s_nop 1")
    a(f"{op}_dpp {v(x)}, {v(x)}, {v(x)} row_bcast:31 row_mask:0xc bank_mask:0xf")
    a("s_nop 1")

def spin(a, off, target, lbl, vt=7, st_="s69"):
    a(f"v_mov_b32 v{vt}, {MISC_L + off}")
    a.label(lbl)
    a(f"ds_read_b32 v1, v{vt}")
    a("s_waitcnt lgkmcnt(0)")
    a(f"v_readfirstlane_b32 {st_}, v1")
    a(f"s_cmp_ge_u32 {st_}, {target}")
    a(f"s_cbranch_scc0 {lbl}")
def signal(a, off, vt=7):
    a("s_waitcnt lgkmcnt(0)")
    a("s_mov_b64 exec, 1")
    a(f"v_mov_b32 v{vt}, {MISC_L + off}")
    a("v_mov_b32 v1, 1")
    a(f"ds_add_u32 v{vt}, v1")
    a("s_mov_b64 exec, -1")

def k2w(a, opt):
    TAB, SV, OUT, REC, CNT, WR = 40, 44, 48, 52, 56, 60
    ost = opt.get('out_store_flags', '')
    sres = opt.get('sres_flags', '')
    a(f"s_cmp_ge_u32 s2, {K2_NWG}")
    a("s_cbranch_scc1 L_k2_exit")
    stamp_begin(a, opt)
    if opt.get('delay'):
        a(f"s_mov_b32 s69, {int(opt['delay'])}")
        a.label("L_k2_delay")
        for i in range(16): a("s_nop 15")
        a("s_sub_u32 s69, s69, 1")
        a("s_cmp_lg_u32 s69, 0")
        a("s_cbranch_scc1 L_k2_delay")
    load_kernargs(a)
    a("v_lshrrev_b32 v1, 6, v0")
    a("v_and_b32 v2, 63, v0")
    a("s_and_b32 s65, s2, 7")
    a("s_lshr_b32 s66, s2, 3")
    a(f"s_mul_i32 s67, s66, {RNG}")
    a(f"s_sub_u32 s68, {N}, s67")
    a(f"s_min_u32 s68, s68, {RNG}")
    a("v_lshlrev_b32 v5, 2, v0")
    a("v_mov_b32 v6, 0")
    a("v_cmp_gt_u32 vcc, 320, v0")
    a("s_and_saveexec_b64 s[70:71], vcc")
    a(f"ds_write_b32 v5, v6 offset:{CNT_L}")
    a("s_mov_b64 exec, s[70:71]")
    a("v_cmp_gt_u32 vcc, 32, v0")
    a("s_and_saveexec_b64 s[70:71], vcc")
    a(f"ds_write_b32 v5, v6 offset:{BKT_L}")
    a("s_mov_b64 exec, s[70:71]")
    a("s_waitcnt lgkmcnt(0)")
    a("v_readfirstlane_b32 s64, v1")
    srd(a, REC, P_WS, REC_SIZE, REC_OFF)
    srd(a, CNT, P_WS, CNT_SIZE, CNT_OFF)
    a("v_lshlrev_b32 v4, 8, v2")
    a("s_lshl_b32 s69, s66, 2")
    a(f"buffer_load_dword v13, v4, {s(CNT,4)}, s69 offen")
    a("s_cmp_ge_u32 s64, 8")
    a("s_cbranch_scc1 L_k2_norec")
    a("s_lshl_b32 s69, s66, 10")
    a("v_add_u32 v3, s69, v0")
    a(f"v_mul_u32_u24 v3, {RECB}, v3")
    a(f"buffer_load_dwordx4 v[8:11], v3, {s(REC,4)}, 0 offen")
    a(f"buffer_load_dword v12, v3, {s(REC,4)}, 0 offen offset:16")
    a(f"v_add_u32 v3, {512*RECB}, v3")
    a(f"buffer_load_dwordx4 v[16:19], v3, {s(REC,4)}, 0 offen")
    a(f"buffer_load_dword v20, v3, {s(REC,4)}, 0 offen offset:16")
    a.label("L_k2_norec")
    a(f"s_mul_i32 s69, s65, {SLICEB}")
    a(f"s_add_u32 s{TAB}, s{P_WS}, s69")
    a(f"s_addc_u32 s{TAB+1}, s{P_WS+1}, 0")
    if TAB_OFF:
        a(f"s_add_u32 s{TAB}, s{TAB}, {TAB_OFF}")
        a(f"s_addc_u32 s{TAB+1}, s{TAB+1}, 0")
    a(f"s_mov_b32 s{TAB+2}, {SLICEB}")
    a(f"s_mov_b32 s{TAB+3}, 0x00020000")
    srd(a, SV, P_SV, N * 2048)
    srd(a, OUT, P_OUT, N * 2048)
    srd(a, WR, P_WR, 4 * 1536)
    a("s_barrier")
    def total():
        a("v_mov_b32 v14, v13")
        for sh in (1, 2, 4, 8):
            a("s_nop 1")
            a(f"v_add_u32_dpp v14, v14, v14 row_shr:{sh} row_mask:0xf bank_mask:0xf bound_ctrl:0")
        a("s_nop 1")
        a("v_readlane_b32 s72, v14, 15")
        a("v_readlane_b32 s73, v14, 31")
        a("v_readlane_b32 s74, v14, 47")
        a("s_add_u32 s72, s72, s73")
        a("s_add_u32 s72, s72, s74")
    a("s_cmp_ge_u32 s64, 8")
    a("s_cbranch_scc0 L_k2_sorter")
    a("s_cmp_eq_u32 s64, 8")
    a("s_cbranch_scc0 L_k2_now")
    vWraw = 64
    a("v_and_b32 v7, 7, v2")
    a("v_lshlrev_b32 v7, 3, v7")
    a("s_lshl_b32 s69, s65, 6")
    a("v_add_u32 v7, s69, v7")
    a("s_movk_i32 s69, 3072")
    for k in range(4):
        for p in range(3):
            off = k*1536 + p*512
            if off < 3072:
                a(f"buffer_load_dwordx2 {v(vWraw+(k*3+p)*2,2)}, v7, {s(WR,4)}, 0 offen offset:{off}")
            else:
                a(f"buffer_load_dwordx2 {v(vWraw+(k*3+p)*2,2)}, v7, {s(WR,4)}, s69 offen offset:{off-3072}")
    a("s_waitcnt vmcnt(0)")
    vW = 96
    a("s_mov_b32 s70, 0x05040100")
    a("s_mov_b32 s71, 0x07060302")
    for p in range(3):
        for ch in range(4):
            d = ch >> 1
            sel = "s70" if (ch & 1) == 0 else "s71"
            for h in range(2):
                r0 = vWraw + ((2*h)*3+p)*2 + d; r1 = vWraw + ((2*h+1)*3+p)*2 + d
                a(f"v_perm_b32 {v(vW+(p*4+ch)*2+h)}, {v(r1)}, {v(r0)}, {sel}")
    a("v_and_b32 v7, 7, v2")
    a("v_mul_u32_u24 v7, 96, v7")
    a("v_cmp_gt_u32 vcc, 8, v2")
    a("s_and_saveexec_b64 s[70:71], vcc")
    for q in range(6):
        a(f"ds_write_b128 v7, {v(vW+4*q,4)} offset:{WPK_L + 16*q}")
    a("s_mov_b64 exec, 1")
    a(f"v_mov_b32 v40, {OOBV}")
    for r in (41, 42, 43, 44, 45): a(f"v_mov_b32 v{r}, 0")
    a(f"v_mov_b32 v7, {NULL_L}")
    a("ds_write_b128 v7, v[40:43]")
    a("ds_write_b64 v7, v[44:45] offset:16")
    a("s_mov_b64 exec, -1")
    signal(a, RDY_O)
    a.label("L_k2_now")
    a("v_lshlrev_b32 v6, 4, v2")
    a(f"s_mul_i32 s70, s67, {ROWB}")
    a("s_sub_u32 s69, s64, 8")
    a("s_lshl_b32 s69, s69, 10")
    if opt.get('exp_k2_nodma'): a("s_branch L_k2_dmaskip")
    a.label("L_k2_dmaloop")
    a(f"s_add_u32 s71, s69, {OWN_L}")
    a("s_mov_b32 m0, s71")
    a("s_add_u32 s71, s70, s69")
    a(f"buffer_load_dwordx4 v6, {s(TAB,4)}, s71 offen lds")
    a("s_add_u32 s69, s69, 8192")
    a(f"s_cmp_lt_u32 s69, {NOWN*1024}")
    a("s_cbranch_scc1 L_k2_dmaloop")
    a.label("L_k2_dmaskip")
    a("s_waitcnt vmcnt(0)")
    st(a, opt, 0)
    total()
    signal(a, OWN_O)
    spin(a, RDY_O, 9, "L_k2_sp_rdy")
    st(a, opt, 2)
    a("s_waitcnt lgkmcnt(0)")
    a(f"s_cmp_gt_u32 s72, {HOTCAP}")
    a("s_cbranch_scc1 L_k2_slow")
    a("s_branch L_k2_main")
    a.label("L_k2_sorter")
    a("s_waitcnt vmcnt(0)")
    st(a, opt, 0)
    total()
    if opt.get('stamps'): a("s_waitcnt lgkmcnt(0)")
    a(f"s_cmp_gt_u32 s72, {HOTCAP}")
    a("s_cbranch_scc0 L_k2_sort")
    signal(a, RDY_O)
    spin(a, RDY_O, 9, "L_k2_sp_rdy2")
    a("s_branch L_k2_slow")
    a.label("L_k2_sort")
    a("v_lshrrev_b32 v14, 14, v8")
    a("v_lshrrev_b32 v15, 14, v16")
    a("v_lshlrev_b32 v30, 2, v14")
    a("v_lshlrev_b32 v31, 2, v15")
    a("v_mov_b32 v21, 1")
    a("v_mov_b32 v22, 1")
    a("v_add_u32 v23, 512, v0")
    a("v_cmp_gt_u32 s[76:77], s72, v0")
    a("v_cmp_gt_u32 s[78:79], s72, v23")
    a("s_mov_b64 exec, s[76:77]")
    a(f"ds_add_rtn_u32 v21, v30, v21 offset:{CNT_L}")
    a("s_mov_b64 exec, s[78:79]")
    a(f"ds_add_rtn_u32 v22, v31, v22 offset:{CNT_L}")
    a("s_mov_b64 exec, -1")
    for (raw, last, dst) in ((8, 12, 32), (16, 20, 40)):
        a(f"v_and_b32 v{dst}, 0x3fff, v{raw}")
        a(f"v_mul_u32_u24 v{dst}, {ROWB}, v{dst}")
        a(f"v_mov_b32 v{dst+1}, v{raw+1}")
        a(f"v_mov_b32 v{dst+2}, v{raw+2}")
        a(f"v_lshlrev_b32 v{dst+3}, 16, v{raw+3}")
        a(f"v_and_b32 v{dst+4}, 0xffff0000, v{raw+3}")
        a(f"v_lshlrev_b32 v{dst+5}, 16, v{last}")
    signal(a, C2_O)
    spin(a, C2_O, 8, "L_k2_sp_c2")
    st(a, opt, 1)
    a("s_waitcnt lgkmcnt(0)")
    a("s_cmp_lt_u32 s64, 5")
    a("s_cbranch_scc0 L_k2_nonode")
    a(f"ds_read_b32 v26, v5 offset:{CNT_L}")
    a("v_cmp_gt_u32 s[80:81], s68, v0")
    a("s_waitcnt lgkmcnt(0)")
    a("v_cndmask_b32 v26, 0, v26, s[80:81]")
    a("v_mov_b32 v27, v26")
    dpp_scan(a, 27)
    a("v_readlane_b32 s82, v27, 63")
    a("s_mov_b64 exec, 1")
    a(f"v_mov_b32 v28, {MISC_L+BUMP_O}")
    a("v_mov_b32 v29, s82")
    a("ds_add_rtn_u32 v29, v28, v29")
    a("s_mov_b64 exec, -1")
    a("v_min_u32 v48, 15, v26")
    a("v_sub_u32 v48, 15, v48")
    a("v_lshlrev_b32 v49, 2, v48")
    a("v_mov_b32 v50, 1")
    a("s_mov_b64 exec, s[80:81]")
    a(f"ds_add_rtn_u32 v50, v49, v50 offset:{BKT_L}")
    a("s_mov_b64 exec, -1")
    a("s_waitcnt lgkmcnt(0)")
    a("v_readfirstlane_b32 s82, v29")
    a("v_sub_u32 v27, v27, v26")
    a("v_add_u32 v27, s82, v27")
    a("s_mov_b64 exec, s[80:81]")
    a(f"ds_write_b32 v5, v27 offset:{START_L}")
    a("s_mov_b64 exec, -1")
    a.label("L_k2_nonode")
    signal(a, C3_O)
    spin(a, C3_O, 8, "L_k2_sp_c3")
    a("s_cmp_lt_u32 s64, 5")
    a("s_cbranch_scc0 L_k2_noord")
    a("v_lshlrev_b32 v51, 2, v2")
    a(f"ds_read_b32 v51, v51 offset:{BKT_L}")
    a("s_waitcnt lgkmcnt(0)")
    a("v_mov_b32 v52, v51")
    for sh in (1, 2, 4, 8):
        a("s_nop 1")
        a(f"v_add_u32_dpp v52, v52, v52 row_shr:{sh} row_mask:0xf bank_mask:0xf bound_ctrl:0")
    a("s_nop 1")
    a("v_sub_u32 v52, v52, v51")
    a("ds_bpermute_b32 v52, v49, v52")
    a("s_waitcnt lgkmcnt(0)")
    a("v_add_u32 v52, v52, v50")
    a("v_lshlrev_b32 v52, 2, v52")
    a("s_mov_b64 exec, s[80:81]")
    a(f"ds_write_b32 v52, v0 offset:{ORDER_L}")
    a("s_mov_b64 exec, -1")
    a.label("L_k2_noord")
    a(f"ds_read_b32 v53, v30 offset:{START_L}")
    a(f"ds_read_b32 v54, v31 offset:{START_L}")
    a("s_waitcnt lgkmcnt(0)")
    a("v_add_u32 v53, v53, v21")
    a("v_add_u32 v54, v54, v22")
    a("v_lshlrev_b32 v53, 5, v53")
    a("v_lshlrev_b32 v54, 5, v54")
    a("s_mov_b64 exec, s[76:77]")
    a(f"ds_write_b128 v53, v[32:35] offset:{REC_L}")
    a(f"ds_write_b64 v53, v[36:37] offset:{REC_L+16}")
    a("s_mov_b64 exec, s[78:79]")
    a(f"ds_write_b128 v54, v[40:43] offset:{REC_L}")
    a(f"ds_write_b64 v54, v[44:45] offset:{REC_L+16}")
    a("s_mov_b64 exec, -1")
    signal(a, RDY_O)
    spin(a, RDY_O, 9, "L_k2_sp_rdy3")
    st(a, opt, 2)
    a("s_waitcnt lgkmcnt(0)")
    a.label("L_k2_main")

    vW = 96
    vAcc = 8; vRawA = 24; vRawB = 36; vRA = 48; vRB = 56
    vWf = 64; vU = 120
    vJ16 = 3; vSb = 4; vDeg = 5; vOV = 6; vRes = 76; vT = 78; vOwn = 7; vE = 80; vAd = 81
    def load_w():
        a("v_and_b32 v7, 7, v2")
        a("v_mul_u32_u24 v7, 96, v7")
        for q in range(6):
            a(f"ds_read_b128 {v(vW+4*q,4)}, v7 offset:{WPK_L + 16*q}")
        a("v_and_b32 v3, 7, v2")
        a("v_lshlrev_b32 v3, 4, v3")
    def compute(R, RC):
        for p in range(3):
            for ch in range(4):
                a(f"v_dot2_f32_bf16 {v(vWf+p*4+ch)}, {v(vW+(p*4+ch)*2+1)}, {v(RC+2)}, 0")
        for p in range(3):
            for ch in range(4):
                a(f"v_dot2_f32_bf16 {v(vWf+p*4+ch)}, {v(vW+(p*4+ch)*2)}, {v(RC+1)}, {v(vWf+p*4+ch)}")
        for d in range(2):
            a(f"v_lshlrev_b32 {v(vU)}, 16, {v(R+d)}")
            a(f"v_and_b32 {v(vU+1)}, 0xffff0000, {v(R+d)}")
            a(f"v_fmac_f32 {v(vAcc+2*d)}, {v(vU)}, {v(vWf+2*d)}")
            a(f"v_fmac_f32 {v(vAcc+2*d+1)}, {v(vU+1)}, {v(vWf+2*d+1)}")
        for p in (1, 2):
            for d in range(2):
                a(f"v_lshlrev_b32 {v(vU+2)}, 16, {v(R+2*p+d)}")
                a(f"v_and_b32 {v(vU+3)}, 0xffff0000, {v(R+2*p+d)}")
                a(f"v_mul_f32 {v(vWf+p*4+2*d)}, {v(vU+2)}, {v(vWf+p*4+2*d)}")
                a(f"v_mul_f32 {v(vWf+p*4+2*d+1)}, {v(vU+3)}, {v(vWf+p*4+2*d+1)}")
        for j in range(3):
            for d in range(2):
                a(f"v_lshlrev_b32 {v(vU+4)}, 16, {v(R+6+2*j+d)}")
                a(f"v_and_b32 {v(vU+5)}, 0xffff0000, {v(R+6+2*j+d)}")
                A = vAcc + 4 + j*4 + 2*d
                a(f"v_fmac_f32 {v(A)}, {v(vU+4)}, {v(vWf+4+2*d)}")
                a(f"v_fmac_f32 {v(A+1)}, {v(vU+5)}, {v(vWf+4+2*d+1)}")
                a(f"v_fmac_f32 {v(A)}, {v(RC+3+j)}, {v(vWf+8+2*d)}")
                a(f"v_fmac_f32 {v(A+1)}, {v(RC+3+j)}, {v(vWf+8+2*d+1)}")
    def issue_rows(R, RC):
        a(f"v_add_u32 {v(vAd)}, {v(RC)}, {v(vJ16)}")
        for q in range(3):
            a(f"buffer_load_dwordx4 {v(R+4*q,4)}, {v(vAd)}, {s(TAB,4)}, 0 offen offset:{q*128}")
    def fetch_rec(RC, e_expr_sgpr):
        a(f"s_lshl_b32 s87, {e_expr_sgpr}, 5")
        a(f"v_add_u32 {v(vAd)}, s87, {v(vSb)}")
        a(f"v_cmp_lt_u32 vcc, {e_expr_sgpr}, {v(vDeg)}")
        a(f"v_mov_b32 {v(vT)}, {NULL_L}")
        a(f"v_cndmask_b32 {v(vAd)}, {v(vT)}, {v(vAd)}, vcc")
        a(f"ds_read_b128 {v(RC,4)}, {v(vAd)}")
        a(f"ds_read_b64 {v(RC+4,2)}, {v(vAd)} offset:16")
        a("s_waitcnt lgkmcnt(0)")
    vRx = 82; vRyz = 84
    def load_residual():
        if opt.get('exp_k2_nos'): return
        a(f"buffer_load_dwordx2 {v(vRes,2)}, {v(vOV)}, {s(SV,4)}, 0 offen {sres}")
    def own_residual(lbl):
        a("s_cmp_lg_u32 s91, 0") if False else None
        a(f"s_cbranch_scc1 {lbl}_ok") if False else None
        a("s_cmp_eq_u32 s75, 1")
        a(f"s_cbranch_scc1 {lbl}_ok")
        spin(a, OWN_O, 8, lbl + "_sp", vt=vT, st_="s75")
        a("s_mov_b32 s75, 1")
        a.label(lbl + "_ok")
        a(f"ds_read_b64 {v(vRx,2)}, {v(vOwn)} offset:136")
        a(f"ds_read_b128 {v(vRyz,4)}, {v(vOwn)} offset:256")
        a("s_waitcnt lgkmcnt(0)")
    def zero_acc():
        for r in range(16): a(f"v_mov_b32 {v(vAcc+r)}, 0")
    def finish_store():
        res = [vRes, vRx, vRyz, vRyz + 2]
        for c in range(4):
            for d in range(2):
                U = vU + 2*((2*c+d) & 3)
                a(f"v_lshlrev_b32 {v(U)}, 16, {v(res[c]+d)}")
                a(f"v_and_b32 {v(U+1)}, 0xffff0000, {v(res[c]+d)}")
                a(f"v_add_f32 {v(vAcc+4*c+2*d)}, {v(vAcc+4*c+2*d)}, {v(U)}")
                a(f"v_add_f32 {v(vAcc+4*c+2*d+1)}, {v(vAcc+4*c+2*d+1)}, {v(U+1)}")
        for c in range(4):
            for d in range(2):
                a(f"v_cvt_pk_bf16_f32 {v(vWf+2*c+d)}, {v(vAcc+c*4+2*d)}, {v(vAcc+c*4+2*d+1)}")
        for c in range(4):
            if opt.get('exp_k2_nostore'): continue
            a(f"buffer_store_dwordx2 {v(vWf+2*c,2)}, {v(vOV)}, {s(OUT,4)}, 0 offen offset:{c*512} {ost}")

    load_w()
    a("s_mov_b32 s75, 0")
    a.label("L_k2_next")
    a("s_mov_b64 exec, 1")
    a(f"v_mov_b32 {v(vT)}, {MISC_L}")
    a(f"v_mov_b32 {v(vU)}, 1")
    a(f"ds_add_rtn_u32 {v(vT)}, {v(vT)}, {v(vU)}")
    a("s_waitcnt lgkmcnt(0)")
    a(f"v_readfirstlane_b32 s80, {v(vT)}")
    a("s_mov_b64 exec, -1")
    a("s_lshl_b32 s80, s80, 3")
    a("s_cmp_ge_u32 s80, s68")
    a("s_cbranch_scc1 L_k2_exit")
    a(f"v_lshrrev_b32 {v(vT)}, 3, v2")
    a(f"v_add_u32 {v(vT)}, s80, {v(vT)}")
    a(f"v_cmp_gt_u32 s[82:83], s68, {v(vT)}")
    a(f"v_lshlrev_b32 {v(vT+1)}, 2, {v(vT)}")
    a(f"ds_read_b32 {v(vT+1)}, {v(vT+1)} offset:{ORDER_L}")
    a("s_waitcnt lgkmcnt(0)")
    a(f"v_cndmask_b32 {v(vT+1)}, 0, {v(vT+1)}, s[82:83]")
    a(f"v_lshlrev_b32 {v(vT)}, 2, {v(vT+1)}")
    a(f"ds_read_b32 {v(vDeg)}, {v(vT)} offset:{CNT_L}")
    a(f"ds_read_b32 {v(vSb)}, {v(vT)} offset:{START_L}")
    a(f"v_add_u32 {v(vOV)}, s67, {v(vT+1)}")
    a(f"v_lshlrev_b32 {v(vOV)}, 11, {v(vOV)}")
    a(f"v_lshrrev_b32 {v(vT)}, 1, {v(vJ16)}")
    a(f"v_add_u32 {v(vOV)}, {v(vOV)}, {v(vT)}")
    a("s_lshl_b32 s84, s65, 6")
    a(f"v_add_u32 {v(vOV)}, s84, {v(vOV)}")
    a(f"v_mov_b32 {v(vT)}, {OOBV}")
    a(f"v_cndmask_b32 {v(vOV)}, {v(vT)}, {v(vOV)}, s[82:83]")
    a(f"v_mul_u32_u24 {v(vOwn)}, {ROWB}, {v(vT+1)}")
    a(f"v_add_u32 {v(vOwn)}, {v(vOwn)}, {v(vJ16)}")
    a(f"v_add_u32 {v(vOwn)}, {OWN_L}, {v(vOwn)}")
    load_residual()
    a("s_waitcnt lgkmcnt(0)")
    a(f"v_cndmask_b32 {v(vDeg)}, 0, {v(vDeg)}, s[82:83]")
    a(f"v_lshlrev_b32 {v(vSb)}, 5, {v(vSb)}")
    a(f"v_add_u32 {v(vSb)}, {REC_L}, {v(vSb)}")
    a(f"v_mov_b32 {v(vT)}, {v(vDeg)}")
    for sh in (8,):
        a("s_nop 1")
        a(f"v_max_u32_dpp {v(vT)}, {v(vT)}, {v(vT)} row_shr:8 row_mask:0xf bank_mask:0xf bound_ctrl:0")
    a("s_nop 1")
    a(f"v_readlane_b32 s85, {v(vT)}, 15")
    a(f"v_readlane_b32 s86, {v(vT)}, 31")
    a("s_max_u32 s85, s85, s86")
    a(f"v_readlane_b32 s86, {v(vT)}, 47")
    a("s_max_u32 s85, s85, s86")
    a(f"v_readlane_b32 s86, {v(vT)}, 63")
    a("s_max_u32 s85, s85, s86")
    if opt.get('exp_k2_noedge'): a("s_mov_b32 s85, 0")
    a("s_cmp_eq_u32 s85, 0")
    a("s_cbranch_scc1 L_k2_noedge")
    a("s_mov_b32 s88, 0")
    fetch_rec(vRA, "s88")
    issue_rows(vRawA, vRA)
    a("s_cmp_gt_u32 s85, 1")
    a("s_cbranch_scc0 L_k2_one")
    a("s_mov_b32 s88, 1")
    fetch_rec(vRB, "s88")
    issue_rows(vRawB, vRB)
    a.label("L_k2_one")
    zero_acc()
    a("s_mov_b32 s89, 0")
    a.label("L_k2_loop")
    for bufi, (R, RC) in enumerate(((vRawA, vRA), (vRawB, vRB))):
        a("s_add_u32 s88, s89, 1")
        a("s_cmp_lt_u32 s88, s85")
        a(f"s_cbranch_scc1 L_k2_w3_{bufi}")
        a("s_waitcnt vmcnt(0)")
        a(f"s_branch L_k2_wd_{bufi}")
        a.label(f"L_k2_w3_{bufi}")
        a("s_waitcnt vmcnt(3)")
        a.label(f"L_k2_wd_{bufi}")
        compute(R, RC)
        a("s_add_u32 s88, s89, 2")
        a("s_cmp_lt_u32 s88, s85")
        a(f"s_cbranch_scc0 L_k2_ni_{bufi}")
        fetch_rec(RC, "s88")
        issue_rows(R, RC)
        a.label(f"L_k2_ni_{bufi}")
        a("s_add_u32 s89, s89, 1")
        a("s_cmp_lt_u32 s89, s85")
        if bufi == 0:
            a("s_cbranch_scc0 L_k2_fin")
        else:
            a("s_cbranch_scc1 L_k2_loop")
    a("s_branch L_k2_fin")
    a.label("L_k2_noedge")
    zero_acc()
    a("s_waitcnt vmcnt(0)")
    a.label("L_k2_fin")
    own_residual("L_k2_own1")
    finish_store()
    a("s_branch L_k2_next")

    a.label("L_k2_slow")
    load_w()
    a("s_mov_b32 s75, 0")
    a("s_mov_b32 s80, s64")
    a.label("L_k2_snext")
    a("s_cmp_ge_u32 s80, s68")
    a("s_cbranch_scc1 L_k2_exit")
    a("s_add_u32 s81, s67, s80")
    a("s_lshl_b32 s81, s81, 11")
    a("s_lshl_b32 s84, s65, 6")
    a("s_add_u32 s81, s81, s84")
    a(f"v_lshrrev_b32 {v(vT)}, 1, {v(vJ16)}")
    a(f"v_add_u32 {v(vOV)}, s81, {v(vT)}")
    a(f"s_mul_i32 s81, s80, {ROWB}")
    a(f"s_add_u32 s81, s81, {OWN_L}")
    a(f"v_add_u32 {v(vOwn)}, s81, {v(vJ16)}")
    load_residual()
    zero_acc()
    a("s_mov_b32 s85, 0")
    a(f"s_mul_i32 s90, s66, {COLD_BIN}")
    a(f"s_add_u32 s90, s90, {HOT_SIZE}")
    a("s_lshl_b32 s91, s66, 10")
    a.label("L_k2_sscan")
    a("s_cmp_ge_u32 s85, s72")
    a("s_cbranch_scc1 L_k2_sfin")
    a(f"v_add_u32 {v(vT)}, s85, v2")
    a(f"v_add_u32 {v(vT+1)}, s91, {v(vT)}")
    a(f"v_mul_u32_u24 {v(vT+1)}, {RECB}, {v(vT+1)}")
    a(f"v_mul_u32_u24 {v(vE)}, {RECB}, {v(vT)}")
    a(f"v_add_u32 {v(vE)}, s90, {v(vE)}")
    a(f"v_cmp_gt_u32 vcc, {HOTCAP}, {v(vT)}")
    a("s_nop 1")
    a(f"v_cndmask_b32 {v(vE)}, {v(vE)}, {v(vT+1)}, vcc")
    a(f"buffer_load_dword {v(vT+1)}, {v(vE)}, {s(REC,4)}, 0 offen")
    a("s_waitcnt vmcnt(0)")
    a(f"v_lshrrev_b32 {v(vT+1)}, 14, {v(vT+1)}")
    a(f"v_cmp_eq_u32 vcc, s80, {v(vT+1)}")
    a(f"v_cmp_gt_u32 s[92:93], s72, {v(vT)}")
    a("s_and_b64 s[92:93], s[92:93], vcc")
    a.label("L_k2_smatch")
    a("s_cmp_eq_u64 s[92:93], 0")
    a("s_cbranch_scc1 L_k2_sadv")
    a("s_ff1_i32_b64 s94, s[92:93]")
    a("s_bitset0_b64 s[92:93], s94")
    a(f"v_readlane_b32 s95, {v(vE)}, s94")
    a("s_nop 3")
    a(f"v_mov_b32 {v(vT)}, s95")
    a(f"buffer_load_dwordx4 {v(vRA,4)}, {v(vT)}, {s(REC,4)}, 0 offen")
    a(f"buffer_load_dword {v(vRA+5)}, {v(vT)}, {s(REC,4)}, 0 offen offset:16")
    a("s_waitcnt vmcnt(0)")
    a(f"v_and_b32 {v(vRA)}, 0x3fff, {v(vRA)}")
    a(f"v_mul_u32_u24 {v(vRA)}, {ROWB}, {v(vRA)}")
    a(f"v_and_b32 {v(vRA+4)}, 0xffff0000, {v(vRA+3)}")
    a(f"v_lshlrev_b32 {v(vRA+3)}, 16, {v(vRA+3)}")
    a(f"v_lshlrev_b32 {v(vRA+5)}, 16, {v(vRA+5)}")
    issue_rows(vRawA, vRA)
    a("s_waitcnt vmcnt(0)")
    compute(vRawA, vRA)
    a("s_branch L_k2_smatch")
    a.label("L_k2_sadv")
    a("s_add_u32 s85, s85, 64")
    a("s_branch L_k2_sscan")
    a.label("L_k2_sfin")
    a("s_waitcnt vmcnt(0)")
    own_residual("L_k2_own2")
    a("s_mov_b64 exec, 0xff")
    finish_store()
    a("s_mov_b64 exec, -1")
    a("s_add_u32 s80, s80, 16")
    a("s_branch L_k2_snext")
    a.label("L_k2_exit")
    if opt.get('stamps'):
        a(f"s_cmp_ge_u32 s2, {K2_NWG}")
        a("s_cbranch_scc1 L_k2_exit2")
        stamp_end(a, opt, 1, 'k2')
        a.label("L_k2_exit2")
    a("s_endpgm")
```

```python
from asmlib import *
from k1 import *
import k1w
from k1w import SLICEB, TAB_OFF, TAB_SIZE, ROWB

K2_NWG = 256
RNG = 313
CNT_L = 0; START_L = 1280; ORDER_L = 2560; BKT_L = 3840; MISC_L = 3904
WPK_L = 4096
REC_L = 5120
NULL_L = REC_L + 1024 * 32
OWN_L = 38912
NOWN = 118
K2_LDS = OWN_L + NOWN * 1024
WORK_O, BUMP_O, C2_O, C3_O, RDY_O, OWN_O = 0, 4, 8, 12, 16, 20
OOBV = 0x7f000000

def dpp_scan(a, x, op="v_add_u32"):
    for sh in (1, 2, 4, 8):
        a("s_nop 1")
        a(f"{op}_dpp {v(x)}, {v(x)}, {v(x)} row_shr:{sh} row_mask:0xf bank_mask:0xf bound_ctrl:0")
    a("s_nop 1")
    a(f"{op}_dpp {v(x)}, {v(x)}, {v(x)} row_bcast:15 row_mask:0xa bank_mask:0xf")
    a("s_nop 1")
    a(f"{op}_dpp {v(x)}, {v(x)}, {v(x)} row_bcast:31 row_mask:0xc bank_mask:0xf")
    a("s_nop 1")

def spin(a, off, target, lbl, vt=7, st_="s69"):
    a(f"v_mov_b32 v{vt}, {MISC_L + off}")
    a.label(lbl)
    a(f"ds_read_b32 v1, v{vt}")
    a("s_waitcnt lgkmcnt(0)")
    a(f"v_readfirstlane_b32 {st_}, v1")
    a(f"s_cmp_ge_u32 {st_}, {target}")
    a(f"s_cbranch_scc0 {lbl}")
def signal(a, off, vt=7):
    a("s_waitcnt lgkmcnt(0)")
    a("s_mov_b64 exec, 1")
    a(f"v_mov_b32 v{vt}, {MISC_L + off}")
    a("v_mov_b32 v1, 1")
    a(f"ds_add_u32 v{vt}, v1")
    a("s_mov_b64 exec, -1")

def k2w(a, opt):
    TAB, SV, OUT, REC, CNT, WR = 40, 44, 48, 52, 56, 60
    ost = opt.get('out_store_flags', '')
    sres = opt.get('sres_flags', '')
    a(f"s_cmp_ge_u32 s2, {K2_NWG}")
    a("s_cbranch_scc1 L_k2_exit")
    stamp_begin(a, opt)
    if opt.get('delay'):
        a(f"s_mov_b32 s69, {int(opt['delay'])}")
        a.label("L_k2_delay")
        for i in range(16): a("s_nop 15")
        a("s_sub_u32 s69, s69, 1")
        a("s_cmp_lg_u32 s69, 0")
        a("s_cbranch_scc1 L_k2_delay")
    load_kernargs(a)
    a("v_lshrrev_b32 v1, 6, v0")
    a("v_and_b32 v2, 63, v0")
    if opt.get('antiaff'):
        a("s_lshr_b32 s65, s2, 5")
        a("s_and_b32 s66, s2, 31")
    else:
        a("s_and_b32 s65, s2, 7")
        a("s_lshr_b32 s66, s2, 3")
    a(f"s_mul_i32 s67, s66, {RNG}")
    a(f"s_sub_u32 s68, {N}, s67")
    a(f"s_min_u32 s68, s68, {RNG}")
    a("v_lshlrev_b32 v5, 2, v0")
    a("v_mov_b32 v6, 0")
    a("v_cmp_gt_u32 vcc, 320, v0")
    a("s_and_saveexec_b64 s[70:71], vcc")
    a(f"ds_write_b32 v5, v6 offset:{CNT_L}")
    a("s_mov_b64 exec, s[70:71]")
    a("v_cmp_gt_u32 vcc, 32, v0")
    a("s_and_saveexec_b64 s[70:71], vcc")
    a(f"ds_write_b32 v5, v6 offset:{BKT_L}")
    a("s_mov_b64 exec, s[70:71]")
    a("s_waitcnt lgkmcnt(0)")
    a("v_readfirstlane_b32 s64, v1")
    srd(a, REC, P_WS, REC_SIZE, REC_OFF)
    srd(a, CNT, P_WS, CNT_SIZE, CNT_OFF)
    a("v_lshlrev_b32 v4, 8, v2")
    a("s_lshl_b32 s69, s66, 2")
    a(f"buffer_load_dword v13, v4, {s(CNT,4)}, s69 offen")
    a("s_cmp_ge_u32 s64, 8")
    a("s_cbranch_scc1 L_k2_norec")
    a("s_lshl_b32 s69, s66, 10")
    a("v_add_u32 v3, s69, v0")
    a(f"v_mul_u32_u24 v3, {RECB}, v3")
    a(f"buffer_load_dwordx4 v[8:11], v3, {s(REC,4)}, 0 offen")
    a(f"buffer_load_dword v12, v3, {s(REC,4)}, 0 offen offset:16")
    a(f"v_add_u32 v3, {512*RECB}, v3")
    a(f"buffer_load_dwordx4 v[16:19], v3, {s(REC,4)}, 0 offen")
    a(f"buffer_load_dword v20, v3, {s(REC,4)}, 0 offen offset:16")
    a.label("L_k2_norec")
    a(f"s_mul_i32 s69, s65, {SLICEB}")
    a(f"s_add_u32 s{TAB}, s{P_WS}, s69")
    a(f"s_addc_u32 s{TAB+1}, s{P_WS+1}, 0")
    if TAB_OFF:
        a(f"s_add_u32 s{TAB}, s{TAB}, {TAB_OFF}")
        a(f"s_addc_u32 s{TAB+1}, s{TAB+1}, 0")
    a(f"s_mov_b32 s{TAB+2}, {SLICEB}")
    a(f"s_mov_b32 s{TAB+3}, 0x00020000")
    srd(a, SV, P_SV, N * 2048)
    srd(a, OUT, P_OUT, N * 2048)
    srd(a, WR, P_WR, 4 * 1536)
    a("s_barrier")
    def total():
        a("v_mov_b32 v14, v13")
        for sh in (1, 2, 4, 8):
            a("s_nop 1")
            a(f"v_add_u32_dpp v14, v14, v14 row_shr:{sh} row_mask:0xf bank_mask:0xf bound_ctrl:0")
        a("s_nop 1")
        a("v_readlane_b32 s72, v14, 15")
        a("v_readlane_b32 s73, v14, 31")
        a("v_readlane_b32 s74, v14, 47")
        a("s_add_u32 s72, s72, s73")
        a("s_add_u32 s72, s72, s74")
    a("s_cmp_ge_u32 s64, 8")
    a("s_cbranch_scc0 L_k2_sorter")
    delay(a, opt.get('d_pf'), "L_d_pf")
    a("s_cmp_eq_u32 s64, 8")
    a("s_cbranch_scc0 L_k2_now")
    vWraw = 64
    a("v_and_b32 v7, 7, v2")
    a("v_lshlrev_b32 v7, 3, v7")
    a("s_lshl_b32 s69, s65, 6")
    a("v_add_u32 v7, s69, v7")
    a("s_movk_i32 s69, 3072")
    for k in range(4):
        for p in range(3):
            off = k*1536 + p*512
            if off < 3072:
                a(f"buffer_load_dwordx2 {v(vWraw+(k*3+p)*2,2)}, v7, {s(WR,4)}, 0 offen offset:{off}")
            else:
                a(f"buffer_load_dwordx2 {v(vWraw+(k*3+p)*2,2)}, v7, {s(WR,4)}, s69 offen offset:{off-3072}")
    a("s_waitcnt vmcnt(0)")
    vW = 96
    a("s_mov_b32 s70, 0x05040100")
    a("s_mov_b32 s71, 0x07060302")
    for p in range(3):
        for ch in range(4):
            d = ch >> 1
            sel = "s70" if (ch & 1) == 0 else "s71"
            for h in range(2):
                r0 = vWraw + ((2*h)*3+p)*2 + d; r1 = vWraw + ((2*h+1)*3+p)*2 + d
                a(f"v_perm_b32 {v(vW+(p*4+ch)*2+h)}, {v(r1)}, {v(r0)}, {sel}")
    a("v_and_b32 v7, 7, v2")
    a("v_mul_u32_u24 v7, 96, v7")
    a("v_cmp_gt_u32 vcc, 8, v2")
    a("s_and_saveexec_b64 s[70:71], vcc")
    for q in range(6):
        a(f"ds_write_b128 v7, {v(vW+4*q,4)} offset:{WPK_L + 16*q}")
    a("s_mov_b64 exec, 1")
    a(f"v_mov_b32 v40, {OOBV}")
    for r in (41, 42, 43, 44, 45): a(f"v_mov_b32 v{r}, 0")
    a(f"v_mov_b32 v7, {NULL_L}")
    a("ds_write_b128 v7, v[40:43]")
    a("ds_write_b64 v7, v[44:45] offset:16")
    a("s_mov_b64 exec, -1")
    signal(a, RDY_O)
    a.label("L_k2_now")
    a("v_lshlrev_b32 v6, 4, v2")
    a(f"s_mul_i32 s70, s67, {ROWB}")
    a("s_sub_u32 s69, s64, 8")
    a("s_lshl_b32 s69, s69, 10")
    if opt.get('exp_k2_nodma'): a("s_branch L_k2_dmaskip")
    a.label("L_k2_dmaloop")
    a(f"s_add_u32 s71, s69, {OWN_L}")
    a("s_mov_b32 m0, s71")
    a("s_add_u32 s71, s70, s69")
    a(f"buffer_load_dwordx4 v6, {s(TAB,4)}, s71 offen lds")
    a("s_add_u32 s69, s69, 8192")
    a(f"s_cmp_lt_u32 s69, {NOWN*1024}")
    a("s_cbranch_scc1 L_k2_dmaloop")
    a.label("L_k2_dmaskip")
    a("s_waitcnt vmcnt(0)")
    st(a, opt, 0)
    total()
    signal(a, OWN_O)
    spin(a, RDY_O, 9, "L_k2_sp_rdy")
    st(a, opt, 2)
    a("s_waitcnt lgkmcnt(0)")
    a(f"s_cmp_gt_u32 s72, {HOTCAP}")
    a("s_cbranch_scc1 L_k2_slow")
    a("s_branch L_k2_main")
    a.label("L_k2_sorter")
    delay(a, opt.get('d_sort'), "L_d_sort")
    a("s_waitcnt vmcnt(0)")
    st(a, opt, 0)
    total()
    if opt.get('stamps'): a("s_waitcnt lgkmcnt(0)")
    a(f"s_cmp_gt_u32 s72, {HOTCAP}")
    a("s_cbranch_scc0 L_k2_sort")
    signal(a, RDY_O)
    spin(a, RDY_O, 9, "L_k2_sp_rdy2")
    a("s_branch L_k2_slow")
    a.label("L_k2_sort")
    a("v_lshrrev_b32 v14, 14, v8")
    a("v_lshrrev_b32 v15, 14, v16")
    a("v_lshlrev_b32 v30, 2, v14")
    a("v_lshlrev_b32 v31, 2, v15")
    a("v_mov_b32 v21, 1")
    a("v_mov_b32 v22, 1")
    a("v_add_u32 v23, 512, v0")
    a("v_cmp_gt_u32 s[76:77], s72, v0")
    a("v_cmp_gt_u32 s[78:79], s72, v23")
    a("s_mov_b64 exec, s[76:77]")
    a(f"ds_add_rtn_u32 v21, v30, v21 offset:{CNT_L}")
    a("s_mov_b64 exec, s[78:79]")
    a(f"ds_add_rtn_u32 v22, v31, v22 offset:{CNT_L}")
    a("s_mov_b64 exec, -1")
    for (raw, last, dst) in ((8, 12, 32), (16, 20, 40)):
        a(f"v_and_b32 v{dst}, 0x3fff, v{raw}")
        a(f"v_mul_u32_u24 v{dst}, {ROWB}, v{dst}")
        a(f"v_mov_b32 v{dst+1}, v{raw+1}")
        a(f"v_mov_b32 v{dst+2}, v{raw+2}")
        a(f"v_lshlrev_b32 v{dst+3}, 16, v{raw+3}")
        a(f"v_and_b32 v{dst+4}, 0xffff0000, v{raw+3}")
        a(f"v_lshlrev_b32 v{dst+5}, 16, v{last}")
    signal(a, C2_O)
    spin(a, C2_O, 8, "L_k2_sp_c2")
    st(a, opt, 1)
    a("s_waitcnt lgkmcnt(0)")
    a("s_cmp_lt_u32 s64, 5")
    a("s_cbranch_scc0 L_k2_nonode")
    a(f"ds_read_b32 v26, v5 offset:{CNT_L}")
    a("v_cmp_gt_u32 s[80:81], s68, v0")
    a("s_waitcnt lgkmcnt(0)")
    a("v_cndmask_b32 v26, 0, v26, s[80:81]")
    a("v_mov_b32 v27, v26")
    dpp_scan(a, 27)
    a("v_readlane_b32 s82, v27, 63")
    a("s_mov_b64 exec, 1")
    a(f"v_mov_b32 v28, {MISC_L+BUMP_O}")
    a("v_mov_b32 v29, s82")
    a("ds_add_rtn_u32 v29, v28, v29")
    a("s_mov_b64 exec, -1")
    a("v_min_u32 v48, 15, v26")
    a("v_sub_u32 v48, 15, v48")
    a("v_lshlrev_b32 v49, 2, v48")
    a("v_mov_b32 v50, 1")
    a("s_mov_b64 exec, s[80:81]")
    a(f"ds_add_rtn_u32 v50, v49, v50 offset:{BKT_L}")
    a("s_mov_b64 exec, -1")
    a("s_waitcnt lgkmcnt(0)")
    a("v_readfirstlane_b32 s82, v29")
    a("v_sub_u32 v27, v27, v26")
    a("v_add_u32 v27, s82, v27")
    a("s_mov_b64 exec, s[80:81]")
    a(f"ds_write_b32 v5, v27 offset:{START_L}")
    a("s_mov_b64 exec, -1")
    a.label("L_k2_nonode")
    signal(a, C3_O)
    spin(a, C3_O, 8, "L_k2_sp_c3")
    a("s_cmp_lt_u32 s64, 5")
    a("s_cbranch_scc0 L_k2_noord")
    a("v_lshlrev_b32 v51, 2, v2")
    a(f"ds_read_b32 v51, v51 offset:{BKT_L}")
    a("s_waitcnt lgkmcnt(0)")
    a("v_mov_b32 v52, v51")
    for sh in (1, 2, 4, 8):
        a("s_nop 1")
        a(f"v_add_u32_dpp v52, v52, v52 row_shr:{sh} row_mask:0xf bank_mask:0xf bound_ctrl:0")
    a("s_nop 1")
    a("v_sub_u32 v52, v52, v51")
    a("ds_bpermute_b32 v52, v49, v52")
    a("s_waitcnt lgkmcnt(0)")
    a("v_add_u32 v52, v52, v50")
    a("v_lshlrev_b32 v52, 2, v52")
    a("s_mov_b64 exec, s[80:81]")
    a(f"ds_write_b32 v52, v0 offset:{ORDER_L}")
    a("s_mov_b64 exec, -1")
    a.label("L_k2_noord")
    a(f"ds_read_b32 v53, v30 offset:{START_L}")
    a(f"ds_read_b32 v54, v31 offset:{START_L}")
    a("s_waitcnt lgkmcnt(0)")
    a("v_add_u32 v53, v53, v21")
    a("v_add_u32 v54, v54, v22")
    a("v_lshlrev_b32 v53, 5, v53")
    a("v_lshlrev_b32 v54, 5, v54")
    a("s_mov_b64 exec, s[76:77]")
    a(f"ds_write_b128 v53, v[32:35] offset:{REC_L}")
    a(f"ds_write_b64 v53, v[36:37] offset:{REC_L+16}")
    a("s_mov_b64 exec, s[78:79]")
    a(f"ds_write_b128 v54, v[40:43] offset:{REC_L}")
    a(f"ds_write_b64 v54, v[44:45] offset:{REC_L+16}")
    a("s_mov_b64 exec, -1")
    signal(a, RDY_O)
    spin(a, RDY_O, 9, "L_k2_sp_rdy3")
    st(a, opt, 2)
    a("s_waitcnt lgkmcnt(0)")
    a.label("L_k2_main")

    vW = 96
    vAcc = 8; vRawA = 24; vRawB = 36; vRA = 48; vRB = 56
    vWf = 64; vU = 120
    vJ16 = 3; vSb = 4; vDeg = 5; vOV = 6; vRes = 76; vT = 78; vOwn = 7; vE = 80; vAd = 81
    def load_w():
        a("v_and_b32 v7, 7, v2")
        a("v_mul_u32_u24 v7, 96, v7")
        for q in range(6):
            a(f"ds_read_b128 {v(vW+4*q,4)}, v7 offset:{WPK_L + 16*q}")
        a("v_and_b32 v3, 7, v2")
        a("v_lshlrev_b32 v3, 4, v3")
    def compute(R, RC):
        for p in range(3):
            for ch in range(4):
                a(f"v_dot2_f32_bf16 {v(vWf+p*4+ch)}, {v(vW+(p*4+ch)*2+1)}, {v(RC+2)}, 0")
        for p in range(3):
            for ch in range(4):
                a(f"v_dot2_f32_bf16 {v(vWf+p*4+ch)}, {v(vW+(p*4+ch)*2)}, {v(RC+1)}, {v(vWf+p*4+ch)}")
        for d in range(2):
            a(f"v_lshlrev_b32 {v(vU)}, 16, {v(R+d)}")
            a(f"v_and_b32 {v(vU+1)}, 0xffff0000, {v(R+d)}")
            a(f"v_fmac_f32 {v(vAcc+2*d)}, {v(vU)}, {v(vWf+2*d)}")
            a(f"v_fmac_f32 {v(vAcc+2*d+1)}, {v(vU+1)}, {v(vWf+2*d+1)}")
        for p in (1, 2):
            for d in range(2):
                a(f"v_lshlrev_b32 {v(vU+2)}, 16, {v(R+2*p+d)}")
                a(f"v_and_b32 {v(vU+3)}, 0xffff0000, {v(R+2*p+d)}")
                a(f"v_mul_f32 {v(vWf+p*4+2*d)}, {v(vU+2)}, {v(vWf+p*4+2*d)}")
                a(f"v_mul_f32 {v(vWf+p*4+2*d+1)}, {v(vU+3)}, {v(vWf+p*4+2*d+1)}")
        for j in range(3):
            for d in range(2):
                a(f"v_lshlrev_b32 {v(vU+4)}, 16, {v(R+6+2*j+d)}")
                a(f"v_and_b32 {v(vU+5)}, 0xffff0000, {v(R+6+2*j+d)}")
                A = vAcc + 4 + j*4 + 2*d
                a(f"v_fmac_f32 {v(A)}, {v(vU+4)}, {v(vWf+4+2*d)}")
                a(f"v_fmac_f32 {v(A+1)}, {v(vU+5)}, {v(vWf+4+2*d+1)}")
                a(f"v_fmac_f32 {v(A)}, {v(RC+3+j)}, {v(vWf+8+2*d)}")
                a(f"v_fmac_f32 {v(A+1)}, {v(RC+3+j)}, {v(vWf+8+2*d+1)}")
    def issue_rows(R, RC):
        a(f"v_add_u32 {v(vAd)}, {v(RC)}, {v(vJ16)}")
        for q in range(3):
            a(f"buffer_load_dwordx4 {v(R+4*q,4)}, {v(vAd)}, {s(TAB,4)}, 0 offen offset:{q*128}")
    def fetch_rec(RC, e_expr_sgpr):
        a(f"s_lshl_b32 s87, {e_expr_sgpr}, 5")
        a(f"v_add_u32 {v(vAd)}, s87, {v(vSb)}")
        a(f"v_cmp_lt_u32 vcc, {e_expr_sgpr}, {v(vDeg)}")
        a(f"v_mov_b32 {v(vT)}, {NULL_L}")
        a(f"v_cndmask_b32 {v(vAd)}, {v(vT)}, {v(vAd)}, vcc")
        a(f"ds_read_b128 {v(RC,4)}, {v(vAd)}")
        a(f"ds_read_b64 {v(RC+4,2)}, {v(vAd)} offset:16")
        a("s_waitcnt lgkmcnt(0)")
    vRx = 82; vRyz = 84
    def load_residual():
        if opt.get('exp_k2_nos'): return
        a(f"buffer_load_dwordx2 {v(vRes,2)}, {v(vOV)}, {s(SV,4)}, 0 offen {sres}")
    def own_residual(lbl):
        a("s_cmp_lg_u32 s91, 0") if False else None
        a(f"s_cbranch_scc1 {lbl}_ok") if False else None
        a("s_cmp_eq_u32 s75, 1")
        a(f"s_cbranch_scc1 {lbl}_ok")
        spin(a, OWN_O, 8, lbl + "_sp", vt=vT, st_="s75")
        a("s_mov_b32 s75, 1")
        a.label(lbl + "_ok")
        a(f"ds_read_b64 {v(vRx,2)}, {v(vOwn)} offset:136")
        a(f"ds_read_b128 {v(vRyz,4)}, {v(vOwn)} offset:256")
        a("s_waitcnt lgkmcnt(0)")
    def zero_acc():
        for r in range(16): a(f"v_mov_b32 {v(vAcc+r)}, 0")
    def finish_store():
        res = [vRes, vRx, vRyz, vRyz + 2]
        for c in range(4):
            for d in range(2):
                U = vU + 2*((2*c+d) & 3)
                a(f"v_lshlrev_b32 {v(U)}, 16, {v(res[c]+d)}")
                a(f"v_and_b32 {v(U+1)}, 0xffff0000, {v(res[c]+d)}")
                a(f"v_add_f32 {v(vAcc+4*c+2*d)}, {v(vAcc+4*c+2*d)}, {v(U)}")
                a(f"v_add_f32 {v(vAcc+4*c+2*d+1)}, {v(vAcc+4*c+2*d+1)}, {v(U+1)}")
        for c in range(4):
            for d in range(2):
                a(f"v_cvt_pk_bf16_f32 {v(vWf+2*c+d)}, {v(vAcc+c*4+2*d)}, {v(vAcc+c*4+2*d+1)}")
        for c in range(4):
            if opt.get('exp_k2_nostore'): continue
            a(f"buffer_store_dwordx2 {v(vWf+2*c,2)}, {v(vOV)}, {s(OUT,4)}, 0 offen offset:{c*512} {ost}")

    load_w()
    a("s_mov_b32 s75, 0")
    a.label("L_k2_next")
    a("s_mov_b64 exec, 1")
    a(f"v_mov_b32 {v(vT)}, {MISC_L}")
    a(f"v_mov_b32 {v(vU)}, 1")
    a(f"ds_add_rtn_u32 {v(vT)}, {v(vT)}, {v(vU)}")
    a("s_waitcnt lgkmcnt(0)")
    a(f"v_readfirstlane_b32 s80, {v(vT)}")
    a("s_mov_b64 exec, -1")
    a("s_lshl_b32 s80, s80, 3")
    a("s_cmp_ge_u32 s80, s68")
    a("s_cbranch_scc1 L_k2_exit")
    a(f"v_lshrrev_b32 {v(vT)}, 3, v2")
    a(f"v_add_u32 {v(vT)}, s80, {v(vT)}")
    a(f"v_cmp_gt_u32 s[82:83], s68, {v(vT)}")
    a(f"v_lshlrev_b32 {v(vT+1)}, 2, {v(vT)}")
    a(f"ds_read_b32 {v(vT+1)}, {v(vT+1)} offset:{ORDER_L}")
    a("s_waitcnt lgkmcnt(0)")
    a(f"v_cndmask_b32 {v(vT+1)}, 0, {v(vT+1)}, s[82:83]")
    a(f"v_lshlrev_b32 {v(vT)}, 2, {v(vT+1)}")
    a(f"ds_read_b32 {v(vDeg)}, {v(vT)} offset:{CNT_L}")
    a(f"ds_read_b32 {v(vSb)}, {v(vT)} offset:{START_L}")
    a(f"v_add_u32 {v(vOV)}, s67, {v(vT+1)}")
    a(f"v_lshlrev_b32 {v(vOV)}, 11, {v(vOV)}")
    a(f"v_lshrrev_b32 {v(vT)}, 1, {v(vJ16)}")
    a(f"v_add_u32 {v(vOV)}, {v(vOV)}, {v(vT)}")
    a("s_lshl_b32 s84, s65, 6")
    a(f"v_add_u32 {v(vOV)}, s84, {v(vOV)}")
    a(f"v_mov_b32 {v(vT)}, {OOBV}")
    a(f"v_cndmask_b32 {v(vOV)}, {v(vT)}, {v(vOV)}, s[82:83]")
    a(f"v_mul_u32_u24 {v(vOwn)}, {ROWB}, {v(vT+1)}")
    a(f"v_add_u32 {v(vOwn)}, {v(vOwn)}, {v(vJ16)}")
    a(f"v_add_u32 {v(vOwn)}, {OWN_L}, {v(vOwn)}")
    load_residual()
    a("s_waitcnt lgkmcnt(0)")
    a(f"v_cndmask_b32 {v(vDeg)}, 0, {v(vDeg)}, s[82:83]")
    a(f"v_lshlrev_b32 {v(vSb)}, 5, {v(vSb)}")
    a(f"v_add_u32 {v(vSb)}, {REC_L}, {v(vSb)}")
    a(f"v_mov_b32 {v(vT)}, {v(vDeg)}")
    for sh in (8,):
        a("s_nop 1")
        a(f"v_max_u32_dpp {v(vT)}, {v(vT)}, {v(vT)} row_shr:8 row_mask:0xf bank_mask:0xf bound_ctrl:0")
    a("s_nop 1")
    a(f"v_readlane_b32 s85, {v(vT)}, 15")
    a(f"v_readlane_b32 s86, {v(vT)}, 31")
    a("s_max_u32 s85, s85, s86")
    a(f"v_readlane_b32 s86, {v(vT)}, 47")
    a("s_max_u32 s85, s85, s86")
    a(f"v_readlane_b32 s86, {v(vT)}, 63")
    a("s_max_u32 s85, s85, s86")
    if opt.get('exp_k2_noedge'): a("s_mov_b32 s85, 0")
    a("s_cmp_eq_u32 s85, 0")
    a("s_cbranch_scc1 L_k2_noedge")
    a("s_mov_b32 s88, 0")
    fetch_rec(vRA, "s88")
    issue_rows(vRawA, vRA)
    a("s_cmp_gt_u32 s85, 1")
    a("s_cbranch_scc0 L_k2_one")
    a("s_mov_b32 s88, 1")
    fetch_rec(vRB, "s88")
    issue_rows(vRawB, vRB)
    a.label("L_k2_one")
    zero_acc()
    a("s_mov_b32 s89, 0")
    a.label("L_k2_loop")
    for bufi, (R, RC) in enumerate(((vRawA, vRA), (vRawB, vRB))):
        a("s_add_u32 s88, s89, 1")
        a("s_cmp_lt_u32 s88, s85")
        a(f"s_cbranch_scc1 L_k2_w3_{bufi}")
        a("s_waitcnt vmcnt(0)")
        a(f"s_branch L_k2_wd_{bufi}")
        a.label(f"L_k2_w3_{bufi}")
        a("s_waitcnt vmcnt(3)")
        a.label(f"L_k2_wd_{bufi}")
        compute(R, RC)
        a("s_add_u32 s88, s89, 2")
        a("s_cmp_lt_u32 s88, s85")
        a(f"s_cbranch_scc0 L_k2_ni_{bufi}")
        fetch_rec(RC, "s88")
        issue_rows(R, RC)
        a.label(f"L_k2_ni_{bufi}")
        a("s_add_u32 s89, s89, 1")
        a("s_cmp_lt_u32 s89, s85")
        if bufi == 0:
            a("s_cbranch_scc0 L_k2_fin")
        else:
            a("s_cbranch_scc1 L_k2_loop")
    a("s_branch L_k2_fin")
    a.label("L_k2_noedge")
    zero_acc()
    a("s_waitcnt vmcnt(0)")
    a.label("L_k2_fin")
    own_residual("L_k2_own1")
    finish_store()
    a("s_branch L_k2_next")

    a.label("L_k2_slow")
    load_w()
    a("s_mov_b32 s75, 0")
    a("s_mov_b32 s80, s64")
    a.label("L_k2_snext")
    a("s_cmp_ge_u32 s80, s68")
    a("s_cbranch_scc1 L_k2_exit")
    a("s_add_u32 s81, s67, s80")
    a("s_lshl_b32 s81, s81, 11")
    a("s_lshl_b32 s84, s65, 6")
    a("s_add_u32 s81, s81, s84")
    a(f"v_lshrrev_b32 {v(vT)}, 1, {v(vJ16)}")
    a(f"v_add_u32 {v(vOV)}, s81, {v(vT)}")
    a(f"s_mul_i32 s81, s80, {ROWB}")
    a(f"s_add_u32 s81, s81, {OWN_L}")
    a(f"v_add_u32 {v(vOwn)}, s81, {v(vJ16)}")
    load_residual()
    zero_acc()
    a("s_mov_b32 s85, 0")
    a(f"s_mul_i32 s90, s66, {COLD_BIN}")
    a(f"s_add_u32 s90, s90, {HOT_SIZE}")
    a("s_lshl_b32 s91, s66, 10")
    a.label("L_k2_sscan")
    a("s_cmp_ge_u32 s85, s72")
    a("s_cbranch_scc1 L_k2_sfin")
    a(f"v_add_u32 {v(vT)}, s85, v2")
    a(f"v_add_u32 {v(vT+1)}, s91, {v(vT)}")
    a(f"v_mul_u32_u24 {v(vT+1)}, {RECB}, {v(vT+1)}")
    a(f"v_mul_u32_u24 {v(vE)}, {RECB}, {v(vT)}")
    a(f"v_add_u32 {v(vE)}, s90, {v(vE)}")
    a(f"v_cmp_gt_u32 vcc, {HOTCAP}, {v(vT)}")
    a("s_nop 1")
    a(f"v_cndmask_b32 {v(vE)}, {v(vE)}, {v(vT+1)}, vcc")
    a(f"buffer_load_dword {v(vT+1)}, {v(vE)}, {s(REC,4)}, 0 offen")
    a("s_waitcnt vmcnt(0)")
    a(f"v_lshrrev_b32 {v(vT+1)}, 14, {v(vT+1)}")
    a(f"v_cmp_eq_u32 vcc, s80, {v(vT+1)}")
    a(f"v_cmp_gt_u32 s[92:93], s72, {v(vT)}")
    a("s_and_b64 s[92:93], s[92:93], vcc")
    a.label("L_k2_smatch")
    a("s_cmp_eq_u64 s[92:93], 0")
    a("s_cbranch_scc1 L_k2_sadv")
    a("s_ff1_i32_b64 s94, s[92:93]")
    a("s_bitset0_b64 s[92:93], s94")
    a(f"v_readlane_b32 s95, {v(vE)}, s94")
    a("s_nop 3")
    a(f"v_mov_b32 {v(vT)}, s95")
    a(f"buffer_load_dwordx4 {v(vRA,4)}, {v(vT)}, {s(REC,4)}, 0 offen")
    a(f"buffer_load_dword {v(vRA+5)}, {v(vT)}, {s(REC,4)}, 0 offen offset:16")
    a("s_waitcnt vmcnt(0)")
    a(f"v_and_b32 {v(vRA)}, 0x3fff, {v(vRA)}")
    a(f"v_mul_u32_u24 {v(vRA)}, {ROWB}, {v(vRA)}")
    a(f"v_and_b32 {v(vRA+4)}, 0xffff0000, {v(vRA+3)}")
    a(f"v_lshlrev_b32 {v(vRA+3)}, 16, {v(vRA+3)}")
    a(f"v_lshlrev_b32 {v(vRA+5)}, 16, {v(vRA+5)}")
    issue_rows(vRawA, vRA)
    a("s_waitcnt vmcnt(0)")
    compute(vRawA, vRA)
    a("s_branch L_k2_smatch")
    a.label("L_k2_sadv")
    a("s_add_u32 s85, s85, 64")
    a("s_branch L_k2_sscan")
    a.label("L_k2_sfin")
    a("s_waitcnt vmcnt(0)")
    own_residual("L_k2_own2")
    a("s_mov_b64 exec, 0xff")
    finish_store()
    a("s_mov_b64 exec, -1")
    a("s_add_u32 s80, s80, 16")
    a("s_branch L_k2_snext")
    a.label("L_k2_exit")
    if opt.get('stamps'):
        a(f"s_cmp_ge_u32 s2, {K2_NWG}")
        a("s_cbranch_scc1 L_k2_exit2")
        stamp_end(a, opt, 1, 'k2')
        a.label("L_k2_exit2")
    a("s_endpgm")
```

```python
class Asm:
    def __init__(self):
        self.lines = []
    def __call__(self, s):
        for l in s.split("\n"):
            self.lines.append("    " + l.strip())
    def label(self, l):
        self.lines.append(l + ":")
    def raw(self, s):
        self.lines.append(s)
    def c(self, s):
        self.lines.append("    ; " + s)
    def text(self):
        return "\n".join(self.lines) + "\n"

def v(i, n=1):
    return f"v{i}" if n == 1 else f"v[{i}:{i+n-1}]"
def s(i, n=1):
    return f"s{i}" if n == 1 else f"s[{i}:{i+n-1}]"

class Regs:
    def __init__(self, start, limit):
        self.cur = start; self.limit = limit; self.names = {}
    def alloc(self, n=1, align=1, name=None):
        self.cur = (self.cur + align - 1) // align * align
        r = self.cur
        self.cur += n
        assert self.cur <= self.limit, f"out of regs allocating {name} ({self.cur} > {self.limit})"
        if name: self.names[name] = (r, n)
        return r

def srd(a, dst, base, size, off=0, tmp=None):
    if off:
        a(f"s_add_u32 {s(dst)}, {s(base)}, {off}")
        a(f"s_addc_u32 {s(dst+1)}, {s(base+1)}, 0")
    else:
        a(f"s_mov_b32 {s(dst)}, {s(base)}")
        a(f"s_mov_b32 {s(dst+1)}, {s(base+1)}")
    a(f"s_mov_b32 {s(dst+2)}, {size}")
    a(f"s_mov_b32 {s(dst+3)}, 0x00020000")


def delay(a, n, lbl, sreg="s89"):
    if not n: return
    a(f"s_mov_b32 {sreg}, {int(n)}")
    a.label(lbl)
    for i in range(16): a("s_nop 15")
    a(f"s_sub_u32 {sreg}, {sreg}, 1")
    a(f"s_cmp_lg_u32 {sreg}, 0")
    a(f"s_cbranch_scc1 {lbl}")
```

```python
import sys
from asmlib import *
import k1, k1edge, k2x, k1w, k2w, k1w2, k2w2, k1w3, k2f, k1w4, k1w5, k1c, k2c
W = (k1.DESIGN == 'W')

HDR = open("standalone__molecular_angular_painn__graph.s.ref").read().split("; Override launch")[0]

def kernel_desc(name, vgpr, sgpr):
    acc = (vgpr + 3)//4*4
    return f""".amdhsa_kernel {name}
  .amdhsa_next_free_vgpr {vgpr}
  .amdhsa_next_free_sgpr {sgpr}
  .amdhsa_accum_offset {acc}
  .amdhsa_group_segment_fixed_size 0
  .amdhsa_kernarg_size 88
  .amdhsa_user_sgpr_count 2
  .amdhsa_user_sgpr_kernarg_segment_ptr 1
  .amdhsa_system_sgpr_workgroup_id_x 1
  .amdhsa_float_denorm_mode_32 3
  .amdhsa_float_denorm_mode_16_64 3
.end_amdhsa_kernel
"""

def code_prefetch(a, start, end, nw, tag):
    a("s_getpc_b64 s[90:91]")
    a.label(f"L_pc_{tag}")
    a(f"s_sub_u32 s90, s90, (L_pc_{tag} - {start})")
    a("s_subb_u32 s91, s91, 0")
    a("v_lshrrev_b32 v160, 6, v0" if nw != 16 else "v_lshrrev_b32 v120, 6, v0")
    R = 160 if nw != 16 else 120
    a("s_lshr_b32 s92, s2, 3")
    a(f"s_mul_i32 s92, s92, {nw}")
    a(f"v_add_u32 v{R}, s92, v{R}")
    a(f"v_lshlrev_b32 v{R}, 10, v{R}")
    a(f"v_and_b32 v{R+1}, 63, v0")
    a(f"v_lshl_add_u32 v{R}, v{R+1}, 4, v{R}")
    a(f"v_cmp_gt_u32 vcc, (({end} - {start}) & 0xfffffff0), v{R}")
    a("s_and_saveexec_b64 s[92:93], vcc")
    a(f"s_cbranch_execz L_pf_{tag}")
    a(f"global_load_dwordx4 v[{R+4}:{R+7}], v{R}, s[90:91]")
    a.label(f"L_pf_{tag}")
    a("s_mov_b64 exec, s[92:93]")

def gen_fused(opt):
    opt['fused'] = 1
    opt['k1blk'] = 768
    opt.setdefault('tab_store_flags', 'sc1'); opt.setdefault('l2_store_flags', 'sc1'); opt.setdefault('rec_flags', 'sc1')
    a = Asm()
    a.raw(HDR.rstrip("\n"))
    name = "standalone__molecular_angular_painn__graph_kernel"
    lds = max(k1w3.K1_LDS3, k2f.K2_LDS)
    a.raw(f"; @launch grid=(256,1,1) block=(768,1,1) lds={lds}")
    a.raw('.amdgcn_target "amdgcn-amd-amdhsa--gfx950"')
    a.raw(".text")
    a.raw(f".globl {name}")
    a.raw(".p2align 8")
    a.raw(f".type {name},@function")
    a.label(name)
    a("s_cmp_ge_u32 s2, 256")
    a("s_cbranch_scc1 L_exit")
    k1.stamp_begin(a, opt)
    k1.load_kernargs(a)
    a(f"s_cmp_lt_u32 s2, {k1.NCH}")
    a("s_cbranch_scc1 L_k1_edge")
    a(f"s_cmp_lt_u32 s2, {k1.NCH + k1w.NGEMM}")
    a("s_cbranch_scc1 L_k1_gemm")
    a("s_waitcnt lgkmcnt(0)")
    a("s_branch L_phaseB")
    a.label("L_k1_gemm")
    k1w3.gemm_role(a, opt)
    a.label("L_k1_edge")
    k1edge.edge_role(a, opt)
    k2f.k2w(a, opt)
    a.label("L_exit")
    a("s_endpgm")
    a.raw('.section .rodata,"a"')
    a.raw(".p2align 6")
    a.raw(kernel_desc(name, 168, 102))
    return a.text()

def gen(opt):
    if opt.get('fusedk'): return gen_fused(opt)
    a = Asm()
    a.raw(HDR.rstrip("\n"))
    ngemm = k1w.NGEMM if W else k1.NGEMM
    k1lds = k1w.K1_LDS if W else k1.K1_LDS
    k2n = k2w.K2_NWG if W else k2x.K2_NWG
    k2m = k2w2 if opt.get('k2v','2') == '2' else k2w
    if opt.get('csplit'): k2m = k2c
    k2lds = k2m.K2_LDS if W else k2x.K2_LDS
    v2 = W and opt.get('k1v', '5') in ('2', '3', '4', '5')
    k1m = {'2': k1w2, '3': k1w3, '4': k1w4, '5': k1w5}.get(opt.get('k1v', '5'), k1w5)
    if opt.get('csplit'): k1m = k1c
    if v2: k1lds = k1m.K1_LDS3
    k1blk = 768 if v2 else 512
    opt['k1blk'] = k1blk
    a.raw(f"; @launch kernel=painn_k1_kernel grid=({k1.NCH + ngemm},1,1) block=({k1blk},1,1) lds={k1lds}")
    a.raw(f"; @launch kernel=painn_k2_kernel grid=({k2n},1,1) block=(1024,1,1) lds={k2lds}")
    if opt.get('red') or opt.get('amp'):
        a.raw("; @launch kernel=painn_red_kernel grid=(1,1,1) block=(256,1,1) lds=0")
    nempty = int(opt.get('nempty', 0))
    for i in range(nempty):
        a.raw("; @launch kernel=painn_nop_kernel grid=(1,1,1) block=(64,1,1) lds=0")
    a.raw('.amdgcn_target "amdgcn-amd-amdhsa--gfx950"')
    a.raw(".text")
    for name in ("painn_k1_kernel", "painn_k2_kernel"):
        a.raw(f".globl {name}")
        a.raw(".p2align 8")
        a.raw(f".type {name},@function")
        a.label(name)
        if name == "painn_k1_kernel":
            a(f"s_cmp_ge_u32 s2, {k1.NCH + ngemm}")
            a("s_cbranch_scc1 L_k1_exit")
            k1.stamp_begin(a, opt)
            k1.load_kernargs(a)
            if opt.get('pf', '1') == '1': code_prefetch(a, "painn_k1_kernel", "L_code_end", 12 if v2 else 8, "k1")
            a(f"s_cmp_lt_u32 s2, {k1.NCH}")
            a("s_cbranch_scc1 L_k1_edge")
            (k1m if v2 else (k1w if W else k1)).gemm_role(a, opt)
            a.label("L_k1_edge")
            k1edge.edge_role(a, opt)
            a.label("L_k1_exit")
            a("s_endpgm")
        else:
            (k2m.k2w if W else k2x.k2x)(a, opt)
    a.label("L_code_end")
    if opt.get('amp'):
        kA, wA, cA, kB, wB, cB = [int(x) for x in opt['amp'].split(',')]
        a.raw(".globl painn_red_kernel\n.p2align 8\n.type painn_red_kernel,@function")
        a.label("painn_red_kernel")
        a("s_cmp_ge_u32 s2, 1"); a("s_cbranch_scc1 L_red_exit")
        a("s_load_dwordx4 s[4:7], s[0:1], 72")
        a("s_waitcnt lgkmcnt(0)")
        a(f"s_add_u32 s8, s6, {k1.STAMP_OFF}"); a("s_addc_u32 s9, s7, 0")
        a(f"s_load_dword s10, s[8:9], {kA*256*16*32 + wA*512 + cA*4}")
        a(f"s_load_dword s11, s[8:9], {kB*256*16*32 + wB*512 + cB*4}")
        a("s_memrealtime s[12:13]")
        a("s_waitcnt lgkmcnt(0)")
        a("s_sub_u32 s10, s11, s10")
        a("s_mul_i32 s10, s10, 5")
        a("s_min_u32 s10, s10, 100000")
        a("s_add_u32 s10, s10, s12")
        a.label("L_amp")
        a("s_memrealtime s[14:15]")
        a("s_waitcnt lgkmcnt(0)")
        a("s_sub_u32 s16, s14, s10")
        a("s_cmp_lt_i32 s16, 0")
        a("s_cbranch_scc1 L_amp")
        a.label("L_red_exit")
        a("s_endpgm")
    if opt.get('red'):
        a.raw(".globl painn_red_kernel\n.p2align 8\n.type painn_red_kernel,@function")
        a.label("painn_red_kernel")
        a("s_cmp_ge_u32 s2, 1"); a("s_cbranch_scc1 L_red_exit")
        a("s_load_dwordx4 s[4:7], s[0:1], 72")
        a("s_waitcnt lgkmcnt(0)")
        a(f"s_add_u32 s8, s6, {k1.STAMP_OFF}"); a("s_addc_u32 s9, s7, 0")
        a("v_lshlrev_b32 v1, 9, v0")
        a("global_load_dwordx4 v[4:7], v1, s[8:9]"); a("global_load_dwordx4 v[8:11], v1, s[8:9] offset:16")
        a(f"v_add_u32 v2, {256*16*32}, v1")
        a("global_load_dwordx4 v[12:15], v2, s[8:9]"); a("global_load_dwordx4 v[16:19], v2, s[8:9] offset:16")
        a("s_waitcnt vmcnt(0)")
        def amax(dw, reg, neg=False):
            if neg: a(f"v_not_b32 v20, v{reg}")
            else: a(f"v_mov_b32 v20, v{reg}")
            a(f"v_mov_b32 v21, {4*dw}")
            a("global_atomic_umax v21, v20, s[4:5]")
        a("v_cmp_gt_u32 vcc, 250, v0"); a("s_and_saveexec_b64 s[10:11], vcc")
        amax(0, 4, True); amax(1, 4)
        a("s_mov_b64 exec, s[10:11]")
        a("v_cmp_gt_u32 vcc, 250, v0"); a("v_cmp_le_u32 s[12:13], 40, v0"); a("s_and_b64 vcc, vcc, s[12:13]"); a("s_and_saveexec_b64 s[10:11], vcc")
        for c in range(6): amax(2 + c, 5 + c)
        amax(8, 11)
        a("s_mov_b64 exec, s[10:11]")
        a("v_cmp_gt_u32 vcc, 40, v0"); a("s_and_saveexec_b64 s[10:11], vcc")
        amax(9, 11)
        a("s_mov_b64 exec, s[10:11]")
        amax(10, 12, True); amax(11, 15); amax(12, 19); amax(13, 19, True); amax(14, 13)
        a.label("L_red_exit")
        a("s_endpgm")
    if nempty:
        a.raw(".globl painn_nop_kernel\n.p2align 8\n.type painn_nop_kernel,@function")
        a.label("painn_nop_kernel")
        a("s_endpgm")
    a.raw('.section .rodata,"a"')
    a.raw(".p2align 6")
    a.raw(kernel_desc("painn_k1_kernel", 168 if v2 else 256, 102))
    a.raw(".p2align 6")
    a.raw(kernel_desc("painn_k2_kernel", 128, 102))
    if opt.get('red') or opt.get('amp'):
        a.raw(".p2align 6")
        a.raw(kernel_desc("painn_red_kernel", 32, 32))
    if nempty:
        a.raw(".p2align 6")
        a.raw(kernel_desc("painn_nop_kernel", 8, 16))
    return a.text()

if __name__ == "__main__":
    out = sys.argv[1] if len(sys.argv) > 1 else "standalone__molecular_angular_painn__graph.s"
    opt = {}
    for kv in sys.argv[2:]:
        k, val = kv.split("=", 1); opt[k] = val
    open(out, "w").write(gen(opt))
    print("wrote", out)
```

```python
from asmlib import *
import k1
from k1 import load_kernargs, stamp_begin, st, stamp_end, P_SV, P_POS, P_SRC, P_DST, P_FRQ, P_W1, P_W2, P_WR, P_OUT, P_DBG, P_WS, N, E
from k1w import NCH, NTILE, NGEMM, ROWB, NROWS, SLICEB, TAB_OFF, TAB_SIZE, SH_LDS, RING_LDS, NS, SLOTB, VX_LDS, K1_LDS

EDG_DBG = 128
TBL_DBG = 192
KSA = [0, 2, 4, 6, 1, 3, 5, 7]
NST = 24
XLDS = VX_LDS
SYNC_LDS = XLDS + 2 * SLOTB
K1_LDS3 = SYNC_LDS + 64
def slot_addr(n):
    if n < 4: return RING_LDS + n * SLOTB
    if n < 6: return XLDS + (n - 4) * SLOTB
    if n < 8: return RING_LDS + (n - 6) * SLOTB
    if n < 16: return RING_LDS + ((n - 8) >> 1) * SLOTB + ((n - 8) & 1) * 8192
    return RING_LDS + ((n - 16) % 4) * SLOTB

def lsignal(a, idx, vt, v1_):
    a("s_mov_b64 exec, 1")
    a(f"v_mov_b32 {v(vt)}, {SYNC_LDS + 4*idx}")
    a(f"v_mov_b32 {v(v1_)}, 1")
    a(f"ds_add_u32 {v(vt)}, {v(v1_)}")
    a("s_mov_b64 exec, -1")
def lspin(a, idx, target, lbl, vt, v1_):
    a(f"v_mov_b32 {v(vt)}, {SYNC_LDS + 4*idx}")
    a.label(lbl)
    a(f"ds_read_b32 {v(v1_)}, {v(vt)}")
    a("s_waitcnt lgkmcnt(0)")
    a(f"v_readfirstlane_b32 s74, {v(v1_)}")
    a(f"s_cmp_ge_u32 s74, {target}")
    a(f"s_cbranch_scc0 {lbl}")

def gemm_role(a, opt):
    SV, W1, W2, TAB = 40, 44, 48, 52
    tf = opt.get('tab_store_flags', '')
    l2f = opt.get('l2_store_flags', '')
    vf = opt.get('v_flags', 'nt')
    a.c("===== GEMM role (W v2) =====")
    a(f"s_sub_u32 s60, s2, {NCH}")
    if opt.get('xmap', '1') == '1':
        a("s_lshr_b32 s61, s60, 3")
        a("s_lshl_b32 s61, s61, 2")
        a("s_and_b32 s62, s60, 3")
        a("s_add_u32 s61, s61, s62")
        a("s_lshr_b32 s62, s60, 2")
        a("s_and_b32 s62, s62, 1")
        a("s_cmp_ge_u32 s60, 208")
        a("s_cselect_b32 s61, 104, s61")
        a("s_and_b32 s60, s60, 1")
        a("s_cselect_b32 s60, s60, s62") if False else None
        a(f"s_sub_u32 s63, s2, {NCH}")
        a("s_cmp_ge_u32 s63, 208")
        a("s_cselect_b32 s60, s60, s62")
    else:
        a("s_lshr_b32 s61, s60, 1")
        a("s_and_b32 s60, s60, 1")
    a("s_mul_i32 s57, s61, 96")
    a("v_lshrrev_b32 v1, 6, v0")
    a("v_and_b32 v2, 63, v0")
    a("s_lshl_b32 s63, s60, 8")
    a("s_waitcnt lgkmcnt(0)")
    a("v_readfirstlane_b32 s56, v1")
    srd(a, SV, P_SV, N * 2048)
    srd(a, TAB, P_WS, TAB_SIZE, TAB_OFF)
    a("v_mov_b32 v3, 0")
    a(f"v_mov_b32 v4, {SYNC_LDS}")
    a("v_mov_b32 v5, 0")
    a("ds_write_b64 v4, v[2:3]") if False else None
    a("v_mov_b32 v6, 0"); a("v_mov_b32 v7, 0"); a("v_mov_b32 v8, 0"); a("v_mov_b32 v9, 0")
    a("ds_write_b128 v4, v[6:9]")
    a("ds_write_b128 v4, v[6:9] offset:16")
    a("s_cmp_ge_u32 s56, 8")
    a("s_cbranch_scc1 L_copy_role")
    delay(a, opt.get('d_gemm'), "L_d_gemm")
    srd(a, W1, P_W1, 256 * 512)
    srd(a, W2, P_W2, 256 * 1536)
    a("s_and_b32 s58, s56, 3")
    a("s_lshr_b32 s59, s56, 2")
    R = Regs(3, 168)
    vW1 = R.alloc(2); vWA = R.alloc(2); vT1 = R.alloc(4); vTA = R.alloc(2)
    vB = R.alloc(4); vHW = R.alloc(1); vVX = R.alloc(1); vST = R.alloc(1)
    vT = R.alloc(4, 4)
    vX = R.alloc(12, 4)
    vA = [R.alloc(16, 4), R.alloc(16, 4)]
    vBf = [R.alloc(12, 4), R.alloc(12, 4)]
    vAcc = R.alloc(48, 4)
    vAcB = R.alloc(24, 4)
    vWB = vW1; vTB = vT1
    def acc1(rt, t): return vAcc + (rt * 3 + t) * 4
    def accA(rt, t): return vAcc + (rt * 3 + t) * 4
    def accB(u, t): return vAcB + (u * 3 + t) * 4
    vm = []
    def vm_after(tag):
        if tag not in vm: return 63
        idx = max(i for i, x in enumerate(vm) if x == tag)
        return len(vm) - 1 - idx
    T0, T1, T2, T3, T4, T5 = [vAcc + i for i in range(6)]

    a(f"v_lshrrev_b32 {v(T0)}, 5, v2")
    a(f"v_and_b32 {v(T1)}, 31, v2")
    a("s_mul_i32 s62, s56, 6")
    for i in range(6):
        a(f"s_add_u32 s64, s62, {i}")
        a("s_lshl_b32 s65, s64, 1")
        a(f"v_add_u32 {v(T2)}, s65, {v(T0)}")
        a(f"v_and_b32 {v(T3)}, 15, {v(T2)}")
        a(f"v_xor_b32 {v(T3)}, {v(T3)}, {v(T1)}")
        a(f"v_add_u32 {v(T2)}, s57, {v(T2)}")
        a(f"v_lshlrev_b32 {v(T2)}, 11, {v(T2)}")
        a(f"v_lshl_add_u32 {v(T2)}, {v(T3)}, 4, {v(T2)}")
        a("s_lshl_b32 s65, s64, 10")
        a("s_mov_b32 m0, s65")
        a("s_nop 0")
        a(f"buffer_load_dwordx4 {v(T2)}, {s(SV,4)}, 0 offen {opt.get('s_flags','')} lds")
        vm.append(('S', i))
    def fbits(dst, row, tmp):
        a(f"v_and_b32 {v(dst)}, 3, {v(row)}")
        a(f"v_bfe_u32 {v(tmp)}, {v(row)}, 3, 1")
        a(f"v_lshl_or_b32 {v(dst)}, {v(tmp)}, 2, {v(dst)}")
    a("s_lshl_b32 s62, s56, 2")
    for i in range(2):
        a(f"v_add_u32 {v(T2)}, s62, {v(T0)}")
        if i: a(f"v_add_u32 {v(T2)}, 2, {v(T2)}")
        fbits(T3, T2, T5)
        a(f"v_lshlrev_b32 {v(T3)}, 1, {v(T3)}")
        a(f"v_xor_b32 {v(T3)}, {v(T3)}, {v(T1)}")
        a(f"v_lshlrev_b32 {v(T4)}, 4, {v(T3)}")
        a(f"v_lshl_add_u32 {v(vW1+i)}, {v(T2)}, 9, {v(T4)}")
        if i: a(f"v_subrev_u32 {v(vW1+i)}, 1024, {v(vW1+i)}")
        a(f"v_mul_u32_u24 {v(vWA+i)}, 1536, {v(T2)}")
        a(f"v_lshrrev_b32 {v(T4)}, 4, {v(T3)}")
        a(f"v_lshl_add_u32 {v(vWA+i)}, {v(T4)}, 9, {v(vWA+i)}")
        a(f"v_and_b32 {v(T4)}, 15, {v(T3)}")
        a(f"v_lshl_add_u32 {v(vWA+i)}, {v(T4)}, 4, {v(vWA+i)}")
        a(f"v_add_u32 {v(vWA+i)}, s63, {v(vWA+i)}")
        if i: a(f"v_subrev_u32 {v(vWA+i)}, 1024, {v(vWA+i)}")
    a("s_lshl_b32 s65, s56, 11")
    a("s_lshl_b32 s66, s56, 10")
    def kind(n): return (0, 2, 1)[n // 8]
    def ks_of(n): return n & 7
    def issue_chunk(n):
        k = kind(n); ks = ks_of(n)
        slot = slot_addr(n)
        out = []
        if k < 2:
            out.append(f"s_add_u32 s67, s65, {slot}")
            out.append("s_mov_b32 m0, s67")
            out.append(f"s_mov_b32 s68, {ks * 16384 if k == 0 else ks * 49152}")
            for i in range(2):
                if k == 0:
                    out.append((f"buffer_load_dwordx4 {v(vW1+i)}, {s(W1,4)}, s68 offen offset:{i*1024} {opt.get('w_flags','')} lds", ('C', n)))
                else:
                    out.append((f"buffer_load_dwordx4 {v(vWA+i)}, {s(W2,4)}, s68 offen offset:{i*1024} {opt.get('w_flags','')} lds", ('C', n)))
        else:
            out.append(f"s_add_u32 s67, s66, {slot}")
            out.append("s_mov_b32 m0, s67")
            out.append(f"s_mov_b32 s68, {ks * 49152}")
            out.append((f"buffer_load_dwordx4 {v(vWB)}, {s(W2,4)}, s68 offen {opt.get('w_flags','')} lds", ('C', n)))
        return out
    def emit(x):
        if isinstance(x, tuple):
            a(x[0]); vm.append(x[1])
        elif callable(x):
            x()
        else:
            a(x)
    for n in range(6):
        for x in issue_chunk(n): emit(x)
    a("s_waitcnt lgkmcnt(0)")
    a("s_barrier")
    a(f"v_lshrrev_b32 {v(T0)}, 4, v2")
    a(f"v_bfe_u32 {v(T1)}, v2, 2, 2")
    a(f"v_and_b32 {v(T2)}, 3, v2")
    a(f"v_lshl_add_u32 {v(T3)}, {v(T0)}, 3, {v(T1)}")
    a(f"v_and_b32 {v(T4)}, 1, {v(T0)}")
    a(f"v_lshl_or_b32 {v(T4)}, {v(T4)}, 2, {v(T1)}")
    a("s_and_b32 s72, s58, 1")
    a("s_lshl_b32 s72, s72, 2")
    a(f"v_xor_b32 {v(T5)}, s72, {v(T4)}")
    a(f"v_lshlrev_b32 {v(T5)}, 5, {v(T5)}")
    a(f"v_lshl_add_u32 {v(T5)}, {v(T3)}, 9, {v(T5)}")
    a(f"v_lshl_add_u32 {v(T5)}, {v(T2)}, 3, {v(T5)}")
    a("s_lshr_b32 s72, s58, 1")
    a("s_lshl_b32 s72, s72, 8")
    a(f"s_add_u32 s72, s72, {RING_LDS}")
    a(f"v_add_u32 {v(T5)}, s72, {v(T5)}")
    for rt in range(4):
        a(f"v_xor_b32 {v(vT1+rt)}, {rt<<5}, {v(T5)}")
    a("s_lshl_b32 s72, s58, 1")
    a(f"v_xor_b32 {v(T5)}, s72, {v(T4)}")
    a(f"v_lshlrev_b32 {v(T5)}, 5, {v(T5)}")
    a(f"v_lshl_add_u32 {v(T5)}, {v(T2)}, 3, {v(T5)}")
    a(f"v_add_u32 {v(T5)}, {RING_LDS}, {v(T5)}")
    a(f"v_lshl_add_u32 {v(vTA)}, {v(T3)}, 9, {v(T5)}")
    a(f"v_xor_b32 {v(vTA+1)}, 32, {v(vTA)}")
    a(f"v_and_b32 {v(T1)}, 15, v2")
    a(f"v_and_b32 {v(T2)}, 3, v2")
    a(f"v_xor_b32 {v(T2)}, {v(T2)}, {v(T0)}")
    a(f"v_lshlrev_b32 {v(T2)}, 4, {v(T2)}")
    a(f"v_lshl_add_u32 {v(T2)}, {v(T1)}, 9, {v(T2)}")
    a(f"v_bfe_u32 {v(T3)}, v2, 2, 2")
    a(f"v_lshl_add_u32 {v(T2)}, {v(T3)}, 6, {v(T2)}")
    a(f"s_mul_i32 s72, s59, {48*512}")
    a(f"v_add_u32 {v(T2)}, s72, {v(T2)}")
    for j in range(4):
        a(f"v_xor_b32 {v(vB+j)}, {j<<6}, {v(T2)}")
    a(f"v_lshrrev_b32 {v(T3)}, 1, {v(T0)}")
    a("s_lshl_b32 s73, s58, 3")
    a(f"v_add_u32 {v(T3)}, s73, {v(T3)}")
    a(f"v_xor_b32 {v(T3)}, {v(T3)}, {v(T1)}")
    a(f"v_lshlrev_b32 {v(T3)}, 4, {v(T3)}")
    a(f"v_lshl_add_u32 {v(T3)}, {v(T1)}, 9, {v(T3)}")
    a(f"v_and_b32 {v(T4)}, 1, {v(T0)}")
    a(f"v_lshl_add_u32 {v(vHW)}, {v(T4)}, 3, {v(T3)}")
    a(f"v_add_u32 {v(vHW)}, s72, {v(vHW)}")
    a(f"v_lshrrev_b32 {v(T3)}, 1, {v(T0)}")
    a("s_lshl_b32 s73, s58, 2")
    a(f"v_add_u32 {v(T3)}, s73, {v(T3)}")
    a(f"v_xor_b32 {v(T3)}, {v(T3)}, {v(T1)}")
    a(f"v_lshlrev_b32 {v(T3)}, 4, {v(T3)}")
    a(f"v_lshl_add_u32 {v(T3)}, {v(T1)}, 8, {v(T3)}")
    a(f"v_lshl_add_u32 {v(vVX)}, {v(T4)}, 3, {v(T3)}")
    a(f"s_mul_i32 s73, s59, {48*256}")
    a(f"s_add_u32 s73, s73, {VX_LDS}")
    a(f"v_add_u32 {v(vVX)}, s73, {v(vVX)}")
    a("s_mul_i32 s69, s59, 48")
    a("s_add_u32 s69, s69, s57")
    a("s_lshl_b32 s71, s60, 2")
    a("s_add_u32 s71, s71, s58")
    a(f"s_mul_i32 s71, s71, {SLICEB}")
    a(f"v_and_b32 {v(T3)}, 7, v2")
    a(f"v_add_u32 {v(T3)}, s69, {v(T3)}")
    a(f"v_mul_u32_u24 {v(vST)}, {ROWB}, {v(T3)}")
    a(f"v_bfe_u32 {v(T3)}, v2, 3, 1")
    a(f"v_lshl_add_u32 {v(T3)}, {v(T3)}, 2, {v(T0)}")
    a(f"v_lshl_add_u32 {v(vST)}, {v(T3)}, 4, {v(vST)}")
    a(f"v_add_u32 {v(vST)}, s71, {v(vST)}")

    def passB_addr_dma():
        t0, t1, t2 = vT, vT+1, vT+2
        return [f"v_lshrrev_b32 {v(t0)}, 4, v2", f"v_add_u32 {v(t0)}, s62, {v(t0)}",
                f"v_and_b32 {v(t1)}, 3, {v(t0)}", f"v_bfe_u32 {v(t2)}, {v(t0)}, 3, 1", f"v_lshl_or_b32 {v(t1)}, {v(t2)}, 2, {v(t1)}",
                f"v_lshlrev_b32 {v(t1)}, 1, {v(t1)}", f"v_and_b32 {v(t2)}, 15, v2", f"v_xor_b32 {v(t1)}, {v(t1)}, {v(t2)}",
                f"v_mul_u32_u24 {v(vWB)}, 1536, {v(t0)}", f"v_lshl_add_u32 {v(vWB)}, {v(t1)}, 4, {v(vWB)}",
                f"v_add_u32 {v(vWB)}, s63, {v(vWB)}", f"v_add_u32 {v(vWB)}, 1024, {v(vWB)}"]
    def passB_addr_tr():
        t0, t1 = vT, vT+1
        return [f"v_lshrrev_b32 {v(t0)}, 4, v2", f"v_bfe_u32 {v(t1)}, v2, 2, 2", f"v_lshl_add_u32 {v(t0)}, {v(t0)}, 3, {v(t1)}",
                f"v_lshlrev_b32 {v(t0)}, 8, {v(t0)}", f"v_sub_u32 {v(vTB)}, {v(vTA)}, {v(t0)}", f"v_xor_b32 {v(vTB+1)}, 32, {v(vTB)}"]

    def tr_reads(n):
        k = kind(n); slot = slot_addr(n) - RING_LDS; buf = vA[n & 1]
        out = []
        if 4 <= n < 6:
            slot -= 65536
            if n == 4:
                for rt in range(4): out.append(f"v_add_u32 {v(vT1+rt)}, 0x10000, {v(vT1+rt)}")
        if n == 6:
            for rt in range(4): out.append(f"v_subrev_u32 {v(vT1+rt)}, 0x10000, {v(vT1+rt)}")
        if k == 0:
            for rt in range(4):
                out.append(f"ds_read_b64_tr_b16 {v(buf+rt*4,2)}, {v(vT1+rt)} offset:{slot}")
                out.append(f"ds_read_b64_tr_b16 {v(buf+rt*4+2,2)}, {v(vT1+rt)} offset:{slot+4*512}")
        elif k == 1:
            for p in range(2):
                for u in range(2):
                    rt = p*2+u
                    out.append(f"ds_read_b64_tr_b16 {v(buf+rt*4,2)}, {v(vTA+u)} offset:{slot+p*256}")
                    out.append(f"ds_read_b64_tr_b16 {v(buf+rt*4+2,2)}, {v(vTA+u)} offset:{slot+p*256+4*512}")
        else:
            for u in range(2):
                out.append(f"ds_read_b64_tr_b16 {v(buf+u*4,2)}, {v(vTB+u)} offset:{slot}")
                out.append(f"ds_read_b64_tr_b16 {v(buf+u*4+2,2)}, {v(vTB+u)} offset:{slot+4*256}")
        return out
    def bf_reads(n):
        ks = ks_of(n); buf = vBf[n & 1]
        return [f"ds_read_b128 {v(buf+4*t,4)}, {v(vB+(ks&3))} offset:{t*8192 + (ks>>2)*256}" for t in range(3)]

    def silu_pair(tiles):
        out = []
        TX = [vX, vX + 4]
        A = [acc1(rt, t) for rt, t in tiles]
        for i in range(2):
            for r in range(4): out.append(f"v_mul_f32 {v(TX[i]+r)}, 0xbfb8aa3b, {v(A[i]+r)}")
        for i in range(2):
            for r in range(4): out.append(f"v_exp_f32 {v(TX[i]+r)}, {v(TX[i]+r)}")
        for i in range(2):
            for r in range(4): out.append(f"v_add_f32 {v(TX[i]+r)}, 1.0, {v(TX[i]+r)}")
        for i in range(2):
            for r in range(4): out.append(f"v_rcp_f32 {v(TX[i]+r)}, {v(TX[i]+r)}")
        for i in range(2):
            for r in range(4): out.append(f"v_mul_f32 {v(TX[i]+r)}, {v(TX[i]+r)}, {v(A[i]+r)}")
        for i, (rt, t) in enumerate(tiles):
            P = vX + 8 + 2*i
            out.append(f"v_cvt_pk_bf16_f32 {v(P)}, {v(TX[i])}, {v(TX[i]+1)}")
            out.append(f"v_cvt_pk_bf16_f32 {v(P+1)}, {v(TX[i]+2)}, {v(TX[i]+3)}")
            out.append(f"v_xor_b32 {v(vT+i)}, {rt<<5}, {v(vHW)}")
            out.append(f"ds_write_b64 {v(vT+i)}, {v(P,2)} offset:{t*8192}")
        return out
    def silu_half(rts):
        tl = [(rt, t) for rt in rts for t in range(3)]
        out = []
        for i in range(0, 6, 2): out.append(silu_pair(tl[i:i+2]))
        return out

    def dpp_swap_store(X0, X1, TM, line, t):
        out = []
        for r in range(4):
            out.append(f"v_mov_b32_dpp {v(TM+r)}, {v(X0+r)} row_ror:8 row_mask:0xf bank_mask:0xf")
        for r in range(4):
            out.append(f"v_mov_b32_dpp {v(X0+r)}, {v(X1+r)} row_ror:8 row_mask:0xf bank_mask:0xc")
        for r in range(4):
            out.append(f"v_mov_b32_dpp {v(X1+r)}, {v(TM+r)} quad_perm:[0,1,2,3] row_mask:0xf bank_mask:0x3")
        out.append(f"s_mov_b32 s72, {t*16*ROWB}")
        if not opt.get('exp_nostore'):
            out.append((f"buffer_store_dwordx4 {v(X0,4)}, {v(vST)}, {s(TAB,4)}, s72 offen offset:{line*128} {tf}", ('ST', line, t, 0)))
            out.append((f"buffer_store_dwordx4 {v(X1,4)}, {v(vST)}, {s(TAB,4)}, s72 offen offset:{line*128 + 8*ROWB} {tf}", ('ST', line, t, 1)))
        return out
    X0, X1, TM = vX, vX + 4, vX + 8
    def line0_epi(t):
        out = []
        for u, X in ((0, X0), (1, X1)):
            S_ = accA(0*2+u, t); V_ = accA(1*2+u, t)
            out.append(f"v_cvt_pk_bf16_f32 {v(X)}, {v(S_)}, {v(S_+1)}")
            out.append(f"v_cvt_pk_bf16_f32 {v(X+1)}, {v(S_+2)}, {v(S_+3)}")
            out.append(f"v_cvt_pk_bf16_f32 {v(X+2)}, {v(V_)}, {v(V_+1)}")
            out.append(f"v_cvt_pk_bf16_f32 {v(X+3)}, {v(V_+2)}, {v(V_+3)}")
        out.append("s_nop 1")
        out += dpp_swap_store(X0, X1, TM, 0, t)
        out.append("s_nop 1")
        return out
    def line1_epi(t):
        out = []
        out.append(f"ds_read_b64 {v(X0+2,2)}, {v(vVX)} offset:{t*16*256}")
        out.append(f"v_xor_b32 {v(vT)}, 32, {v(vVX)}")
        out.append(f"ds_read_b64 {v(X1+2,2)}, {v(vT)} offset:{t*16*256}")
        for u, X in ((0, X0), (1, X1)):
            Rr = accB(u, t)
            out.append(f"v_cvt_pk_bf16_f32 {v(X)}, {v(Rr)}, {v(Rr+1)}")
            out.append(f"v_cvt_pk_bf16_f32 {v(X+1)}, {v(Rr+2)}, {v(Rr+3)}")
        out.append("s_waitcnt lgkmcnt(0)")
        out.append("s_nop 0")
        out += dpp_swap_store(X0, X1, TM, 1, t)
        out.append("s_nop 1")
        return out

    a(f"s_waitcnt vmcnt({vm_after(('C',5))})")
    st(a, opt, 0)
    lsignal(a, 0, vT, vT+1)
    lspin(a, 0, 8, "L_g_sp1", vT, vT+1)
    for x in tr_reads(0): a(x)
    for x in bf_reads(0): a(x)

    extra = {n: [] for n in range(NST)}
    def g_vx(i):
        def f():
            t0, t1, t2 = vT, vT+1, vT+2
            a("s_mul_i32 s72, s56, 12")
            a(f"s_add_u32 s72, s72, {4*i}")
            a(f"v_lshrrev_b32 {v(t0)}, 4, v2")
            a(f"v_add_u32 {v(t0)}, s72, {v(t0)}")
            a(f"v_and_b32 {v(t1)}, 15, {v(t0)}")
            a(f"v_and_b32 {v(t2)}, 15, v2")
            a(f"v_xor_b32 {v(t1)}, {v(t1)}, {v(t2)}")
            a(f"v_add_u32 {v(t0)}, s57, {v(t0)}")
            a(f"v_lshlrev_b32 {v(t0)}, 11, {v(t0)}")
            a(f"v_lshl_add_u32 {v(t0)}, {v(t1)}, 4, {v(t0)}")
            a(f"v_add_u32 {v(t0)}, s63, {v(t0)}")
            a(f"v_add_u32 {v(t0)}, 512, {v(t0)}")
            a("s_lshl_b32 s72, s72, 8")
            a(f"s_add_u32 s72, s72, {VX_LDS}")
            a("s_mov_b32 m0, s72")
            a("s_nop 0")
            a(f"buffer_load_dwordx4 {v(t0)}, {s(SV,4)}, 0 offen lds"); vm.append(('VX', i))
        return f
    l1 = line1_epi(0) + line1_epi(1) + line1_epi(2)
    per = (len(l1) + 6) // 7
    for k in range(7): extra[17 + k] += l1[k*per:(k+1)*per]
    BARS = []

    for n in range(NST):
        k = kind(n); buf = vA[n & 1]; bb = vBf[n & 1]
        first = (n & 7) == 0
        a.c(f"--- step {n} (ks {ks_of(n)})")
        a("s_waitcnt lgkmcnt(0)")
        if n == 0: st(a, opt, 1)
        if n == 8: st(a, opt, 3)
        if n == 16: st(a, opt, 4)
        mf = []
        nrt = 4 if k < 2 else 2
        for rt in range(nrt):
            for t in range(3):
                A = acc1(rt, t) if k == 0 else (accA(rt, t) if k == 1 else accB(rt, t))
                cc = "0" if first else v(A, 4)
                mf.append(f"v_mfma_f32_16x16x32_bf16 {v(A,4)}, {v(buf+rt*4,4)}, {v(bb+4*t,4)}, {cc}")
        npre = 2 if k < 2 else 1
        for m in mf[:npre]: a(m)
        side = []
        if n < 7:
            if n == 1: lsignal(a, 1, vT, vT+1)
            if n == 2:
                lspin(a, 1, 8, "L_g_sp2", vT, vT+1)
                for x in issue_chunk(6) + issue_chunk(7): emit(x)
                lsignal(a, 4, vT, vT+1)
            if n == 4:
                a(f"s_waitcnt vmcnt({vm_after(('C', 7))})")
                lsignal(a, 2, vT, vT+1)
            if n == 5: lspin(a, 2, 8, "L_g_sp3", vT, vT+1)
            side = tr_reads(n + 1) + bf_reads(n + 1) + side
        elif n == 7:
            lsignal(a, 3, vT, vT+1)
        elif n < 15:
            if n in (9, 11, 13):
                a("s_barrier"); BARS.append(n)
            side = tr_reads(n + 1) + bf_reads(n + 1) + side
        elif n + 1 < NST:
            a("s_barrier"); BARS.append(n)
            side += tr_reads(n + 1)
            side += bf_reads(n + 1)
        side += extra[n]
        rest = mf[npre:]
        kk = 0
        nper = (len(side) + len(rest) - 1) // len(rest)
        for m in rest:
            a(m)
            for x in side[kk:kk+nper]: emit(x)
            kk += nper
        for x in side[kk:]: emit(x)
        if n == 7:
            lspin(a, 3, 8, "L_g_sp4", vT, vT+1)
            for x in passB_addr_tr(): a(x)
            st(a, opt, 2)
            for grp in silu_half((0, 1)) + silu_half((2, 3)):
                for x in grp: a(x)
            a("s_waitcnt lgkmcnt(0)")
            a("s_barrier")
            for x in tr_reads(8): a(x)
            for x in bf_reads(8): a(x)
    a("s_nop 7"); a("s_nop 1")
    st(a, opt, 5)
    for t in range(3):
        for x in line0_epi(t): emit(x)
    if opt.get('fused'):
        a("s_waitcnt vmcnt(0)")
        if opt.get('stamps'): a("s_memrealtime s[14:15]")
        a("s_barrier")
        a("s_cmp_eq_u32 s56, 0")
        a("s_cbranch_scc0 L_phaseB")
        if opt.get('wbl2'):
            a("buffer_wbl2 sc1")
            a("s_waitcnt vmcnt(0)")
            if opt.get('stamps'): a("s_memrealtime s[12:13]")
        a("s_mov_b64 exec, 1")
        a("v_mov_b32 v3, 1")
        a(f"v_mov_b32 v4, {TBL_DBG}")
        a(f"global_atomic_add v4, v3, s[{P_DBG}:{P_DBG+1}]")
        a("s_mov_b64 exec, -1")
        a("s_branch L_phaseB")
    else:
        stamp_end(a, opt, 0, 'g')
        a("s_endpgm")

    a.label("L_copy_role")
    srd(a, W2, P_W2, 256 * 1536)
    a("s_cmp_ge_u32 s56, 10")
    a("s_cbranch_scc1 L_copier")
    a("s_sub_u32 s58, s56, 8")
    vLB, vLA, vLX = 8, 12, 20
    t0, t1, t2, t3 = 3, 4, 5, 6
    def fb(dst, row, tmp):
        a(f"v_and_b32 {v(dst)}, 3, {v(row)}")
        a(f"v_bfe_u32 {v(tmp)}, {v(row)}, 3, 1")
        a(f"v_lshl_or_b32 {v(dst)}, {v(tmp)}, 2, {v(dst)}")
    for i in range(4):
        a("s_lshl_b32 s72, s58, 4")
        a(f"s_add_u32 s72, s72, {4*i}")
        a(f"v_lshrrev_b32 {v(t0)}, 4, v2")
        a(f"v_add_u32 {v(t0)}, s72, {v(t0)}")
        fb(t1, t0, t2)
        a(f"v_lshlrev_b32 {v(t1)}, 1, {v(t1)}")
        a(f"v_and_b32 {v(t2)}, 15, v2")
        a(f"v_xor_b32 {v(t1)}, {v(t1)}, {v(t2)}")
        a(f"v_mul_u32_u24 {v(vLB+i)}, 1536, {v(t0)}")
        a(f"v_lshl_add_u32 {v(vLB+i)}, {v(t1)}, 4, {v(vLB+i)}")
        a(f"v_add_u32 {v(vLB+i)}, s63, {v(vLB+i)}")
        a(f"v_add_u32 {v(vLB+i)}, 1024, {v(vLB+i)}")
    for i in range(8):
        a("s_lshl_b32 s72, s58, 4")
        a(f"s_add_u32 s72, s72, {2*i}")
        a(f"v_lshrrev_b32 {v(t0)}, 5, v2")
        a(f"v_add_u32 {v(t0)}, s72, {v(t0)}")
        fb(t1, t0, t2)
        a(f"v_lshlrev_b32 {v(t1)}, 1, {v(t1)}")
        a(f"v_and_b32 {v(t2)}, 31, v2")
        a(f"v_xor_b32 {v(t1)}, {v(t1)}, {v(t2)}")
        a(f"v_mul_u32_u24 {v(vLA+i)}, 1536, {v(t0)}")
        a(f"v_lshrrev_b32 {v(t2)}, 4, {v(t1)}")
        a(f"v_lshl_add_u32 {v(vLA+i)}, {v(t2)}, 9, {v(vLA+i)}")
        a(f"v_and_b32 {v(t2)}, 15, {v(t1)}")
        a(f"v_lshl_add_u32 {v(vLA+i)}, {v(t2)}, 4, {v(vLA+i)}")
        a(f"v_add_u32 {v(vLA+i)}, s63, {v(vLA+i)}")
    for i in range(12):
        a("s_mul_i32 s72, s58, 48")
        a(f"s_add_u32 s72, s72, {4*i}")
        a(f"v_lshrrev_b32 {v(t0)}, 4, v2")
        a(f"v_add_u32 {v(t0)}, s72, {v(t0)}")
        a(f"v_and_b32 {v(t1)}, 15, {v(t0)}")
        a(f"v_and_b32 {v(t2)}, 15, v2")
        a(f"v_xor_b32 {v(t1)}, {v(t1)}, {v(t2)}")
        a(f"v_add_u32 {v(t0)}, s57, {v(t0)}")
        a(f"v_lshlrev_b32 {v(t0)}, 11, {v(t0)}")
        a(f"v_lshl_add_u32 {v(t0)}, {v(t1)}, 4, {v(t0)}")
        a(f"v_add_u32 {v(t0)}, s63, {v(t0)}")
        a(f"v_add_u32 {v(vLX+i)}, 512, {v(t0)}")
    a("s_lshl_b32 s65, s58, 12")
    a("s_lshl_b32 s66, s58, 13")
    a("s_mul_i32 s67, s58, 12288")
    vl = []
    def vl_after(tag):
        idx = max(i for i, x in enumerate(vl) if x == tag)
        return len(vl) - 1 - idx
    def l_chunk(n):
        ks = n & 7
        a(f"s_mov_b32 s68, {ks * 49152}")
        if n < 16:
            for i in range(4):
                a(f"s_add_u32 s72, s65, {slot_addr(n) + i*1024}")
                a("s_mov_b32 m0, s72")
                a("s_nop 0")
                a(f"buffer_load_dwordx4 {v(vLB+i)}, {s(W2,4)}, s68 offen lds"); vl.append(('C', n))
        else:
            for i in range(8):
                a(f"s_add_u32 s72, s66, {slot_addr(n) + i*1024}")
                a("s_mov_b32 m0, s72")
                a("s_nop 0")
                a(f"buffer_load_dwordx4 {v(vLA+i)}, {s(W2,4)}, s68 offen lds"); vl.append(('C', n))
    a("s_waitcnt lgkmcnt(0)")
    a("s_barrier")
    lspin(a, 3, 8, "L_l_sp4", t0, t1)
    for n in range(8, 16): l_chunk(n)
    for i in range(12):
        a(f"s_add_u32 s72, s67, {VX_LDS + i*1024}")
        a("s_mov_b32 m0, s72")
        a("s_nop 0")
        a(f"buffer_load_dwordx4 {v(vLX+i)}, {s(SV,4)}, 0 offen lds"); vl.append(('VX', i))
    a("s_waitcnt vmcnt(0)")
    a("s_barrier")
    for n in BARS:
        if n >= 15:
            a(f"s_waitcnt vmcnt({vl_after(('C', n + 1))})")
        a("s_barrier")
        if n in (9, 11, 13): l_chunk(16 + (n - 9) // 2)
        elif n == 15: l_chunk(19)
        elif n + 4 < NST: l_chunk(n + 4)
    stamp_end(a, opt, 0, 'l')
    a("s_endpgm")
    a.label("L_copier")
    a("s_sub_u32 s58, s56, 10")
    vm2 = []
    def vm2_after(tag):
        idx = max(i for i, x in enumerate(vm2) if x == tag)
        return len(vm2) - 1 - idx
    vS, vD = 3, 4
    vStg = 8
    a("s_mul_i32 s73, s58, 48")
    a("s_add_u32 s73, s73, s57")
    a("v_lshrrev_b32 v6, 4, v2")
    a("v_add_u32 v6, s73, v6")
    a("v_and_b32 v7, 15, v2")
    a(f"v_lshlrev_b32 {v(vS)}, 11, v6")
    a(f"v_lshl_add_u32 {v(vS)}, v7, 3, {v(vS)}")
    a(f"v_add_u32 {v(vS)}, s63, {v(vS)}")
    a("s_lshl_b32 s71, s60, 2")
    a(f"s_mul_i32 s71, s71, {SLICEB}")
    a(f"v_mul_u32_u24 {v(vD)}, {ROWB}, v6")
    a("v_and_b32 v7, 7, v2")
    a(f"v_lshl_add_u32 {v(vD)}, v7, 4, {v(vD)}")
    a(f"v_add_u32 {v(vD)}, s71, {v(vD)}")
    a("v_bfe_u32 v7, v2, 3, 1")
    a(f"s_mov_b32 s74, {SLICEB}")
    a("v_mul_lo_u32 v7, v7, s74")
    a(f"v_add_u32 {v(vD)}, {v(vD)}, v7")
    a("v_lshlrev_b32 v5, 11, v6")
    a("v_and_b32 v7, 15, v2")
    a("v_lshl_add_u32 v5, v7, 4, v5")
    a("v_add_u32 v5, s63, v5")
    a("v_add_u32 v5, 512, v5")
    def c_load(u):
        p, i = u & 1, u >> 1
        a(f"s_mov_b32 s72, {i*4*2048 + p*128}")
        a(f"buffer_load_dwordx2 {v(vStg+4*u,2)}, {v(vS)}, {s(SV,4)}, s72 offen offset:1024 {vf}"); vm2.append(('a', u))
        a(f"buffer_load_dwordx2 {v(vStg+4*u+2,2)}, {v(vS)}, {s(SV,4)}, s72 offen offset:1536 {vf}"); vm2.append(('b', u))
    def c_store(u):
        p, i = u & 1, u >> 1
        a(f"s_waitcnt vmcnt({vm2_after(('b', u))})")
        a(f"s_mov_b32 s72, {i*4*ROWB + p*2*SLICEB}")
        a(f"buffer_store_dwordx4 {v(vStg+4*u,4)}, {v(vD)}, {s(TAB,4)}, s72 offen offset:256 {l2f}"); vm2.append(('s', u))
    a("s_waitcnt lgkmcnt(0)")
    a("s_barrier")
    if opt.get('cearly') != '1': lspin(a, 4, 8, "L_c_sp", 6, 7)
    delay(a, opt.get('d_copy'), "L_d_copy")
    for i in range(12):
        a(f"s_mov_b32 s72, {i*4*2048}")
        a(f"buffer_load_dwordx4 v[{104+4*i}:{107+4*i}], v5, {s(SV,4)}, s72 offen {vf}"); vm2.append(('P', i))
    for u in range(24): c_load(u)
    pre = int(opt.get('cpre', 0))
    done = 0
    while done < pre:
        c_store(done); done += 1
    a("s_barrier")
    nb = len(BARS)
    nfast = int(opt.get('cnb', 8))
    for b in range(nb):
        todo = pre + ((24 - pre) * (b + 1) + nfast - 1) // nfast
        while done < min(24, todo):
            c_store(done); done += 1
        a("s_barrier")
    stamp_end(a, opt, 0, 'c')
    a("s_endpgm")
```

```python
from asmlib import *
import k1
from k1 import load_kernargs, stamp_begin, st, stamp_end, P_SV, P_POS, P_SRC, P_DST, P_FRQ, P_W1, P_W2, P_WR, P_OUT, P_DBG, P_WS, N, E
from k1w import NCH, NTILE, NGEMM, ROWB, NROWS, SLICEB, TAB_OFF, SH_LDS, RING_LDS, NS, SLOTB, VX_LDS, K1_LDS
TAB_SIZE = 4 * SLICEB

EDG_DBG = 128
TBL_DBG = 192
KSA = [0, 2, 4, 6, 1, 3, 5, 7]
NST = 24
XLDS = VX_LDS
SYNC_LDS = XLDS + 2 * SLOTB
K1_LDS3 = SYNC_LDS + 64
def slot_addr(n):
    if n < 4: return RING_LDS + n * SLOTB
    if n < 6: return XLDS + (n - 4) * SLOTB
    if n < 8: return RING_LDS + (n - 6) * SLOTB
    if n < 16: return RING_LDS + ((n - 8) >> 1) * SLOTB + ((n - 8) & 1) * 8192
    return RING_LDS + ((n - 16) % 4) * SLOTB

def lsignal(a, idx, vt, v1_):
    a("s_mov_b64 exec, 1")
    a(f"v_mov_b32 {v(vt)}, {SYNC_LDS + 4*idx}")
    a(f"v_mov_b32 {v(v1_)}, 1")
    a(f"ds_add_u32 {v(vt)}, {v(v1_)}")
    a("s_mov_b64 exec, -1")
def lspin(a, idx, target, lbl, vt, v1_):
    a(f"v_mov_b32 {v(vt)}, {SYNC_LDS + 4*idx}")
    a.label(lbl)
    a(f"ds_read_b32 {v(v1_)}, {v(vt)}")
    a("s_waitcnt lgkmcnt(0)")
    a(f"v_readfirstlane_b32 s74, {v(v1_)}")
    a(f"s_cmp_ge_u32 s74, {target}")
    a(f"s_cbranch_scc0 {lbl}")

def gemm_role(a, opt):
    SV, W1, W2, TAB = 40, 44, 48, 52
    tf = opt.get('tab_store_flags', '')
    l2f = opt.get('l2_store_flags', '')
    vf = opt.get('v_flags', 'nt')
    a.c("===== GEMM role (W v2) =====")
    a(f"s_sub_u32 s60, s2, {NCH}")
    if opt.get('xmap', '1') == '1':
        a("s_lshr_b32 s61, s60, 3")
        a("s_lshl_b32 s61, s61, 2")
        a("s_and_b32 s62, s60, 3")
        a("s_add_u32 s61, s61, s62")
        a("s_lshr_b32 s62, s60, 2")
        a("s_and_b32 s62, s62, 1")
        a("s_cmp_ge_u32 s60, 208")
        a("s_cselect_b32 s61, 104, s61")
        a("s_and_b32 s60, s60, 1")
        a("s_cselect_b32 s60, s60, s62") if False else None
        a(f"s_sub_u32 s63, s2, {NCH}")
        a("s_cmp_ge_u32 s63, 208")
        a("s_cselect_b32 s60, s60, s62")
    else:
        a("s_lshr_b32 s61, s60, 1")
        a("s_and_b32 s60, s60, 1")
    a("s_mul_i32 s57, s61, 96")
    a("v_lshrrev_b32 v1, 6, v0")
    a("v_and_b32 v2, 63, v0")
    a("s_lshl_b32 s63, s60, 8")
    a("s_waitcnt lgkmcnt(0)")
    a("v_readfirstlane_b32 s56, v1")
    srd(a, SV, P_SV, N * 2048)
    srd(a, TAB, P_WS, TAB_SIZE, TAB_OFF)
    a("v_mov_b32 v3, 0")
    a(f"v_mov_b32 v4, {SYNC_LDS}")
    a("v_mov_b32 v5, 0")
    a("ds_write_b64 v4, v[2:3]") if False else None
    a("v_mov_b32 v6, 0"); a("v_mov_b32 v7, 0"); a("v_mov_b32 v8, 0"); a("v_mov_b32 v9, 0")
    a("ds_write_b128 v4, v[6:9]")
    a("ds_write_b128 v4, v[6:9] offset:16")
    a("s_cmp_ge_u32 s56, 8")
    a("s_cbranch_scc1 L_copy_role")
    delay(a, opt.get('d_gemm'), "L_d_gemm")
    srd(a, W1, P_W1, 256 * 512)
    srd(a, W2, P_W2, 256 * 1536)
    a("s_and_b32 s58, s56, 3")
    a("s_lshr_b32 s59, s56, 2")
    R = Regs(3, 168)
    vW1 = R.alloc(2); vWA = R.alloc(2); vT1 = R.alloc(4); vTA = R.alloc(2)
    vB = R.alloc(4); vHW = R.alloc(1); vVX = R.alloc(1); vST = R.alloc(1)
    vT = R.alloc(4, 4)
    vX = R.alloc(12, 4)
    vA = [R.alloc(16, 4), R.alloc(16, 4)]
    vBf = [R.alloc(12, 4), R.alloc(12, 4)]
    vAcc = R.alloc(48, 4)
    vAcB = R.alloc(24, 4)
    vWB = vW1; vTB = vT1
    def acc1(rt, t): return vAcc + (rt * 3 + t) * 4
    def accA(rt, t): return vAcc + (rt * 3 + t) * 4
    def accB(u, t): return vAcB + (u * 3 + t) * 4
    vm = []
    def vm_after(tag):
        if tag not in vm: return 63
        idx = max(i for i, x in enumerate(vm) if x == tag)
        return len(vm) - 1 - idx
    T0, T1, T2, T3, T4, T5 = [vAcc + i for i in range(6)]

    a(f"v_lshrrev_b32 {v(T0)}, 5, v2")
    a(f"v_and_b32 {v(T1)}, 31, v2")
    a("s_mul_i32 s62, s56, 6")
    for i in range(6):
        a(f"s_add_u32 s64, s62, {i}")
        a("s_lshl_b32 s65, s64, 1")
        a(f"v_add_u32 {v(T2)}, s65, {v(T0)}")
        a(f"v_and_b32 {v(T3)}, 15, {v(T2)}")
        a(f"v_xor_b32 {v(T3)}, {v(T3)}, {v(T1)}")
        a(f"v_add_u32 {v(T2)}, s57, {v(T2)}")
        a(f"v_lshlrev_b32 {v(T2)}, 11, {v(T2)}")
        a(f"v_lshl_add_u32 {v(T2)}, {v(T3)}, 4, {v(T2)}")
        a("s_lshl_b32 s65, s64, 10")
        a("s_mov_b32 m0, s65")
        a("s_nop 0")
        a(f"buffer_load_dwordx4 {v(T2)}, {s(SV,4)}, 0 offen {opt.get('s_flags','')} lds")
        vm.append(('S', i))
    def fbits(dst, row, tmp):
        a(f"v_and_b32 {v(dst)}, 3, {v(row)}")
        a(f"v_bfe_u32 {v(tmp)}, {v(row)}, 3, 1")
        a(f"v_lshl_or_b32 {v(dst)}, {v(tmp)}, 2, {v(dst)}")
    a("s_lshl_b32 s62, s56, 2")
    for i in range(2):
        a(f"v_add_u32 {v(T2)}, s62, {v(T0)}")
        if i: a(f"v_add_u32 {v(T2)}, 2, {v(T2)}")
        fbits(T3, T2, T5)
        a(f"v_lshlrev_b32 {v(T3)}, 1, {v(T3)}")
        a(f"v_xor_b32 {v(T3)}, {v(T3)}, {v(T1)}")
        a(f"v_lshlrev_b32 {v(T4)}, 4, {v(T3)}")
        a(f"v_lshl_add_u32 {v(vW1+i)}, {v(T2)}, 9, {v(T4)}")
        if i: a(f"v_subrev_u32 {v(vW1+i)}, 1024, {v(vW1+i)}")
        a(f"v_mul_u32_u24 {v(vWA+i)}, 1536, {v(T2)}")
        a(f"v_lshrrev_b32 {v(T4)}, 4, {v(T3)}")
        a(f"v_lshl_add_u32 {v(vWA+i)}, {v(T4)}, 9, {v(vWA+i)}")
        a(f"v_and_b32 {v(T4)}, 15, {v(T3)}")
        a(f"v_lshl_add_u32 {v(vWA+i)}, {v(T4)}, 4, {v(vWA+i)}")
        a(f"v_add_u32 {v(vWA+i)}, s63, {v(vWA+i)}")
        if i: a(f"v_subrev_u32 {v(vWA+i)}, 1024, {v(vWA+i)}")
    a("s_lshl_b32 s65, s56, 11")
    a("s_lshl_b32 s66, s56, 10")
    def kind(n): return (0, 2, 1)[n // 8]
    def ks_of(n): return n & 7
    def issue_chunk(n):
        k = kind(n); ks = ks_of(n)
        slot = slot_addr(n)
        out = []
        if k < 2:
            out.append(f"s_add_u32 s67, s65, {slot}")
            out.append("s_mov_b32 m0, s67")
            out.append(f"s_mov_b32 s68, {ks * 16384 if k == 0 else ks * 49152}")
            for i in range(2):
                if k == 0:
                    out.append((f"buffer_load_dwordx4 {v(vW1+i)}, {s(W1,4)}, s68 offen offset:{i*1024} {opt.get('w_flags','')} lds", ('C', n)))
                else:
                    out.append((f"buffer_load_dwordx4 {v(vWA+i)}, {s(W2,4)}, s68 offen offset:{i*1024} {opt.get('w_flags','')} lds", ('C', n)))
        else:
            out.append(f"s_add_u32 s67, s66, {slot}")
            out.append("s_mov_b32 m0, s67")
            out.append(f"s_mov_b32 s68, {ks * 49152}")
            out.append((f"buffer_load_dwordx4 {v(vWB)}, {s(W2,4)}, s68 offen {opt.get('w_flags','')} lds", ('C', n)))
        return out
    def emit(x):
        if isinstance(x, tuple):
            a(x[0]); vm.append(x[1])
        elif callable(x):
            x()
        else:
            a(x)
    for n in range(6):
        for x in issue_chunk(n): emit(x)
    a("s_waitcnt lgkmcnt(0)")
    a("s_barrier")
    a(f"v_lshrrev_b32 {v(T0)}, 4, v2")
    a(f"v_bfe_u32 {v(T1)}, v2, 2, 2")
    a(f"v_and_b32 {v(T2)}, 3, v2")
    a(f"v_lshl_add_u32 {v(T3)}, {v(T0)}, 3, {v(T1)}")
    a(f"v_and_b32 {v(T4)}, 1, {v(T0)}")
    a(f"v_lshl_or_b32 {v(T4)}, {v(T4)}, 2, {v(T1)}")
    a("s_and_b32 s72, s58, 1")
    a("s_lshl_b32 s72, s72, 2")
    a(f"v_xor_b32 {v(T5)}, s72, {v(T4)}")
    a(f"v_lshlrev_b32 {v(T5)}, 5, {v(T5)}")
    a(f"v_lshl_add_u32 {v(T5)}, {v(T3)}, 9, {v(T5)}")
    a(f"v_lshl_add_u32 {v(T5)}, {v(T2)}, 3, {v(T5)}")
    a("s_lshr_b32 s72, s58, 1")
    a("s_lshl_b32 s72, s72, 8")
    a(f"s_add_u32 s72, s72, {RING_LDS}")
    a(f"v_add_u32 {v(T5)}, s72, {v(T5)}")
    for rt in range(4):
        a(f"v_xor_b32 {v(vT1+rt)}, {rt<<5}, {v(T5)}")
    a("s_lshl_b32 s72, s58, 1")
    a(f"v_xor_b32 {v(T5)}, s72, {v(T4)}")
    a(f"v_lshlrev_b32 {v(T5)}, 5, {v(T5)}")
    a(f"v_lshl_add_u32 {v(T5)}, {v(T2)}, 3, {v(T5)}")
    a(f"v_add_u32 {v(T5)}, {RING_LDS}, {v(T5)}")
    a(f"v_lshl_add_u32 {v(vTA)}, {v(T3)}, 9, {v(T5)}")
    a(f"v_xor_b32 {v(vTA+1)}, 32, {v(vTA)}")
    a(f"v_and_b32 {v(T1)}, 15, v2")
    a(f"v_and_b32 {v(T2)}, 3, v2")
    a(f"v_xor_b32 {v(T2)}, {v(T2)}, {v(T0)}")
    a(f"v_lshlrev_b32 {v(T2)}, 4, {v(T2)}")
    a(f"v_lshl_add_u32 {v(T2)}, {v(T1)}, 9, {v(T2)}")
    a(f"v_bfe_u32 {v(T3)}, v2, 2, 2")
    a(f"v_lshl_add_u32 {v(T2)}, {v(T3)}, 6, {v(T2)}")
    a(f"s_mul_i32 s72, s59, {48*512}")
    a(f"v_add_u32 {v(T2)}, s72, {v(T2)}")
    for j in range(4):
        a(f"v_xor_b32 {v(vB+j)}, {j<<6}, {v(T2)}")
    a(f"v_lshrrev_b32 {v(T3)}, 1, {v(T0)}")
    a("s_lshl_b32 s73, s58, 3")
    a(f"v_add_u32 {v(T3)}, s73, {v(T3)}")
    a(f"v_xor_b32 {v(T3)}, {v(T3)}, {v(T1)}")
    a(f"v_lshlrev_b32 {v(T3)}, 4, {v(T3)}")
    a(f"v_lshl_add_u32 {v(T3)}, {v(T1)}, 9, {v(T3)}")
    a(f"v_and_b32 {v(T4)}, 1, {v(T0)}")
    a(f"v_lshl_add_u32 {v(vHW)}, {v(T4)}, 3, {v(T3)}")
    a(f"v_add_u32 {v(vHW)}, s72, {v(vHW)}")
    a(f"v_lshrrev_b32 {v(T3)}, 1, {v(T0)}")
    a("s_lshl_b32 s73, s58, 2")
    a(f"v_add_u32 {v(T3)}, s73, {v(T3)}")
    a(f"v_xor_b32 {v(T3)}, {v(T3)}, {v(T1)}")
    a(f"v_lshlrev_b32 {v(T3)}, 4, {v(T3)}")
    a(f"v_lshl_add_u32 {v(T3)}, {v(T1)}, 8, {v(T3)}")
    a(f"v_lshl_add_u32 {v(vVX)}, {v(T4)}, 3, {v(T3)}")
    a(f"s_mul_i32 s73, s59, {48*256}")
    a(f"s_add_u32 s73, s73, {VX_LDS}")
    a(f"v_add_u32 {v(vVX)}, s73, {v(vVX)}")
    a("s_mul_i32 s69, s59, 48")
    a("s_add_u32 s69, s69, s57")
    a("s_lshl_b32 s71, s60, 1")
    a("s_lshr_b32 s70, s58, 1")
    a("s_add_u32 s71, s71, s70")
    a(f"s_mul_i32 s71, s71, {SLICEB}")
    a("s_and_b32 s70, s58, 1")
    a("s_lshl_b32 s70, s70, 7")
    a("s_add_u32 s71, s71, s70")
    a(f"v_and_b32 {v(T3)}, 7, v2")
    a(f"v_add_u32 {v(T3)}, s69, {v(T3)}")
    a(f"v_mul_u32_u24 {v(vST)}, {ROWB}, {v(T3)}")
    a(f"v_bfe_u32 {v(T3)}, v2, 3, 1")
    a(f"v_lshl_add_u32 {v(T3)}, {v(T3)}, 2, {v(T0)}")
    a(f"v_lshl_add_u32 {v(vST)}, {v(T3)}, 4, {v(vST)}")
    a(f"v_add_u32 {v(vST)}, s71, {v(vST)}")

    def passB_addr_dma():
        t0, t1, t2 = vT, vT+1, vT+2
        return [f"v_lshrrev_b32 {v(t0)}, 4, v2", f"v_add_u32 {v(t0)}, s62, {v(t0)}",
                f"v_and_b32 {v(t1)}, 3, {v(t0)}", f"v_bfe_u32 {v(t2)}, {v(t0)}, 3, 1", f"v_lshl_or_b32 {v(t1)}, {v(t2)}, 2, {v(t1)}",
                f"v_lshlrev_b32 {v(t1)}, 1, {v(t1)}", f"v_and_b32 {v(t2)}, 15, v2", f"v_xor_b32 {v(t1)}, {v(t1)}, {v(t2)}",
                f"v_mul_u32_u24 {v(vWB)}, 1536, {v(t0)}", f"v_lshl_add_u32 {v(vWB)}, {v(t1)}, 4, {v(vWB)}",
                f"v_add_u32 {v(vWB)}, s63, {v(vWB)}", f"v_add_u32 {v(vWB)}, 1024, {v(vWB)}"]
    def passB_addr_tr():
        t0, t1 = vT, vT+1
        return [f"v_lshrrev_b32 {v(t0)}, 4, v2", f"v_bfe_u32 {v(t1)}, v2, 2, 2", f"v_lshl_add_u32 {v(t0)}, {v(t0)}, 3, {v(t1)}",
                f"v_lshlrev_b32 {v(t0)}, 8, {v(t0)}", f"v_sub_u32 {v(vTB)}, {v(vTA)}, {v(t0)}", f"v_xor_b32 {v(vTB+1)}, 32, {v(vTB)}"]

    def tr_reads(n):
        k = kind(n); slot = slot_addr(n) - RING_LDS; buf = vA[n & 1]
        out = []
        if 4 <= n < 6:
            slot -= 65536
            if n == 4:
                for rt in range(4): out.append(f"v_add_u32 {v(vT1+rt)}, 0x10000, {v(vT1+rt)}")
        if n == 6:
            for rt in range(4): out.append(f"v_subrev_u32 {v(vT1+rt)}, 0x10000, {v(vT1+rt)}")
        if k == 0:
            for rt in range(4):
                out.append(f"ds_read_b64_tr_b16 {v(buf+rt*4,2)}, {v(vT1+rt)} offset:{slot}")
                out.append(f"ds_read_b64_tr_b16 {v(buf+rt*4+2,2)}, {v(vT1+rt)} offset:{slot+4*512}")
        elif k == 1:
            for p in range(2):
                for u in range(2):
                    rt = p*2+u
                    out.append(f"ds_read_b64_tr_b16 {v(buf+rt*4,2)}, {v(vTA+u)} offset:{slot+p*256}")
                    out.append(f"ds_read_b64_tr_b16 {v(buf+rt*4+2,2)}, {v(vTA+u)} offset:{slot+p*256+4*512}")
        else:
            for u in range(2):
                out.append(f"ds_read_b64_tr_b16 {v(buf+u*4,2)}, {v(vTB+u)} offset:{slot}")
                out.append(f"ds_read_b64_tr_b16 {v(buf+u*4+2,2)}, {v(vTB+u)} offset:{slot+4*256}")
        return out
    def bf_reads(n):
        ks = ks_of(n); buf = vBf[n & 1]
        return [f"ds_read_b128 {v(buf+4*t,4)}, {v(vB+(ks&3))} offset:{t*8192 + (ks>>2)*256}" for t in range(3)]

    def silu_pair(tiles):
        out = []
        TX = [vX, vX + 4]
        A = [acc1(rt, t) for rt, t in tiles]
        for i in range(2):
            for r in range(4): out.append(f"v_mul_f32 {v(TX[i]+r)}, 0xbfb8aa3b, {v(A[i]+r)}")
        for i in range(2):
            for r in range(4): out.append(f"v_exp_f32 {v(TX[i]+r)}, {v(TX[i]+r)}")
        for i in range(2):
            for r in range(4): out.append(f"v_add_f32 {v(TX[i]+r)}, 1.0, {v(TX[i]+r)}")
        for i in range(2):
            for r in range(4): out.append(f"v_rcp_f32 {v(TX[i]+r)}, {v(TX[i]+r)}")
        for i in range(2):
            for r in range(4): out.append(f"v_mul_f32 {v(TX[i]+r)}, {v(TX[i]+r)}, {v(A[i]+r)}")
        for i, (rt, t) in enumerate(tiles):
            P = vX + 8 + 2*i
            out.append(f"v_cvt_pk_bf16_f32 {v(P)}, {v(TX[i])}, {v(TX[i]+1)}")
            out.append(f"v_cvt_pk_bf16_f32 {v(P+1)}, {v(TX[i]+2)}, {v(TX[i]+3)}")
            out.append(f"v_xor_b32 {v(vT+i)}, {rt<<5}, {v(vHW)}")
            out.append(f"ds_write_b64 {v(vT+i)}, {v(P,2)} offset:{t*8192}")
        return out
    def silu_half(rts):
        tl = [(rt, t) for rt in rts for t in range(3)]
        out = []
        for i in range(0, 6, 2): out.append(silu_pair(tl[i:i+2]))
        return out

    def dpp_swap_store(X0, X1, TM, line, t):
        out = []
        for r in range(4):
            out.append(f"v_mov_b32_dpp {v(TM+r)}, {v(X0+r)} row_ror:8 row_mask:0xf bank_mask:0xf")
        for r in range(4):
            out.append(f"v_mov_b32_dpp {v(X0+r)}, {v(X1+r)} row_ror:8 row_mask:0xf bank_mask:0xc")
        for r in range(4):
            out.append(f"v_mov_b32_dpp {v(X1+r)}, {v(TM+r)} quad_perm:[0,1,2,3] row_mask:0xf bank_mask:0x3")
        out.append(f"s_mov_b32 s72, {t*16*ROWB}")
        if not opt.get('exp_nostore'):
            out.append((f"buffer_store_dwordx4 {v(X0,4)}, {v(vST)}, {s(TAB,4)}, s72 offen offset:{line*128} {tf}", ('ST', line, t, 0)))
            out.append((f"buffer_store_dwordx4 {v(X1,4)}, {v(vST)}, {s(TAB,4)}, s72 offen offset:{line*128 + 8*ROWB} {tf}", ('ST', line, t, 1)))
        return out
    X0, X1, TM = vX, vX + 4, vX + 8
    def line0_epi(t):
        out = []
        for u, X in ((0, X0), (1, X1)):
            S_ = accA(0*2+u, t); V_ = accA(1*2+u, t)
            out.append(f"v_cvt_pk_bf16_f32 {v(X)}, {v(S_)}, {v(S_+1)}")
            out.append(f"v_cvt_pk_bf16_f32 {v(X+1)}, {v(S_+2)}, {v(S_+3)}")
            out.append(f"v_cvt_pk_bf16_f32 {v(X+2)}, {v(V_)}, {v(V_+1)}")
            out.append(f"v_cvt_pk_bf16_f32 {v(X+3)}, {v(V_+2)}, {v(V_+3)}")
        out.append("s_nop 1")
        out += dpp_swap_store(X0, X1, TM, 0, t)
        out.append("s_nop 1")
        return out
    def s_epi(t):
        out = []
        for u in range(2):
            Rr = accB(u, t)
            out.append(f"v_cvt_pk_bf16_f32 {v(X0+2*u)}, {v(Rr)}, {v(Rr+1)}")
            out.append(f"v_cvt_pk_bf16_f32 {v(X0+2*u+1)}, {v(Rr+2)}, {v(Rr+3)}")
        out.append(f"v_xor_b32 {v(vT)}, 32, {v(vVX)}")
        out.append(f"ds_write_b64 {v(vVX)}, {v(X0,2)} offset:{t*16*256}")
        out.append(f"ds_write_b64 {v(vT)}, {v(X0+2,2)} offset:{t*16*256}")
        return out

    a(f"s_waitcnt vmcnt({vm_after(('C',5))})")
    st(a, opt, 0)
    lsignal(a, 0, vT, vT+1)
    lspin(a, 0, 8, "L_g_sp1", vT, vT+1)
    for x in tr_reads(0): a(x)
    for x in bf_reads(0): a(x)

    extra = {n: [] for n in range(NST)}
    def g_vx(i):
        def f():
            t0, t1, t2 = vT, vT+1, vT+2
            a("s_mul_i32 s72, s56, 12")
            a(f"s_add_u32 s72, s72, {4*i}")
            a(f"v_lshrrev_b32 {v(t0)}, 4, v2")
            a(f"v_add_u32 {v(t0)}, s72, {v(t0)}")
            a(f"v_and_b32 {v(t1)}, 15, {v(t0)}")
            a(f"v_and_b32 {v(t2)}, 15, v2")
            a(f"v_xor_b32 {v(t1)}, {v(t1)}, {v(t2)}")
            a(f"v_add_u32 {v(t0)}, s57, {v(t0)}")
            a(f"v_lshlrev_b32 {v(t0)}, 11, {v(t0)}")
            a(f"v_lshl_add_u32 {v(t0)}, {v(t1)}, 4, {v(t0)}")
            a(f"v_add_u32 {v(t0)}, s63, {v(t0)}")
            a(f"v_add_u32 {v(t0)}, 512, {v(t0)}")
            a("s_lshl_b32 s72, s72, 8")
            a(f"s_add_u32 s72, s72, {VX_LDS}")
            a("s_mov_b32 m0, s72")
            a("s_nop 0")
            a(f"buffer_load_dwordx4 {v(t0)}, {s(SV,4)}, 0 offen lds"); vm.append(('VX', i))
        return f
    for t in range(3): extra[16 + t] += s_epi(t)
    BARS = []

    for n in range(NST):
        k = kind(n); buf = vA[n & 1]; bb = vBf[n & 1]
        first = (n & 7) == 0
        a.c(f"--- step {n} (ks {ks_of(n)})")
        a("s_waitcnt lgkmcnt(0)")
        if n == 0: st(a, opt, 1)
        if n == 8: st(a, opt, 3)
        if n == 16: st(a, opt, 4)
        mf = []
        nrt = 4 if k < 2 else 2
        for rt in range(nrt):
            for t in range(3):
                A = acc1(rt, t) if k == 0 else (accA(rt, t) if k == 1 else accB(rt, t))
                cc = "0" if first else v(A, 4)
                mf.append(f"v_mfma_f32_16x16x32_bf16 {v(A,4)}, {v(buf+rt*4,4)}, {v(bb+4*t,4)}, {cc}")
        npre = 2 if k < 2 else 1
        for m in mf[:npre]: a(m)
        side = []
        if n < 7:
            if n == 1: lsignal(a, 1, vT, vT+1)
            if n == 2:
                lspin(a, 1, 8, "L_g_sp2", vT, vT+1)
                for x in issue_chunk(6) + issue_chunk(7): emit(x)
            if n == 4:
                a(f"s_waitcnt vmcnt({vm_after(('C', 7))})")
                lsignal(a, 2, vT, vT+1)
            if n == 5: lspin(a, 2, 8, "L_g_sp3", vT, vT+1)
            side = tr_reads(n + 1) + bf_reads(n + 1) + side
        elif n == 7:
            lsignal(a, 3, vT, vT+1)
        elif n < 15:
            if n in (9, 11, 13):
                a("s_barrier"); BARS.append(n)
            side = tr_reads(n + 1) + bf_reads(n + 1) + side
        elif n + 1 < NST:
            a("s_barrier"); BARS.append(n)
            side += tr_reads(n + 1)
            side += bf_reads(n + 1)
        side += extra[n]
        rest = mf[npre:]
        kk = 0
        nper = (len(side) + len(rest) - 1) // len(rest)
        for m in rest:
            a(m)
            for x in side[kk:kk+nper]: emit(x)
            kk += nper
        for x in side[kk:]: emit(x)
        if n == 7:
            lspin(a, 3, 8, "L_g_sp4", vT, vT+1)
            for x in passB_addr_tr(): a(x)
            st(a, opt, 2)
            for grp in silu_half((0, 1)) + silu_half((2, 3)):
                for x in grp: a(x)
            a("s_waitcnt lgkmcnt(0)")
            a("s_barrier")
            for x in tr_reads(8): a(x)
            for x in bf_reads(8): a(x)
    a("s_nop 7"); a("s_nop 1")
    st(a, opt, 5)
    for t in range(3):
        for x in line0_epi(t): emit(x)
    if opt.get('fused'):
        a("s_waitcnt vmcnt(0)")
        if opt.get('stamps'): a("s_memrealtime s[14:15]")
        a("s_barrier")
        a("s_cmp_eq_u32 s56, 0")
        a("s_cbranch_scc0 L_phaseB")
        if opt.get('wbl2'):
            a("buffer_wbl2 sc1")
            a("s_waitcnt vmcnt(0)")
            if opt.get('stamps'): a("s_memrealtime s[12:13]")
        a("s_mov_b64 exec, 1")
        a("v_mov_b32 v3, 1")
        a(f"v_mov_b32 v4, {TBL_DBG}")
        a(f"global_atomic_add v4, v3, s[{P_DBG}:{P_DBG+1}]")
        a("s_mov_b64 exec, -1")
        a("s_branch L_phaseB")
    else:
        stamp_end(a, opt, 0, 'g')
        a("s_endpgm")

    a.label("L_copy_role")
    srd(a, W2, P_W2, 256 * 1536)
    a("s_cmp_ge_u32 s56, 10")
    a("s_cbranch_scc1 L_copier")
    a("s_sub_u32 s58, s56, 8")
    vLB, vLA, vLX = 8, 12, 20
    t0, t1, t2, t3 = 3, 4, 5, 6
    def fb(dst, row, tmp):
        a(f"v_and_b32 {v(dst)}, 3, {v(row)}")
        a(f"v_bfe_u32 {v(tmp)}, {v(row)}, 3, 1")
        a(f"v_lshl_or_b32 {v(dst)}, {v(tmp)}, 2, {v(dst)}")
    for i in range(4):
        a("s_lshl_b32 s72, s58, 4")
        a(f"s_add_u32 s72, s72, {4*i}")
        a(f"v_lshrrev_b32 {v(t0)}, 4, v2")
        a(f"v_add_u32 {v(t0)}, s72, {v(t0)}")
        fb(t1, t0, t2)
        a(f"v_lshlrev_b32 {v(t1)}, 1, {v(t1)}")
        a(f"v_and_b32 {v(t2)}, 15, v2")
        a(f"v_xor_b32 {v(t1)}, {v(t1)}, {v(t2)}")
        a(f"v_mul_u32_u24 {v(vLB+i)}, 1536, {v(t0)}")
        a(f"v_lshl_add_u32 {v(vLB+i)}, {v(t1)}, 4, {v(vLB+i)}")
        a(f"v_add_u32 {v(vLB+i)}, s63, {v(vLB+i)}")
    for i in range(8):
        a("s_lshl_b32 s72, s58, 4")
        a(f"s_add_u32 s72, s72, {2*i}")
        a(f"v_lshrrev_b32 {v(t0)}, 5, v2")
        a(f"v_add_u32 {v(t0)}, s72, {v(t0)}")
        fb(t1, t0, t2)
        a(f"v_lshlrev_b32 {v(t1)}, 1, {v(t1)}")
        a(f"v_and_b32 {v(t2)}, 31, v2")
        a(f"v_xor_b32 {v(t1)}, {v(t1)}, {v(t2)}")
        a(f"v_mul_u32_u24 {v(vLA+i)}, 1536, {v(t0)}")
        a(f"v_lshrrev_b32 {v(t2)}, 4, {v(t1)}")
        a(f"v_add_u32 {v(t2)}, 1, {v(t2)}")
        a(f"v_lshl_add_u32 {v(vLA+i)}, {v(t2)}, 9, {v(vLA+i)}")
        a(f"v_and_b32 {v(t2)}, 15, {v(t1)}")
        a(f"v_lshl_add_u32 {v(vLA+i)}, {v(t2)}, 4, {v(vLA+i)}")
        a(f"v_add_u32 {v(vLA+i)}, s63, {v(vLA+i)}")
    a("s_lshl_b32 s65, s58, 12")
    a("s_lshl_b32 s66, s58, 13")
    a("s_mul_i32 s67, s58, 12288")
    vl = []
    def vl_after(tag):
        idx = max(i for i, x in enumerate(vl) if x == tag)
        return len(vl) - 1 - idx
    def l_chunk(n):
        ks = n & 7
        a(f"s_mov_b32 s68, {ks * 49152}")
        if n < 16:
            for i in range(4):
                a(f"s_add_u32 s72, s65, {slot_addr(n) + i*1024}")
                a("s_mov_b32 m0, s72")
                a("s_nop 0")
                a(f"buffer_load_dwordx4 {v(vLB+i)}, {s(W2,4)}, s68 offen lds"); vl.append(('C', n))
        else:
            for i in range(8):
                a(f"s_add_u32 s72, s66, {slot_addr(n) + i*1024}")
                a("s_mov_b32 m0, s72")
                a("s_nop 0")
                a(f"buffer_load_dwordx4 {v(vLA+i)}, {s(W2,4)}, s68 offen lds"); vl.append(('C', n))
    a("s_waitcnt lgkmcnt(0)")
    a("s_barrier")
    lspin(a, 3, 8, "L_l_sp4", t0, t1)
    for n in range(8, 16): l_chunk(n)
    a("s_waitcnt vmcnt(0)")
    a("s_barrier")
    for n in BARS:
        if n >= 15:
            a(f"s_waitcnt vmcnt({vl_after(('C', n + 1))})")
        a("s_barrier")
        if n in (9, 11, 13): l_chunk(16 + (n - 9) // 2)
        elif n == 15: l_chunk(19)
        elif n + 4 < NST: l_chunk(n + 4)
    stamp_end(a, opt, 0, 'l')
    a("s_endpgm")
    a.label("L_copier")
    a("s_sub_u32 s58, s56, 10")
    vN, vL, vG = 3, 4, 5
    a("v_lshrrev_b32 v6, 3, v2")
    a("s_mul_i32 s73, s58, 48")
    a(f"v_add_u32 {v(vN)}, s73, v6")
    a("v_and_b32 v7, 7, v2")
    a(f"v_add_u32 {v(vG)}, s57, {v(vN)}")
    a(f"v_mul_u32_u24 {v(vG)}, {ROWB}, {v(vG)}")
    a(f"v_lshl_add_u32 {v(vG)}, v7, 4, {v(vG)}")
    a("s_lshl_b32 s71, s60, 1")
    a(f"s_mul_i32 s71, s71, {SLICEB}")
    a(f"v_add_u32 {v(vG)}, s71, {v(vG)}")
    a("s_waitcnt lgkmcnt(0)")
    a("s_barrier")
    a("s_barrier")
    for n in BARS:
        a("s_barrier")
        if n in (19, 20, 21):
            us = range(4*(n-19), 4*(n-19)+4)
            for i in us:
                kl, oc = i & 1, i >> 1
                a(f"v_add_u32 v8, {8*oc}, {v(vN)}")
                a("v_and_b32 v9, 15, v8")
                a(f"v_add_u32 v10, {8*kl}, v7")
                a("v_xor_b32 v9, v9, v10")
                a("v_lshlrev_b32 v9, 4, v9")
                a("v_lshl_add_u32 v9, v8, 8, v9")
                a(f"v_add_u32 v9, {VX_LDS}, v9")
                a(f"ds_read_b128 v[{16+4*i}:{19+4*i}], v9")
            for k, i in enumerate(us):
                kl, oc = i & 1, i >> 1
                a(f"s_waitcnt lgkmcnt({3-k})")
                a(f"s_mov_b32 s72, {kl*SLICEB + oc*8*ROWB}")
                a(f"buffer_store_dwordx4 v[{16+4*i}:{19+4*i}], {v(vG)}, {s(TAB,4)}, s72 offen offset:256 {l2f}")
    stamp_end(a, opt, 0, 'c')
    a("s_endpgm")
```

```python
from asmlib import *
from k1 import *
import k1w
from k1w import SLICEB, TAB_OFF, ROWB

K2_NWG = 256
RNG = 313
CNT_L = 0; START_L = 1280; ORDER_L = 2560; BKT_L = 3840; MISC_L = 3904
WPK_L = 4096
REC_L = 5632
NULL_L = REC_L + 1024 * 32
OWN_L = 38912
NOWN = 79
K2_LDS = OWN_L + NOWN * 1024
WORK_O, BUMP_O, C2_O, C3_O, RDY_O, OWN_O = 0, 4, 8, 12, 16, 20
OOBV = 0x7f000000
NULLSRC = 0x00100000

def dpp_scan(a, x, op="v_add_u32"):
    for sh in (1, 2, 4, 8):
        a("s_nop 1")
        a(f"{op}_dpp {v(x)}, {v(x)}, {v(x)} row_shr:{sh} row_mask:0xf bank_mask:0xf bound_ctrl:0")
    a("s_nop 1")
    a(f"{op}_dpp {v(x)}, {v(x)}, {v(x)} row_bcast:15 row_mask:0xa bank_mask:0xf")
    a("s_nop 1")
    a(f"{op}_dpp {v(x)}, {v(x)}, {v(x)} row_bcast:31 row_mask:0xc bank_mask:0xf")
    a("s_nop 1")

def spin(a, off, target, lbl, vt=7, st_="s69"):
    a(f"v_mov_b32 v{vt}, {MISC_L + off}")
    a.label(lbl)
    a(f"ds_read_b32 v1, v{vt}")
    a("s_waitcnt lgkmcnt(0)")
    a(f"v_readfirstlane_b32 {st_}, v1")
    a(f"s_cmp_ge_u32 {st_}, {target}")
    a(f"s_cbranch_scc0 {lbl}")
def signal(a, off, vt=7):
    a("s_waitcnt lgkmcnt(0)")
    a("s_mov_b64 exec, 1")
    a(f"v_mov_b32 v{vt}, {MISC_L + off}")
    a("v_mov_b32 v1, 1")
    a(f"ds_add_u32 v{vt}, v1")
    a("s_mov_b64 exec, -1")

def k2w(a, opt):
    TAB, SV, OUT, REC, CNT, WR = 40, 44, 48, 52, 56, 60
    ost = opt.get('out_store_flags', '')
    sres = opt.get('sres_flags', '')
    a(f"s_cmp_ge_u32 s2, {K2_NWG}")
    a("s_cbranch_scc1 L_k2_exit")
    stamp_begin(a, opt)
    if opt.get('delay'):
        a(f"s_mov_b32 s69, {int(opt['delay'])}")
        a.label("L_k2_delay")
        for i in range(16): a("s_nop 15")
        a("s_sub_u32 s69, s69, 1")
        a("s_cmp_lg_u32 s69, 0")
        a("s_cbranch_scc1 L_k2_delay")
    load_kernargs(a)
    a("v_lshrrev_b32 v1, 6, v0")
    a("v_and_b32 v2, 63, v0")
    a("s_and_b32 s65, s2, 7")
    a("s_and_b32 s38, s65, 1")
    a("s_lshr_b32 s65, s65, 1")
    a("s_lshr_b32 s66, s2, 3")
    a(f"s_mul_i32 s67, s66, {RNG}")
    a(f"s_sub_u32 s68, {N}, s67")
    a(f"s_min_u32 s68, s68, {RNG}")
    a("v_lshlrev_b32 v5, 2, v0")
    a("v_mov_b32 v6, 0")
    a("v_cmp_gt_u32 vcc, 320, v0")
    a("s_and_saveexec_b64 s[70:71], vcc")
    a(f"ds_write_b32 v5, v6 offset:{CNT_L}")
    a("s_mov_b64 exec, s[70:71]")
    a("v_cmp_gt_u32 vcc, 32, v0")
    a("s_and_saveexec_b64 s[70:71], vcc")
    a(f"ds_write_b32 v5, v6 offset:{BKT_L}")
    a("s_mov_b64 exec, s[70:71]")
    a("s_waitcnt lgkmcnt(0)")
    a("v_readfirstlane_b32 s64, v1")
    srd(a, REC, P_WS, REC_SIZE, REC_OFF)
    srd(a, CNT, P_WS, CNT_SIZE, CNT_OFF)
    a("v_lshlrev_b32 v4, 8, v2")
    a("s_lshl_b32 s69, s66, 2")
    a(f"buffer_load_dword v13, v4, {s(CNT,4)}, s69 offen")
    a("s_cmp_ge_u32 s64, 8")
    a("s_cbranch_scc1 L_k2_norec")
    a("s_lshl_b32 s69, s66, 10")
    a("v_add_u32 v3, s69, v0")
    a(f"v_mul_u32_u24 v3, {RECB}, v3")
    a(f"buffer_load_dwordx4 v[8:11], v3, {s(REC,4)}, 0 offen")
    a(f"buffer_load_dword v12, v3, {s(REC,4)}, 0 offen offset:16")
    a(f"v_add_u32 v3, {512*RECB}, v3")
    a(f"buffer_load_dwordx4 v[16:19], v3, {s(REC,4)}, 0 offen")
    a(f"buffer_load_dword v20, v3, {s(REC,4)}, 0 offen offset:16")
    a.label("L_k2_norec")
    a(f"s_mul_i32 s69, s65, {SLICEB}")
    a(f"s_add_u32 s{TAB}, s{P_WS}, s69")
    a(f"s_addc_u32 s{TAB+1}, s{P_WS+1}, 0")
    if TAB_OFF:
        a(f"s_add_u32 s{TAB}, s{TAB}, {TAB_OFF}")
        a(f"s_addc_u32 s{TAB+1}, s{TAB+1}, 0")
    a(f"s_mov_b32 s{TAB+2}, {SLICEB}")
    a(f"s_mov_b32 s{TAB+3}, 0x00020000")
    srd(a, SV, P_SV, N * 2048)
    srd(a, OUT, P_OUT, N * 2048)
    srd(a, WR, P_WR, 4 * 1536)
    a("s_barrier")
    def total():
        a("v_mov_b32 v14, v13")
        for sh in (1, 2, 4, 8):
            a("s_nop 1")
            a(f"v_add_u32_dpp v14, v14, v14 row_shr:{sh} row_mask:0xf bank_mask:0xf bound_ctrl:0")
        a("s_nop 1")
        a("v_readlane_b32 s72, v14, 15")
        a("v_readlane_b32 s73, v14, 31")
        a("v_readlane_b32 s74, v14, 47")
        a("s_add_u32 s72, s72, s73")
        a("s_add_u32 s72, s72, s74")
    a("s_cmp_ge_u32 s64, 8")
    a("s_cbranch_scc0 L_k2_sorter")
    delay(a, opt.get('d_pf'), "L_d_pf")
    a("s_cmp_eq_u32 s64, 8")
    a("s_cbranch_scc0 L_k2_now")
    vWraw = 64
    a("v_and_b32 v7, 15, v2")
    a("v_lshlrev_b32 v7, 3, v7")
    a("s_lshl_b32 s69, s65, 7")
    a("v_add_u32 v7, s69, v7")
    a("s_movk_i32 s69, 3072")
    for k in range(4):
        for p in range(3):
            off = k*1536 + p*512
            if off < 3072:
                a(f"buffer_load_dwordx2 {v(vWraw+(k*3+p)*2,2)}, v7, {s(WR,4)}, 0 offen offset:{off}")
            else:
                a(f"buffer_load_dwordx2 {v(vWraw+(k*3+p)*2,2)}, v7, {s(WR,4)}, s69 offen offset:{off-3072}")
    a("s_waitcnt vmcnt(0)")
    vW = 96
    a("s_mov_b32 s70, 0x05040100")
    a("s_mov_b32 s71, 0x07060302")
    for p in range(3):
        for ch in range(4):
            d = ch >> 1
            sel = "s70" if (ch & 1) == 0 else "s71"
            for h in range(2):
                r0 = vWraw + ((2*h)*3+p)*2 + d; r1 = vWraw + ((2*h+1)*3+p)*2 + d
                a(f"v_perm_b32 {v(vW+(p*4+ch)*2+h)}, {v(r1)}, {v(r0)}, {sel}")
    a("v_and_b32 v7, 15, v2")
    a("v_mul_u32_u24 v7, 96, v7")
    a("v_cmp_gt_u32 vcc, 16, v2")
    a("s_and_saveexec_b64 s[70:71], vcc")
    for q in range(6):
        a(f"ds_write_b128 v7, {v(vW+4*q,4)} offset:{WPK_L + 16*q}")
    a("s_mov_b64 exec, 1")
    a(f"v_mov_b32 v40, {NULLSRC}")
    for r in (41, 42, 43, 44, 45): a(f"v_mov_b32 v{r}, 0")
    a(f"v_mov_b32 v7, {NULL_L}")
    a("ds_write_b128 v7, v[40:43]")
    a("ds_write_b64 v7, v[44:45] offset:16")
    a("s_mov_b64 exec, -1")
    signal(a, RDY_O)
    a.label("L_k2_now")
    a("v_lshrrev_b32 v6, 4, v2")
    a("v_add_u32 v6, s67, v6")
    a("v_lshlrev_b32 v6, 11, v6")
    a("v_bfe_u32 v7, v2, 3, 1")
    a("v_lshl_add_u32 v6, v7, 9, v6")
    a("v_and_b32 v7, 7, v2")
    a("v_lshl_add_u32 v6, v7, 4, v6")
    a("s_lshl_b32 s70, s38, 10")
    a("s_lshl_b32 s71, s65, 7")
    a("s_add_u32 s70, s70, s71")
    a("v_add_u32 v6, s70, v6")
    a("s_sub_u32 s69, s64, 8")
    a.label("L_k2_dmaloop")
    a("s_lshl_b32 s71, s69, 10")
    a(f"s_add_u32 s71, s71, {OWN_L}")
    a("s_mov_b32 m0, s71")
    a("s_lshl_b32 s71, s69, 13")
    a(f"buffer_load_dwordx4 v6, {s(SV,4)}, s71 offen {opt.get('res_flags','')} lds")
    a("s_add_u32 s69, s69, 8")
    a(f"s_cmp_lt_u32 s69, {NOWN}")
    a("s_cbranch_scc1 L_k2_dmaloop")
    a.label("L_k2_dmaskip")
    a("s_waitcnt vmcnt(0)")
    st(a, opt, 0)
    total()
    signal(a, OWN_O)
    spin(a, RDY_O, 9, "L_k2_sp_rdy")
    st(a, opt, 2)
    a("s_waitcnt lgkmcnt(0)")
    a(f"s_cmp_gt_u32 s72, {HOTCAP}")
    a("s_cbranch_scc1 L_k2_slow")
    a("s_branch L_k2_main")
    a.label("L_k2_sorter")
    delay(a, opt.get('d_sort'), "L_d_sort")
    a("s_waitcnt vmcnt(0)")
    st(a, opt, 0)
    total()
    if opt.get('stamps'): a("s_waitcnt lgkmcnt(0)")
    a(f"s_cmp_gt_u32 s72, {HOTCAP}")
    a("s_cbranch_scc0 L_k2_sort")
    signal(a, RDY_O)
    spin(a, RDY_O, 9, "L_k2_sp_rdy2")
    a("s_branch L_k2_slow")
    a.label("L_k2_sort")
    a("v_lshrrev_b32 v14, 14, v8")
    a("v_lshrrev_b32 v15, 14, v16")
    a("v_lshlrev_b32 v30, 2, v14")
    a("v_lshlrev_b32 v31, 2, v15")
    a("v_mov_b32 v21, 1")
    a("v_mov_b32 v22, 1")
    a("v_add_u32 v23, 512, v0")
    a("v_cmp_gt_u32 s[76:77], s72, v0")
    a("v_cmp_gt_u32 s[78:79], s72, v23")
    a("s_mov_b64 exec, s[76:77]")
    a(f"ds_add_rtn_u32 v21, v30, v21 offset:{CNT_L}")
    a("s_mov_b64 exec, s[78:79]")
    a(f"ds_add_rtn_u32 v22, v31, v22 offset:{CNT_L}")
    a("s_mov_b64 exec, -1")
    for (raw, last, dst) in ((8, 12, 32), (16, 20, 40)):
        a(f"v_and_b32 v{dst}, 0x3fff, v{raw}")
        a(f"v_mov_b32 v{dst+1}, v{raw+1}")
        a(f"v_mov_b32 v{dst+2}, v{raw+2}")
        a(f"v_lshlrev_b32 v{dst+3}, 16, v{raw+3}")
        a(f"v_and_b32 v{dst+4}, 0xffff0000, v{raw+3}")
        a(f"v_lshlrev_b32 v{dst+5}, 16, v{last}")
    signal(a, C2_O)
    spin(a, C2_O, 8, "L_k2_sp_c2")
    st(a, opt, 1)
    a("s_waitcnt lgkmcnt(0)")
    a("s_cmp_lt_u32 s64, 5")
    a("s_cbranch_scc0 L_k2_nonode")
    a(f"ds_read_b32 v26, v5 offset:{CNT_L}")
    a("v_cmp_gt_u32 s[80:81], s68, v0")
    a("s_waitcnt lgkmcnt(0)")
    a("v_cndmask_b32 v26, 0, v26, s[80:81]")
    a("v_mov_b32 v27, v26")
    dpp_scan(a, 27)
    a("v_readlane_b32 s82, v27, 63")
    a("s_mov_b64 exec, 1")
    a(f"v_mov_b32 v28, {MISC_L+BUMP_O}")
    a("v_mov_b32 v29, s82")
    a("ds_add_rtn_u32 v29, v28, v29")
    a("s_mov_b64 exec, -1")
    a("v_min_u32 v48, 15, v26")
    a("v_sub_u32 v48, 15, v48")
    a("v_lshlrev_b32 v49, 2, v48")
    a("v_mov_b32 v50, 1")
    a("s_mov_b64 exec, s[80:81]")
    a(f"ds_add_rtn_u32 v50, v49, v50 offset:{BKT_L}")
    a("s_mov_b64 exec, -1")
    a("s_waitcnt lgkmcnt(0)")
    a("v_readfirstlane_b32 s82, v29")
    a("v_sub_u32 v27, v27, v26")
    a("v_add_u32 v27, s82, v27")
    a("s_mov_b64 exec, s[80:81]")
    a(f"ds_write_b32 v5, v27 offset:{START_L}")
    a("s_mov_b64 exec, -1")
    a.label("L_k2_nonode")
    signal(a, C3_O)
    spin(a, C3_O, 8, "L_k2_sp_c3")
    a("s_cmp_lt_u32 s64, 5")
    a("s_cbranch_scc0 L_k2_noord")
    a("v_lshlrev_b32 v51, 2, v2")
    a(f"ds_read_b32 v51, v51 offset:{BKT_L}")
    a("s_waitcnt lgkmcnt(0)")
    a("v_mov_b32 v52, v51")
    for sh in (1, 2, 4, 8):
        a("s_nop 1")
        a(f"v_add_u32_dpp v52, v52, v52 row_shr:{sh} row_mask:0xf bank_mask:0xf bound_ctrl:0")
    a("s_nop 1")
    a("v_sub_u32 v52, v52, v51")
    a("ds_bpermute_b32 v52, v49, v52")
    a("s_waitcnt lgkmcnt(0)")
    a("v_add_u32 v52, v52, v50")
    a("v_lshlrev_b32 v52, 2, v52")
    a("s_mov_b64 exec, s[80:81]")
    a(f"ds_write_b32 v52, v0 offset:{ORDER_L}")
    a("s_mov_b64 exec, -1")
    a.label("L_k2_noord")
    a(f"ds_read_b32 v53, v30 offset:{START_L}")
    a(f"ds_read_b32 v54, v31 offset:{START_L}")
    a("s_waitcnt lgkmcnt(0)")
    a("v_add_u32 v53, v53, v21")
    a("v_add_u32 v54, v54, v22")
    a("v_lshlrev_b32 v53, 5, v53")
    a("v_lshlrev_b32 v54, 5, v54")
    a("s_mov_b64 exec, s[76:77]")
    a(f"ds_write_b128 v53, v[32:35] offset:{REC_L}")
    a(f"ds_write_b64 v53, v[36:37] offset:{REC_L+16}")
    a("s_mov_b64 exec, s[78:79]")
    a(f"ds_write_b128 v54, v[40:43] offset:{REC_L}")
    a(f"ds_write_b64 v54, v[44:45] offset:{REC_L+16}")
    a("s_mov_b64 exec, -1")
    signal(a, RDY_O)
    spin(a, RDY_O, 9, "L_k2_sp_rdy3")
    st(a, opt, 2)
    a("s_waitcnt lgkmcnt(0)")
    a.label("L_k2_main")

    X1S = 80
    vW = 96
    vAcc = 8
    vRaw = [16, 24, 32]
    vRC = [40, 48, 56]
    vWf = 64
    vU = 120
    vJ16 = 3; vSb = 4; vDeg = 5; vOV = 6; vOwn = 7; vT = 78; vE = 80; vAd = 81; vJ8 = 82; vA1 = 83; vA2 = 84; vRes = 86
    D = int(opt.get('depth', 3))
    SX1 = 92
    def load_w():
        a("v_and_b32 v7, 15, v2")
        a("v_mul_u32_u24 v7, 96, v7")
        for q in range(6):
            a(f"ds_read_b128 {v(vW+4*q,4)}, v7 offset:{WPK_L + 16*q}")
        a("v_and_b32 v3, 15, v2")
        a(f"v_lshlrev_b32 {v(vJ8)}, 3, v3")
        a("v_lshlrev_b32 v3, 4, v3")
        a("s_cmp_eq_u32 s38, 0")
        for i in range(4):
            a(f"s_cselect_b32 s{SX1+i}, s{TAB+i}, s{SV+i}")
        a("s_movk_i32 s39, 2048")
        a("s_cselect_b32 s39, 384, s39")
        a("s_lshl_b32 s77, s65, 7")
        a("s_add_u32 s78, s77, 1024")
        a("s_cselect_b32 s78, 256, s78") if False else None
        a("s_cmp_eq_u32 s38, 0")
        a("s_cselect_b32 s78, 256, s78")
        a("s_lshl_b32 s79, s38, 10")
        a("s_add_u32 s79, s79, s77")
        a("s_add_u32 s79, s79, 512")
        a(f"v_add_u32 {v(vA1)}, s78, {v(vJ8)}")
        a(f"v_add_u32 {v(vA2)}, s79, {v(vJ8)}")
    def compute(role, R, RC):
        g01, g23 = RC + 1, RC + 2
        parts = (0, 1, 2) if role == 0 else (1, 2)
        for p in parts:
            for ch in range(4):
                a(f"v_dot2_f32_bf16 {v(vWf+p*4+ch)}, {v(vW+(p*4+ch)*2+1)}, {v(g23)}, 0")
        for p in parts:
            for ch in range(4):
                a(f"v_dot2_f32_bf16 {v(vWf+p*4+ch)}, {v(vW+(p*4+ch)*2)}, {v(g01)}, {v(vWf+p*4+ch)}")
        for p in (1, 2):
            for d in range(2):
                src = R + 2*(p-1) + d
                a(f"v_lshlrev_b32 {v(vU)}, 16, {v(src)}")
                a(f"v_and_b32 {v(vU+1)}, 0xffff0000, {v(src)}")
                a(f"v_mul_f32 {v(vWf+p*4+2*d)}, {v(vU)}, {v(vWf+p*4+2*d)}")
                a(f"v_mul_f32 {v(vWf+p*4+2*d+1)}, {v(vU+1)}, {v(vWf+p*4+2*d+1)}")
        for which in range(2):
            X = R + 4 + 2*which
            for d in range(2):
                a(f"v_lshlrev_b32 {v(vU+2)}, 16, {v(X+d)}")
                a(f"v_and_b32 {v(vU+3)}, 0xffff0000, {v(X+d)}")
                A = vAcc + 4*which + 2*d
                if role == 0 and which == 0:
                    a(f"v_fmac_f32 {v(A)}, {v(vU+2)}, {v(vWf+2*d)}")
                    a(f"v_fmac_f32 {v(A+1)}, {v(vU+3)}, {v(vWf+2*d+1)}")
                else:
                    rho = RC + 3 if role == 0 else RC + 4 + which
                    a(f"v_fmac_f32 {v(A)}, {v(vU+2)}, {v(vWf+4+2*d)}")
                    a(f"v_fmac_f32 {v(A+1)}, {v(vU+3)}, {v(vWf+4+2*d+1)}")
                    a(f"v_fmac_f32 {v(A)}, {v(rho)}, {v(vWf+8+2*d)}")
                    a(f"v_fmac_f32 {v(A+1)}, {v(rho)}, {v(vWf+8+2*d+1)}")
    def issue_rows(R, RC):
        a(f"v_mad_u32_u24 {v(vAd)}, {v(RC)}, 384, {v(vJ16)}" if False else f"v_mul_u32_u24 {v(vAd)}, 384, {v(RC)}")
        a(f"v_add_u32 {v(vAd)}, {v(vAd)}, {v(vJ16)}")
        a(f"buffer_load_dwordx4 {v(R,4)}, {v(vAd)}, {s(TAB,4)}, 0 offen")
        a(f"v_mad_u32_u24 {v(vAd)}, {v(RC)}, s39, {v(vA1)}")
        a(f"buffer_load_dwordx2 {v(R+4,2)}, {v(vAd)}, {s(SX1,4)}, 0 offen")
        a(f"v_lshl_add_u32 {v(vAd)}, {v(RC)}, 11, {v(vA2)}")
        a(f"buffer_load_dwordx2 {v(R+6,2)}, {v(vAd)}, {s(SV,4)}, 0 offen")
    def fetch_rec(RC, e_sgpr):
        a(f"s_lshl_b32 s87, {e_sgpr}, 5")
        a(f"v_add_u32 {v(vAd)}, s87, {v(vSb)}")
        a(f"v_cmp_lt_u32 vcc, {e_sgpr}, {v(vDeg)}")
        a(f"v_mov_b32 {v(vT)}, {NULL_L}")
        a(f"v_cndmask_b32 {v(vAd)}, {v(vT)}, {v(vAd)}, vcc")
        a(f"ds_read_b128 {v(RC,4)}, {v(vAd)}")
        a(f"ds_read_b64 {v(RC+4,2)}, {v(vAd)} offset:16")
        a("s_waitcnt lgkmcnt(0)")
    def zero_acc():
        for r in range(8): a(f"v_mov_b32 {v(vAcc+r)}, 0")
    def own_residual(lbl):
        a("s_cmp_eq_u32 s75, 1")
        a(f"s_cbranch_scc1 {lbl}_ok")
        spin(a, OWN_O, 8, lbl + "_sp", vt=vT, st_="s75")
        a("s_mov_b32 s75, 1")
        a.label(lbl + "_ok")
        a(f"ds_read_b64 {v(vRes,2)}, {v(vOwn)}")
        a(f"ds_read_b64 {v(vRes+2,2)}, {v(vOwn)} offset:128")
        a("s_waitcnt lgkmcnt(0)")
    def finish_store():
        for c in range(2):
            for d in range(2):
                U = vU + 2*((2*c+d) & 3)
                a(f"v_lshlrev_b32 {v(U)}, 16, {v(vRes+2*c+d)}")
                a(f"v_and_b32 {v(U+1)}, 0xffff0000, {v(vRes+2*c+d)}")
                a(f"v_add_f32 {v(vAcc+4*c+2*d)}, {v(vAcc+4*c+2*d)}, {v(U)}")
                a(f"v_add_f32 {v(vAcc+4*c+2*d+1)}, {v(vAcc+4*c+2*d+1)}, {v(U+1)}")
        for c in range(2):
            for d in range(2):
                a(f"v_cvt_pk_bf16_f32 {v(vWf+2*c+d)}, {v(vAcc+c*4+2*d)}, {v(vAcc+c*4+2*d+1)}")
        for c in range(2):
            a(f"buffer_store_dwordx2 {v(vWf+2*c,2)}, {v(vOV)}, {s(OUT,4)}, 0 offen offset:{c*512} {ost}")

    load_w()
    a("s_mov_b32 s75, 0")
    a.label("L_k2_next")
    a("s_mov_b64 exec, 1")
    a(f"v_mov_b32 {v(vT)}, {MISC_L}")
    a(f"v_mov_b32 {v(vU)}, 1")
    a(f"ds_add_rtn_u32 {v(vT)}, {v(vT)}, {v(vU)}")
    a("s_waitcnt lgkmcnt(0)")
    a(f"v_readfirstlane_b32 s80, {v(vT)}")
    a("s_mov_b64 exec, -1")
    a("s_lshl_b32 s80, s80, 2")
    a("s_cmp_ge_u32 s80, s68")
    a("s_cbranch_scc1 L_k2_exit")
    a(f"v_lshrrev_b32 {v(vT)}, 4, v2")
    a(f"v_add_u32 {v(vT)}, s80, {v(vT)}")
    a(f"v_cmp_gt_u32 s[82:83], s68, {v(vT)}")
    a(f"v_lshlrev_b32 {v(vT+1)}, 2, {v(vT)}")
    a(f"ds_read_b32 {v(vT+1)}, {v(vT+1)} offset:{ORDER_L}")
    a("s_waitcnt lgkmcnt(0)")
    a(f"v_cndmask_b32 {v(vT+1)}, 0, {v(vT+1)}, s[82:83]")
    a(f"v_lshlrev_b32 {v(vT)}, 2, {v(vT+1)}")
    a(f"ds_read_b32 {v(vDeg)}, {v(vT)} offset:{CNT_L}")
    a(f"ds_read_b32 {v(vSb)}, {v(vT)} offset:{START_L}")
    a(f"v_add_u32 {v(vOV)}, s67, {v(vT+1)}")
    a(f"v_lshlrev_b32 {v(vOV)}, 11, {v(vOV)}")
    a(f"v_add_u32 {v(vOV)}, {v(vOV)}, {v(vJ8)}")
    a("s_lshl_b32 s84, s38, 10")
    a("s_add_u32 s84, s84, s77")
    a(f"v_add_u32 {v(vOV)}, s84, {v(vOV)}")
    a(f"v_mov_b32 {v(vT)}, {OOBV}")
    a(f"v_cndmask_b32 {v(vOV)}, {v(vT)}, {v(vOV)}, s[82:83]")
    a(f"v_lshlrev_b32 {v(vOwn)}, 8, {v(vT+1)}")
    a(f"v_add_u32 {v(vOwn)}, {v(vOwn)}, {v(vJ8)}")
    a(f"v_add_u32 {v(vOwn)}, {OWN_L}, {v(vOwn)}")
    a("s_waitcnt lgkmcnt(0)")
    a(f"v_cndmask_b32 {v(vDeg)}, 0, {v(vDeg)}, s[82:83]")
    a(f"v_lshlrev_b32 {v(vSb)}, 5, {v(vSb)}")
    a(f"v_add_u32 {v(vSb)}, {REC_L}, {v(vSb)}")
    a(f"v_readlane_b32 s85, {v(vDeg)}, 0")
    a(f"v_readlane_b32 s86, {v(vDeg)}, 16")
    a("s_max_u32 s85, s85, s86")
    a(f"v_readlane_b32 s86, {v(vDeg)}, 32")
    a("s_max_u32 s85, s85, s86")
    a(f"v_readlane_b32 s86, {v(vDeg)}, 48")
    a("s_max_u32 s85, s85, s86")
    zero_acc()
    a("s_cmp_eq_u32 s85, 0")
    a("s_cbranch_scc1 L_k2_fin")
    for k in range(D):
        if k:
            a(f"s_cmp_gt_u32 s85, {k}")
            a("s_cbranch_scc0 L_k2_primed")
        a(f"s_mov_b32 s81, {k}")
        fetch_rec(vRC[k], "s81")
        issue_rows(vRaw[k], vRC[k])
    a.label("L_k2_primed")
    a("s_mov_b32 s89, 0")
    a("s_cmp_eq_u32 s38, 0")
    a("s_cbranch_scc0 L_k2_loopB")
    for role in range(2):
        tg = "AB"[role]
        a.label(f"L_k2_loop{tg}")
        for k in range(D):
            a("s_sub_u32 s81, s85, s89")
            for c in range(D-1, 0, -1):
                a(f"s_cmp_gt_u32 s81, {c}")
                a(f"s_cbranch_scc1 L_k2_w{c}_{tg}{k}")
            a("s_waitcnt vmcnt(0)")
            if D > 1: a(f"s_branch L_k2_wd_{tg}{k}")
            for c in range(D-1, 0, -1):
                a.label(f"L_k2_w{c}_{tg}{k}")
                a(f"s_waitcnt vmcnt({3*c})")
                if c > 1: a(f"s_branch L_k2_wd_{tg}{k}")
            a.label(f"L_k2_wd_{tg}{k}")
            compute(role, vRaw[k], vRC[k])
            a(f"s_add_u32 s81, s89, {D}")
            a("s_cmp_lt_u32 s81, s85")
            a(f"s_cbranch_scc0 L_k2_ni_{tg}{k}")
            fetch_rec(vRC[k], "s81")
            issue_rows(vRaw[k], vRC[k])
            a.label(f"L_k2_ni_{tg}{k}")
            a("s_add_u32 s89, s89, 1")
            a("s_cmp_lt_u32 s89, s85")
            if k < D-1: a("s_cbranch_scc0 L_k2_fin")
            else: a(f"s_cbranch_scc1 L_k2_loop{tg}")
        a("s_branch L_k2_fin")
    a.label("L_k2_fin")
    own_residual("L_k2_own1")
    finish_store()
    a("s_branch L_k2_next")

    a.label("L_k2_slow")
    load_w()
    a("s_mov_b32 s75, 0")
    a("s_mov_b32 s80, s64")
    a.label("L_k2_snext")
    a("s_cmp_ge_u32 s80, s68")
    a("s_cbranch_scc1 L_k2_exit")
    a("s_add_u32 s81, s67, s80")
    a("s_lshl_b32 s81, s81, 11")
    a("s_lshl_b32 s84, s38, 10")
    a("s_add_u32 s84, s84, s77")
    a("s_add_u32 s81, s81, s84")
    a(f"v_add_u32 {v(vOV)}, s81, {v(vJ8)}")
    a("s_lshl_b32 s81, s80, 8")
    a(f"s_add_u32 s81, s81, {OWN_L}")
    a(f"v_add_u32 {v(vOwn)}, s81, {v(vJ8)}")
    zero_acc()
    a("s_mov_b32 s85, 0")
    a(f"s_mul_i32 s90, s66, {COLD_BIN}")
    a(f"s_add_u32 s90, s90, {HOT_SIZE}")
    a("s_lshl_b32 s91, s66, 10")
    a.label("L_k2_sscan")
    a("s_cmp_ge_u32 s85, s72")
    a("s_cbranch_scc1 L_k2_sfin")
    a(f"v_add_u32 {v(vT)}, s85, v2")
    a(f"v_add_u32 {v(vT+1)}, s91, {v(vT)}")
    a(f"v_mul_u32_u24 {v(vT+1)}, {RECB}, {v(vT+1)}")
    a(f"v_mul_u32_u24 {v(vE)}, {RECB}, {v(vT)}")
    a(f"v_add_u32 {v(vE)}, s90, {v(vE)}")
    a(f"v_cmp_gt_u32 vcc, {HOTCAP}, {v(vT)}")
    a("s_nop 1")
    a(f"v_cndmask_b32 {v(vE)}, {v(vE)}, {v(vT+1)}, vcc")
    a(f"buffer_load_dword {v(vT+1)}, {v(vE)}, {s(REC,4)}, 0 offen")
    a("s_waitcnt vmcnt(0)")
    a(f"v_lshrrev_b32 {v(vT+1)}, 14, {v(vT+1)}")
    a(f"v_cmp_eq_u32 vcc, s80, {v(vT+1)}")
    a(f"v_cmp_gt_u32 s[86:87], s72, {v(vT)}")
    a("s_and_b64 s[86:87], s[86:87], vcc")
    a.label("L_k2_smatch")
    a("s_cmp_eq_u64 s[86:87], 0")
    a("s_cbranch_scc1 L_k2_sadv")
    a("s_ff1_i32_b64 s88, s[86:87]")
    a("s_bitset0_b64 s[86:87], s88")
    a(f"v_readlane_b32 s89, {v(vE)}, s88")
    a("s_nop 3")
    a(f"v_mov_b32 {v(vT)}, s89")
    RA = vRC[0]
    a(f"buffer_load_dwordx4 {v(RA,4)}, {v(vT)}, {s(REC,4)}, 0 offen")
    a(f"buffer_load_dword {v(RA+5)}, {v(vT)}, {s(REC,4)}, 0 offen offset:16")
    a("s_waitcnt vmcnt(0)")
    a(f"v_and_b32 {v(RA)}, 0x3fff, {v(RA)}")
    a(f"v_and_b32 {v(RA+4)}, 0xffff0000, {v(RA+3)}")
    a(f"v_lshlrev_b32 {v(RA+3)}, 16, {v(RA+3)}")
    a(f"v_lshlrev_b32 {v(RA+5)}, 16, {v(RA+5)}")
    issue_rows(vRaw[0], RA)
    a("s_waitcnt vmcnt(0)")
    a("s_cmp_eq_u32 s38, 0")
    a("s_cbranch_scc0 L_k2_sB")
    compute(0, vRaw[0], RA)
    a("s_branch L_k2_smatch")
    a.label("L_k2_sB")
    compute(1, vRaw[0], RA)
    a("s_branch L_k2_smatch")
    a.label("L_k2_sadv")
    a("s_add_u32 s85, s85, 64")
    a("s_branch L_k2_sscan")
    a.label("L_k2_sfin")
    own_residual("L_k2_own2")
    a("s_mov_b64 exec, 0xffff")
    finish_store()
    a("s_mov_b64 exec, -1")
    a("s_add_u32 s80, s80, 16")
    a("s_branch L_k2_snext")
    a.label("L_k2_exit")
    if opt.get('stamps'):
        a(f"s_cmp_ge_u32 s2, {K2_NWG}")
        a("s_cbranch_scc1 L_k2_exit2")
        stamp_end(a, opt, 1, 'k2')
        a.label("L_k2_exit2")
    a("s_endpgm")
```

```python
from asmlib import *
import k1
from k1 import load_kernargs, stamp_begin, st, stamp_end, P_SV, P_POS, P_SRC, P_DST, P_FRQ, P_W1, P_W2, P_WR, P_OUT, P_DBG, P_WS, N, E
from k1w import NCH, NTILE, NGEMM, ROWB, NROWS, SLICEB, TAB_OFF, SH_LDS, RING_LDS, NS, SLOTB, VX_LDS, K1_LDS
TAB_SIZE = 4 * SLICEB

EDG_DBG = 128
TBL_DBG = 192
KSA = [0, 2, 4, 6, 1, 3, 5, 7]
NST = 24
XLDS = VX_LDS
SYNC_LDS = XLDS + 2 * SLOTB
K1_LDS3 = SYNC_LDS + 64
def slot_addr(n):
    if n < 4: return RING_LDS + n * SLOTB
    if n < 6: return XLDS + (n - 4) * SLOTB
    if n < 8: return RING_LDS + (n - 6) * SLOTB
    if n < 16: return RING_LDS + ((n - 8) >> 1) * SLOTB + ((n - 8) & 1) * 8192
    return RING_LDS + ((n - 16) % 4) * SLOTB

def lsignal(a, idx, vt, v1_):
    a("s_mov_b64 exec, 1")
    a(f"v_mov_b32 {v(vt)}, {SYNC_LDS + 4*idx}")
    a(f"v_mov_b32 {v(v1_)}, 1")
    a(f"ds_add_u32 {v(vt)}, {v(v1_)}")
    a("s_mov_b64 exec, -1")
def lspin(a, idx, target, lbl, vt, v1_):
    a(f"v_mov_b32 {v(vt)}, {SYNC_LDS + 4*idx}")
    a.label(lbl)
    a(f"ds_read_b32 {v(v1_)}, {v(vt)}")
    a("s_waitcnt lgkmcnt(0)")
    a(f"v_readfirstlane_b32 s74, {v(v1_)}")
    a(f"s_cmp_ge_u32 s74, {target}")
    a(f"s_cbranch_scc0 {lbl}")

def l2_prefetch(a, opt, SV, widx_sgpr, nw, first_reg=64):
    a("s_lshr_b32 s72, s2, 3")
    a("s_mul_i32 s72, s72, 313")
    a("v_lshrrev_b32 v8, 4, v2")
    a("v_add_u32 v8, s72, v8")
    a("v_lshlrev_b32 v8, 11, v8")
    a("v_bfe_u32 v9, v2, 3, 1")
    a("v_lshl_add_u32 v8, v9, 9, v8")
    a("v_and_b32 v9, 7, v2")
    a("v_lshl_add_u32 v8, v9, 4, v8")
    a("s_and_b32 s72, s2, 1")
    a("s_lshl_b32 s72, s72, 10")
    a("s_bfe_u32 s73, s2, 0x20001")
    a("s_lshl_b32 s73, s73, 7")
    a("s_add_u32 s72, s72, s73")
    a("v_add_u32 v8, s72, v8")
    n = (79 + nw - 1) // nw
    for i in range(n):
        a(f"s_add_u32 s72, {widx_sgpr}, {nw*i}")
        if nw*(i+1) > 79:
            a("s_cmp_ge_u32 s72, 79")
            a(f"s_cbranch_scc1 L_l2pf_{first_reg}_{nw}")
        a("s_lshl_b32 s72, s72, 13")
        r = first_reg + 4*(i % 12)
        a(f"buffer_load_dwordx4 v[{r}:{r+3}], v8, {s(SV,4)}, s72 offen {opt.get('l2pf_flags','')}")
    a.label(f"L_l2pf_{first_reg}_{nw}")

def gemm_role(a, opt):
    SV, W1, W2, TAB = 40, 44, 48, 52
    tf = opt.get('tab_store_flags', '')
    l2f = opt.get('l2_store_flags', '')
    vf = opt.get('v_flags', 'nt')
    a.c("===== GEMM role (W v2) =====")
    a(f"s_sub_u32 s60, s2, {NCH}")
    if opt.get('xmap', '1') == '1':
        a("s_lshr_b32 s61, s60, 3")
        a("s_lshl_b32 s61, s61, 2")
        a("s_and_b32 s62, s60, 3")
        a("s_add_u32 s61, s61, s62")
        a("s_lshr_b32 s62, s60, 2")
        a("s_and_b32 s62, s62, 1")
        a("s_cmp_ge_u32 s60, 208")
        a("s_cselect_b32 s61, 104, s61")
        a("s_and_b32 s60, s60, 1")
        a("s_cselect_b32 s60, s60, s62") if False else None
        a(f"s_sub_u32 s63, s2, {NCH}")
        a("s_cmp_ge_u32 s63, 208")
        a("s_cselect_b32 s60, s60, s62")
    else:
        a("s_lshr_b32 s61, s60, 1")
        a("s_and_b32 s60, s60, 1")
    a("s_mul_i32 s57, s61, 96")
    a("v_lshrrev_b32 v1, 6, v0")
    a("v_and_b32 v2, 63, v0")
    a("s_lshl_b32 s63, s60, 8")
    a("s_waitcnt lgkmcnt(0)")
    a("v_readfirstlane_b32 s56, v1")
    srd(a, SV, P_SV, N * 2048)
    srd(a, TAB, P_WS, TAB_SIZE, TAB_OFF)
    a("v_mov_b32 v3, 0")
    a(f"v_mov_b32 v4, {SYNC_LDS}")
    a("v_mov_b32 v5, 0")
    a("ds_write_b64 v4, v[2:3]") if False else None
    a("v_mov_b32 v6, 0"); a("v_mov_b32 v7, 0"); a("v_mov_b32 v8, 0"); a("v_mov_b32 v9, 0")
    a("ds_write_b128 v4, v[6:9]")
    a("ds_write_b128 v4, v[6:9] offset:16")
    a("s_cmp_ge_u32 s56, 8")
    a("s_cbranch_scc1 L_copy_role")
    delay(a, opt.get('d_gemm'), "L_d_gemm")
    srd(a, W1, P_W1, 256 * 512)
    srd(a, W2, P_W2, 256 * 1536)
    a("s_and_b32 s58, s56, 3")
    a("s_lshr_b32 s59, s56, 2")
    R = Regs(3, 168)
    vW1 = R.alloc(2); vWA = R.alloc(2); vT1 = R.alloc(4); vTA = R.alloc(2)
    vB = R.alloc(4); vHW = R.alloc(1); vVX = R.alloc(1); vST = R.alloc(1)
    vT = R.alloc(4, 4)
    vX = R.alloc(12, 4)
    vA = [R.alloc(16, 4), R.alloc(16, 4)]
    vBf = [R.alloc(12, 4), R.alloc(12, 4)]
    vAcc = R.alloc(48, 4)
    vAcB = R.alloc(24, 4)
    vWB = vW1; vTB = vT1
    def acc1(rt, t): return vAcc + (rt * 3 + t) * 4
    def accA(rt, t): return vAcc + (rt * 3 + t) * 4
    def accB(u, t): return vAcB + (u * 3 + t) * 4
    vm = []
    def vm_after(tag):
        if tag not in vm: return 63
        idx = max(i for i, x in enumerate(vm) if x == tag)
        return len(vm) - 1 - idx
    T0, T1, T2, T3, T4, T5 = [vAcc + i for i in range(6)]

    a(f"v_lshrrev_b32 {v(T0)}, 5, v2")
    a(f"v_and_b32 {v(T1)}, 31, v2")
    a("s_mul_i32 s62, s56, 6")
    for i in range(6):
        a(f"s_add_u32 s64, s62, {i}")
        a("s_lshl_b32 s65, s64, 1")
        a(f"v_add_u32 {v(T2)}, s65, {v(T0)}")
        a(f"v_and_b32 {v(T3)}, 15, {v(T2)}")
        a(f"v_xor_b32 {v(T3)}, {v(T3)}, {v(T1)}")
        a(f"v_add_u32 {v(T2)}, s57, {v(T2)}")
        a(f"v_lshlrev_b32 {v(T2)}, 11, {v(T2)}")
        a(f"v_lshl_add_u32 {v(T2)}, {v(T3)}, 4, {v(T2)}")
        a("s_lshl_b32 s65, s64, 10")
        a("s_mov_b32 m0, s65")
        a("s_nop 0")
        a(f"buffer_load_dwordx4 {v(T2)}, {s(SV,4)}, 0 offen {opt.get('s_flags','')} lds")
        vm.append(('S', i))
    def fbits(dst, row, tmp):
        a(f"v_and_b32 {v(dst)}, 3, {v(row)}")
        a(f"v_bfe_u32 {v(tmp)}, {v(row)}, 3, 1")
        a(f"v_lshl_or_b32 {v(dst)}, {v(tmp)}, 2, {v(dst)}")
    a("s_lshl_b32 s62, s56, 2")
    for i in range(2):
        a(f"v_add_u32 {v(T2)}, s62, {v(T0)}")
        if i: a(f"v_add_u32 {v(T2)}, 2, {v(T2)}")
        fbits(T3, T2, T5)
        a(f"v_lshlrev_b32 {v(T3)}, 1, {v(T3)}")
        a(f"v_xor_b32 {v(T3)}, {v(T3)}, {v(T1)}")
        a(f"v_lshlrev_b32 {v(T4)}, 4, {v(T3)}")
        a(f"v_lshl_add_u32 {v(vW1+i)}, {v(T2)}, 9, {v(T4)}")
        if i: a(f"v_subrev_u32 {v(vW1+i)}, 1024, {v(vW1+i)}")
        a(f"v_mul_u32_u24 {v(vWA+i)}, 1536, {v(T2)}")
        a(f"v_lshrrev_b32 {v(T4)}, 4, {v(T3)}")
        a(f"v_lshl_add_u32 {v(vWA+i)}, {v(T4)}, 9, {v(vWA+i)}")
        a(f"v_and_b32 {v(T4)}, 15, {v(T3)}")
        a(f"v_lshl_add_u32 {v(vWA+i)}, {v(T4)}, 4, {v(vWA+i)}")
        a(f"v_add_u32 {v(vWA+i)}, s63, {v(vWA+i)}")
        if i: a(f"v_subrev_u32 {v(vWA+i)}, 1024, {v(vWA+i)}")
    a("s_lshl_b32 s65, s56, 11")
    a("s_lshl_b32 s66, s56, 10")
    def kind(n): return (0, 2, 1)[n // 8]
    def ks_of(n): return n & 7
    def issue_chunk(n):
        k = kind(n); ks = ks_of(n)
        slot = slot_addr(n)
        out = []
        if k < 2:
            out.append(f"s_add_u32 s67, s65, {slot}")
            out.append("s_mov_b32 m0, s67")
            out.append(f"s_mov_b32 s68, {ks * 16384 if k == 0 else ks * 49152}")
            for i in range(2):
                if k == 0:
                    out.append((f"buffer_load_dwordx4 {v(vW1+i)}, {s(W1,4)}, s68 offen offset:{i*1024} {opt.get('w_flags','')} lds", ('C', n)))
                else:
                    out.append((f"buffer_load_dwordx4 {v(vWA+i)}, {s(W2,4)}, s68 offen offset:{i*1024} {opt.get('w_flags','')} lds", ('C', n)))
        else:
            out.append(f"s_add_u32 s67, s66, {slot}")
            out.append("s_mov_b32 m0, s67")
            out.append(f"s_mov_b32 s68, {ks * 49152}")
            out.append((f"buffer_load_dwordx4 {v(vWB)}, {s(W2,4)}, s68 offen {opt.get('w_flags','')} lds", ('C', n)))
        return out
    def emit(x):
        if isinstance(x, tuple):
            a(x[0]); vm.append(x[1])
        elif callable(x):
            x()
        else:
            a(x)
    for n in range(6):
        for x in issue_chunk(n): emit(x)
    a("s_waitcnt lgkmcnt(0)")
    a("s_barrier")
    a(f"v_lshrrev_b32 {v(T0)}, 4, v2")
    a(f"v_bfe_u32 {v(T1)}, v2, 2, 2")
    a(f"v_and_b32 {v(T2)}, 3, v2")
    a(f"v_lshl_add_u32 {v(T3)}, {v(T0)}, 3, {v(T1)}")
    a(f"v_and_b32 {v(T4)}, 1, {v(T0)}")
    a(f"v_lshl_or_b32 {v(T4)}, {v(T4)}, 2, {v(T1)}")
    a("s_and_b32 s72, s58, 1")
    a("s_lshl_b32 s72, s72, 2")
    a(f"v_xor_b32 {v(T5)}, s72, {v(T4)}")
    a(f"v_lshlrev_b32 {v(T5)}, 5, {v(T5)}")
    a(f"v_lshl_add_u32 {v(T5)}, {v(T3)}, 9, {v(T5)}")
    a(f"v_lshl_add_u32 {v(T5)}, {v(T2)}, 3, {v(T5)}")
    a("s_lshr_b32 s72, s58, 1")
    a("s_lshl_b32 s72, s72, 8")
    a(f"s_add_u32 s72, s72, {RING_LDS}")
    a(f"v_add_u32 {v(T5)}, s72, {v(T5)}")
    for rt in range(4):
        a(f"v_xor_b32 {v(vT1+rt)}, {rt<<5}, {v(T5)}")
    a("s_lshl_b32 s72, s58, 1")
    a(f"v_xor_b32 {v(T5)}, s72, {v(T4)}")
    a(f"v_lshlrev_b32 {v(T5)}, 5, {v(T5)}")
    a(f"v_lshl_add_u32 {v(T5)}, {v(T2)}, 3, {v(T5)}")
    a(f"v_add_u32 {v(T5)}, {RING_LDS}, {v(T5)}")
    a(f"v_lshl_add_u32 {v(vTA)}, {v(T3)}, 9, {v(T5)}")
    a(f"v_xor_b32 {v(vTA+1)}, 32, {v(vTA)}")
    a(f"v_and_b32 {v(T1)}, 15, v2")
    a(f"v_and_b32 {v(T2)}, 3, v2")
    a(f"v_xor_b32 {v(T2)}, {v(T2)}, {v(T0)}")
    a(f"v_lshlrev_b32 {v(T2)}, 4, {v(T2)}")
    a(f"v_lshl_add_u32 {v(T2)}, {v(T1)}, 9, {v(T2)}")
    a(f"v_bfe_u32 {v(T3)}, v2, 2, 2")
    a(f"v_lshl_add_u32 {v(T2)}, {v(T3)}, 6, {v(T2)}")
    a(f"s_mul_i32 s72, s59, {48*512}")
    a(f"v_add_u32 {v(T2)}, s72, {v(T2)}")
    for j in range(4):
        a(f"v_xor_b32 {v(vB+j)}, {j<<6}, {v(T2)}")
    a(f"v_lshrrev_b32 {v(T3)}, 1, {v(T0)}")
    a("s_lshl_b32 s73, s58, 3")
    a(f"v_add_u32 {v(T3)}, s73, {v(T3)}")
    a(f"v_xor_b32 {v(T3)}, {v(T3)}, {v(T1)}")
    a(f"v_lshlrev_b32 {v(T3)}, 4, {v(T3)}")
    a(f"v_lshl_add_u32 {v(T3)}, {v(T1)}, 9, {v(T3)}")
    a(f"v_and_b32 {v(T4)}, 1, {v(T0)}")
    a(f"v_lshl_add_u32 {v(vHW)}, {v(T4)}, 3, {v(T3)}")
    a(f"v_add_u32 {v(vHW)}, s72, {v(vHW)}")
    a(f"v_lshrrev_b32 {v(T3)}, 1, {v(T0)}")
    a("s_lshl_b32 s73, s58, 2")
    a(f"v_add_u32 {v(T3)}, s73, {v(T3)}")
    a(f"v_xor_b32 {v(T3)}, {v(T3)}, {v(T1)}")
    a(f"v_lshlrev_b32 {v(T3)}, 4, {v(T3)}")
    a(f"v_lshl_add_u32 {v(T3)}, {v(T1)}, 8, {v(T3)}")
    a(f"v_lshl_add_u32 {v(vVX)}, {v(T4)}, 3, {v(T3)}")
    a(f"s_mul_i32 s73, s59, {48*256}")
    a(f"s_add_u32 s73, s73, {VX_LDS}")
    a(f"v_add_u32 {v(vVX)}, s73, {v(vVX)}")
    a("s_mul_i32 s69, s59, 48")
    a("s_add_u32 s69, s69, s57")
    a("s_lshl_b32 s71, s60, 1")
    a("s_lshr_b32 s70, s58, 1")
    a("s_add_u32 s71, s71, s70")
    a(f"s_mul_i32 s71, s71, {SLICEB}")
    a("s_and_b32 s70, s58, 1")
    a("s_lshl_b32 s70, s70, 7")
    a("s_add_u32 s71, s71, s70")
    a(f"v_and_b32 {v(T3)}, 7, v2")
    a(f"v_add_u32 {v(T3)}, s69, {v(T3)}")
    a(f"v_mul_u32_u24 {v(vST)}, {ROWB}, {v(T3)}")
    a(f"v_bfe_u32 {v(T3)}, v2, 3, 1")
    a(f"v_lshl_add_u32 {v(T3)}, {v(T3)}, 2, {v(T0)}")
    a(f"v_lshl_add_u32 {v(vST)}, {v(T3)}, 4, {v(vST)}")
    a(f"v_add_u32 {v(vST)}, s71, {v(vST)}")

    def passB_addr_dma():
        t0, t1, t2 = vT, vT+1, vT+2
        return [f"v_lshrrev_b32 {v(t0)}, 4, v2", f"v_add_u32 {v(t0)}, s62, {v(t0)}",
                f"v_and_b32 {v(t1)}, 3, {v(t0)}", f"v_bfe_u32 {v(t2)}, {v(t0)}, 3, 1", f"v_lshl_or_b32 {v(t1)}, {v(t2)}, 2, {v(t1)}",
                f"v_lshlrev_b32 {v(t1)}, 1, {v(t1)}", f"v_and_b32 {v(t2)}, 15, v2", f"v_xor_b32 {v(t1)}, {v(t1)}, {v(t2)}",
                f"v_mul_u32_u24 {v(vWB)}, 1536, {v(t0)}", f"v_lshl_add_u32 {v(vWB)}, {v(t1)}, 4, {v(vWB)}",
                f"v_add_u32 {v(vWB)}, s63, {v(vWB)}", f"v_add_u32 {v(vWB)}, 1024, {v(vWB)}"]
    def passB_addr_tr():
        t0, t1 = vT, vT+1
        return [f"v_lshrrev_b32 {v(t0)}, 4, v2", f"v_bfe_u32 {v(t1)}, v2, 2, 2", f"v_lshl_add_u32 {v(t0)}, {v(t0)}, 3, {v(t1)}",
                f"v_lshlrev_b32 {v(t0)}, 8, {v(t0)}", f"v_sub_u32 {v(vTB)}, {v(vTA)}, {v(t0)}", f"v_xor_b32 {v(vTB+1)}, 32, {v(vTB)}"]

    def tr_reads(n):
        k = kind(n); slot = slot_addr(n) - RING_LDS; buf = vA[n & 1]
        out = []
        if 4 <= n < 6:
            slot -= 65536
            if n == 4:
                for rt in range(4): out.append(f"v_add_u32 {v(vT1+rt)}, 0x10000, {v(vT1+rt)}")
        if n == 6:
            for rt in range(4): out.append(f"v_subrev_u32 {v(vT1+rt)}, 0x10000, {v(vT1+rt)}")
        if k == 0:
            for rt in range(4):
                out.append(f"ds_read_b64_tr_b16 {v(buf+rt*4,2)}, {v(vT1+rt)} offset:{slot}")
                out.append(f"ds_read_b64_tr_b16 {v(buf+rt*4+2,2)}, {v(vT1+rt)} offset:{slot+4*512}")
        elif k == 1:
            for p in range(2):
                for u in range(2):
                    rt = p*2+u
                    out.append(f"ds_read_b64_tr_b16 {v(buf+rt*4,2)}, {v(vTA+u)} offset:{slot+p*256}")
                    out.append(f"ds_read_b64_tr_b16 {v(buf+rt*4+2,2)}, {v(vTA+u)} offset:{slot+p*256+4*512}")
        else:
            for u in range(2):
                out.append(f"ds_read_b64_tr_b16 {v(buf+u*4,2)}, {v(vTB+u)} offset:{slot}")
                out.append(f"ds_read_b64_tr_b16 {v(buf+u*4+2,2)}, {v(vTB+u)} offset:{slot+4*256}")
        return out
    def bf_reads(n):
        ks = ks_of(n); buf = vBf[n & 1]
        return [f"ds_read_b128 {v(buf+4*t,4)}, {v(vB+(ks&3))} offset:{t*8192 + (ks>>2)*256}" for t in range(3)]

    def silu_pair(tiles):
        out = []
        TX = [vX, vX + 4]
        A = [acc1(rt, t) for rt, t in tiles]
        for i in range(2):
            for r in range(4): out.append(f"v_mul_f32 {v(TX[i]+r)}, 0xbfb8aa3b, {v(A[i]+r)}")
        for i in range(2):
            for r in range(4): out.append(f"v_exp_f32 {v(TX[i]+r)}, {v(TX[i]+r)}")
        for i in range(2):
            for r in range(4): out.append(f"v_add_f32 {v(TX[i]+r)}, 1.0, {v(TX[i]+r)}")
        for i in range(2):
            for r in range(4): out.append(f"v_rcp_f32 {v(TX[i]+r)}, {v(TX[i]+r)}")
        for i in range(2):
            for r in range(4): out.append(f"v_mul_f32 {v(TX[i]+r)}, {v(TX[i]+r)}, {v(A[i]+r)}")
        for i, (rt, t) in enumerate(tiles):
            P = vX + 8 + 2*i
            out.append(f"v_cvt_pk_bf16_f32 {v(P)}, {v(TX[i])}, {v(TX[i]+1)}")
            out.append(f"v_cvt_pk_bf16_f32 {v(P+1)}, {v(TX[i]+2)}, {v(TX[i]+3)}")
            out.append(f"v_xor_b32 {v(vT+i)}, {rt<<5}, {v(vHW)}")
            out.append(f"ds_write_b64 {v(vT+i)}, {v(P,2)} offset:{t*8192}")
        return out
    def silu_half(rts):
        tl = [(rt, t) for rt in rts for t in range(3)]
        out = []
        for i in range(0, 6, 2): out.append(silu_pair(tl[i:i+2]))
        return out

    def dpp_swap_store(X0, X1, TM, line, t):
        out = []
        for r in range(4):
            out.append(f"v_mov_b32_dpp {v(TM+r)}, {v(X0+r)} row_ror:8 row_mask:0xf bank_mask:0xf")
        for r in range(4):
            out.append(f"v_mov_b32_dpp {v(X0+r)}, {v(X1+r)} row_ror:8 row_mask:0xf bank_mask:0xc")
        for r in range(4):
            out.append(f"v_mov_b32_dpp {v(X1+r)}, {v(TM+r)} quad_perm:[0,1,2,3] row_mask:0xf bank_mask:0x3")
        out.append(f"s_mov_b32 s72, {t*16*ROWB}")
        if not opt.get('exp_nostore'):
            out.append((f"buffer_store_dwordx4 {v(X0,4)}, {v(vST)}, {s(TAB,4)}, s72 offen offset:{line*128} {tf}", ('ST', line, t, 0)))
            out.append((f"buffer_store_dwordx4 {v(X1,4)}, {v(vST)}, {s(TAB,4)}, s72 offen offset:{line*128 + 8*ROWB} {tf}", ('ST', line, t, 1)))
        return out
    X0, X1, TM = vX, vX + 4, vX + 8
    def line0_epi(t):
        out = []
        for u, X in ((0, X0), (1, X1)):
            S_ = accA(0*2+u, t); V_ = accA(1*2+u, t)
            out.append(f"v_cvt_pk_bf16_f32 {v(X)}, {v(S_)}, {v(S_+1)}")
            out.append(f"v_cvt_pk_bf16_f32 {v(X+1)}, {v(S_+2)}, {v(S_+3)}")
            out.append(f"v_cvt_pk_bf16_f32 {v(X+2)}, {v(V_)}, {v(V_+1)}")
            out.append(f"v_cvt_pk_bf16_f32 {v(X+3)}, {v(V_+2)}, {v(V_+3)}")
        out.append("s_nop 1")
        out += dpp_swap_store(X0, X1, TM, 0, t)
        out.append("s_nop 1")
        return out
    def s_epi(t):
        out = []
        for u in range(2):
            Rr = accB(u, t)
            out.append(f"v_cvt_pk_bf16_f32 {v(X0+2*u)}, {v(Rr)}, {v(Rr+1)}")
            out.append(f"v_cvt_pk_bf16_f32 {v(X0+2*u+1)}, {v(Rr+2)}, {v(Rr+3)}")
        out.append(f"v_xor_b32 {v(vT)}, 32, {v(vVX)}")
        out.append(f"ds_write_b64 {v(vVX)}, {v(X0,2)} offset:{t*16*256}")
        out.append(f"ds_write_b64 {v(vT)}, {v(X0+2,2)} offset:{t*16*256}")
        return out

    a(f"s_waitcnt vmcnt({vm_after(('C',5))})")
    st(a, opt, 0)
    lsignal(a, 0, vT, vT+1)
    lspin(a, 0, 8, "L_g_sp1", vT, vT+1)
    for x in tr_reads(0): a(x)
    for x in bf_reads(0): a(x)

    extra = {n: [] for n in range(NST)}
    def g_vx(i):
        def f():
            t0, t1, t2 = vT, vT+1, vT+2
            a("s_mul_i32 s72, s56, 12")
            a(f"s_add_u32 s72, s72, {4*i}")
            a(f"v_lshrrev_b32 {v(t0)}, 4, v2")
            a(f"v_add_u32 {v(t0)}, s72, {v(t0)}")
            a(f"v_and_b32 {v(t1)}, 15, {v(t0)}")
            a(f"v_and_b32 {v(t2)}, 15, v2")
            a(f"v_xor_b32 {v(t1)}, {v(t1)}, {v(t2)}")
            a(f"v_add_u32 {v(t0)}, s57, {v(t0)}")
            a(f"v_lshlrev_b32 {v(t0)}, 11, {v(t0)}")
            a(f"v_lshl_add_u32 {v(t0)}, {v(t1)}, 4, {v(t0)}")
            a(f"v_add_u32 {v(t0)}, s63, {v(t0)}")
            a(f"v_add_u32 {v(t0)}, 512, {v(t0)}")
            a("s_lshl_b32 s72, s72, 8")
            a(f"s_add_u32 s72, s72, {VX_LDS}")
            a("s_mov_b32 m0, s72")
            a("s_nop 0")
            a(f"buffer_load_dwordx4 {v(t0)}, {s(SV,4)}, 0 offen lds"); vm.append(('VX', i))
        return f
    for t in range(3): extra[16 + t] += s_epi(t)
    BARS = []

    for n in range(NST):
        k = kind(n); buf = vA[n & 1]; bb = vBf[n & 1]
        first = (n & 7) == 0
        a.c(f"--- step {n} (ks {ks_of(n)})")
        a("s_waitcnt lgkmcnt(0)")
        if n == 0: st(a, opt, 1)
        if n == 8: st(a, opt, 3)
        if n == 16: st(a, opt, 4)
        mf = []
        nrt = 4 if k < 2 else 2
        for rt in range(nrt):
            for t in range(3):
                A = acc1(rt, t) if k == 0 else (accA(rt, t) if k == 1 else accB(rt, t))
                cc = "0" if first else v(A, 4)
                mf.append(f"v_mfma_f32_16x16x32_bf16 {v(A,4)}, {v(buf+rt*4,4)}, {v(bb+4*t,4)}, {cc}")
        npre = 2 if k < 2 else 1
        for m in mf[:npre]: a(m)
        side = []
        if n < 7:
            if n == 1: lsignal(a, 1, vT, vT+1)
            if n == 2:
                lspin(a, 1, 8, "L_g_sp2", vT, vT+1)
                for x in issue_chunk(6) + issue_chunk(7): emit(x)
                lsignal(a, 4, vT, vT+1)
            if n == 4:
                a(f"s_waitcnt vmcnt({vm_after(('C', 7))})")
                lsignal(a, 2, vT, vT+1)
            if n == 5: lspin(a, 2, 8, "L_g_sp3", vT, vT+1)
            side = tr_reads(n + 1) + bf_reads(n + 1) + side
        elif n == 7:
            lsignal(a, 3, vT, vT+1)
        elif n < 15:
            if n in (9, 11, 13):
                a("s_barrier"); BARS.append(n)
            side = tr_reads(n + 1) + bf_reads(n + 1) + side
        elif n + 1 < NST:
            a("s_barrier"); BARS.append(n)
            side += tr_reads(n + 1)
            side += bf_reads(n + 1)
        side += extra[n]
        rest = mf[npre:]
        kk = 0
        nper = (len(side) + len(rest) - 1) // len(rest)
        for m in rest:
            a(m)
            for x in side[kk:kk+nper]: emit(x)
            kk += nper
        for x in side[kk:]: emit(x)
        if n == 7:
            lspin(a, 3, 8, "L_g_sp4", vT, vT+1)
            for x in passB_addr_tr(): a(x)
            st(a, opt, 2)
            for grp in silu_half((0, 1)) + silu_half((2, 3)):
                for x in grp: a(x)
            a("s_waitcnt lgkmcnt(0)")
            a("s_barrier")
            for x in tr_reads(8): a(x)
            for x in bf_reads(8): a(x)
    a("s_nop 7"); a("s_nop 1")
    st(a, opt, 5)
    for t in range(3):
        for x in line0_epi(t): emit(x)
    if opt.get('fused'):
        a("s_waitcnt vmcnt(0)")
        if opt.get('stamps'): a("s_memrealtime s[14:15]")
        a("s_barrier")
        a("s_cmp_eq_u32 s56, 0")
        a("s_cbranch_scc0 L_phaseB")
        if opt.get('wbl2'):
            a("buffer_wbl2 sc1")
            a("s_waitcnt vmcnt(0)")
            if opt.get('stamps'): a("s_memrealtime s[12:13]")
        a("s_mov_b64 exec, 1")
        a("v_mov_b32 v3, 1")
        a(f"v_mov_b32 v4, {TBL_DBG}")
        a(f"global_atomic_add v4, v3, s[{P_DBG}:{P_DBG+1}]")
        a("s_mov_b64 exec, -1")
        a("s_branch L_phaseB")
    else:
        stamp_end(a, opt, 0, 'g')
        a("s_endpgm")

    a.label("L_copy_role")
    srd(a, W2, P_W2, 256 * 1536)
    a("s_cmp_ge_u32 s56, 10")
    a("s_cbranch_scc1 L_copier")
    a("s_sub_u32 s58, s56, 8")
    vLB, vLA, vLX = 8, 12, 20
    t0, t1, t2, t3 = 3, 4, 5, 6
    def fb(dst, row, tmp):
        a(f"v_and_b32 {v(dst)}, 3, {v(row)}")
        a(f"v_bfe_u32 {v(tmp)}, {v(row)}, 3, 1")
        a(f"v_lshl_or_b32 {v(dst)}, {v(tmp)}, 2, {v(dst)}")
    for i in range(4):
        a("s_lshl_b32 s72, s58, 4")
        a(f"s_add_u32 s72, s72, {4*i}")
        a(f"v_lshrrev_b32 {v(t0)}, 4, v2")
        a(f"v_add_u32 {v(t0)}, s72, {v(t0)}")
        fb(t1, t0, t2)
        a(f"v_lshlrev_b32 {v(t1)}, 1, {v(t1)}")
        a(f"v_and_b32 {v(t2)}, 15, v2")
        a(f"v_xor_b32 {v(t1)}, {v(t1)}, {v(t2)}")
        a(f"v_mul_u32_u24 {v(vLB+i)}, 1536, {v(t0)}")
        a(f"v_lshl_add_u32 {v(vLB+i)}, {v(t1)}, 4, {v(vLB+i)}")
        a(f"v_add_u32 {v(vLB+i)}, s63, {v(vLB+i)}")
    for i in range(8):
        a("s_lshl_b32 s72, s58, 4")
        a(f"s_add_u32 s72, s72, {2*i}")
        a(f"v_lshrrev_b32 {v(t0)}, 5, v2")
        a(f"v_add_u32 {v(t0)}, s72, {v(t0)}")
        fb(t1, t0, t2)
        a(f"v_lshlrev_b32 {v(t1)}, 1, {v(t1)}")
        a(f"v_and_b32 {v(t2)}, 31, v2")
        a(f"v_xor_b32 {v(t1)}, {v(t1)}, {v(t2)}")
        a(f"v_mul_u32_u24 {v(vLA+i)}, 1536, {v(t0)}")
        a(f"v_lshrrev_b32 {v(t2)}, 4, {v(t1)}")
        a(f"v_add_u32 {v(t2)}, 1, {v(t2)}")
        a(f"v_lshl_add_u32 {v(vLA+i)}, {v(t2)}, 9, {v(vLA+i)}")
        a(f"v_and_b32 {v(t2)}, 15, {v(t1)}")
        a(f"v_lshl_add_u32 {v(vLA+i)}, {v(t2)}, 4, {v(vLA+i)}")
        a(f"v_add_u32 {v(vLA+i)}, s63, {v(vLA+i)}")
    a("s_lshl_b32 s65, s58, 12")
    a("s_lshl_b32 s66, s58, 13")
    a("s_mul_i32 s67, s58, 12288")
    vl = []
    def vl_after(tag):
        idx = max(i for i, x in enumerate(vl) if x == tag)
        return len(vl) - 1 - idx
    def l_chunk(n):
        ks = n & 7
        a(f"s_mov_b32 s68, {ks * 49152}")
        if n < 16:
            for i in range(4):
                a(f"s_add_u32 s72, s65, {slot_addr(n) + i*1024}")
                a("s_mov_b32 m0, s72")
                a("s_nop 0")
                a(f"buffer_load_dwordx4 {v(vLB+i)}, {s(W2,4)}, s68 offen lds"); vl.append(('C', n))
        else:
            for i in range(8):
                a(f"s_add_u32 s72, s66, {slot_addr(n) + i*1024}")
                a("s_mov_b32 m0, s72")
                a("s_nop 0")
                a(f"buffer_load_dwordx4 {v(vLA+i)}, {s(W2,4)}, s68 offen lds"); vl.append(('C', n))
    a("s_waitcnt lgkmcnt(0)")
    a("s_barrier")
    lspin(a, 3, 8, "L_l_sp4", t0, t1)
    for n in range(8, 16): l_chunk(n)
    a("s_waitcnt vmcnt(0)")
    a("s_barrier")
    for n in BARS:
        if n >= 15:
            a(f"s_waitcnt vmcnt({vl_after(('C', n + 1))})")
        a("s_barrier")
        if n in (9, 11, 13): l_chunk(16 + (n - 9) // 2)
        elif n == 15: l_chunk(19)
        elif n + 4 < NST: l_chunk(n + 4)
    stamp_end(a, opt, 0, 'l')
    a("s_endpgm")
    a.label("L_copier")
    a("s_sub_u32 s58, s56, 10")
    vN, vL, vG = 3, 4, 5
    a("v_lshrrev_b32 v6, 3, v2")
    a("s_mul_i32 s73, s58, 48")
    a(f"v_add_u32 {v(vN)}, s73, v6")
    a("v_and_b32 v7, 7, v2")
    a(f"v_add_u32 {v(vG)}, s57, {v(vN)}")
    a(f"v_mul_u32_u24 {v(vG)}, {ROWB}, {v(vG)}")
    a(f"v_lshl_add_u32 {v(vG)}, v7, 4, {v(vG)}")
    a("s_lshl_b32 s71, s60, 1")
    a(f"s_mul_i32 s71, s71, {SLICEB}")
    a(f"v_add_u32 {v(vG)}, s71, {v(vG)}")
    a("s_waitcnt lgkmcnt(0)")
    a("s_barrier")
    when = opt.get('l2pf', 'c5')
    if when == 'c5': lspin(a, 4, 8, "L_c_sp", 10, 11)
    if when == 'c4': lspin(a, 3, 8, "L_c_sp", 10, 11)
    if when != '0': l2_prefetch(a, opt, SV, "s58", 2)
    a("s_barrier")
    for n in BARS:
        a("s_barrier")
        if n in (19, 20, 21):
            us = range(4*(n-19), 4*(n-19)+4)
            for i in us:
                kl, oc = i & 1, i >> 1
                a(f"v_add_u32 v8, {8*oc}, {v(vN)}")
                a("v_and_b32 v9, 15, v8")
                a(f"v_add_u32 v10, {8*kl}, v7")
                a("v_xor_b32 v9, v9, v10")
                a("v_lshlrev_b32 v9, 4, v9")
                a("v_lshl_add_u32 v9, v8, 8, v9")
                a(f"v_add_u32 v9, {VX_LDS}, v9")
                a(f"ds_read_b128 v[{16+4*i}:{19+4*i}], v9")
            for k, i in enumerate(us):
                kl, oc = i & 1, i >> 1
                a(f"s_waitcnt lgkmcnt({3-k})")
                a(f"s_mov_b32 s72, {kl*SLICEB + oc*8*ROWB}")
                a(f"buffer_store_dwordx4 v[{16+4*i}:{19+4*i}], {v(vG)}, {s(TAB,4)}, s72 offen offset:256 {l2f}")
    stamp_end(a, opt, 0, 'c')
    a("s_endpgm")
```

```python
from asmlib import *
from k1 import *

BINC_LDS = 0
BASE_LDS = 256
LCNT_LDS = 512
LIST_LDS = 1024
POS_LDS = 33792

def rnd2(a, x, y, t):
    a(f"v_cvt_pk_bf16_f32 {v(t)}, {v(x)}, {v(y)}")
    a(f"v_lshlrev_b32 {v(x)}, 16, {v(t)}")
    a(f"v_and_b32 {v(y)}, 0xffff0000, {v(t)}")
def rnd1(a, x, t):
    a(f"v_cvt_pk_bf16_f32 {v(t)}, {v(x)}, {v(x)}")
    a(f"v_lshlrev_b32 {v(x)}, 16, {v(t)}")

def pos_addr(a, dst_addr, dst_sh, node):
    a(f"v_mul_u32_u24 {v(dst_addr)}, 6, {v(node)}")
    a(f"v_and_b32 {v(dst_addr)}, -4, {v(dst_addr)}")
    a(f"v_add_u32 {v(dst_addr)}, {POS_LDS}, {v(dst_addr)}")
    a(f"v_and_b32 {v(dst_sh)}, 1, {v(node)}")
    a(f"v_lshlrev_b32 {v(dst_sh)}, 4, {v(dst_sh)}")

def pos_unpack(a, d0, d1, sh, x, y, z):
    a(f"v_alignbit_b32 {v(d0)}, {v(d1)}, {v(d0)}, {v(sh)}")
    a(f"v_lshrrev_b32 {v(d1)}, {v(sh)}, {v(d1)}")
    a(f"v_lshlrev_b32 {v(x)}, 16, {v(d0)}")
    a(f"v_and_b32 {v(y)}, 0xffff0000, {v(d0)}")
    a(f"v_lshlrev_b32 {v(z)}, 16, {v(d1)}")

def dist(a, p, q, r, d, t):
    for i in range(3):
        a(f"v_sub_f32 {v(r+i)}, {v(p+i)}, {v(q+i)}")
    rnd2(a, r, r+1, t); rnd1(a, r+2, t)
    for i in range(3):
        a(f"v_mul_f32 {v(t+1+i)}, {v(r+i)}, {v(r+i)}")
    rnd2(a, t+1, t+2, t); rnd1(a, t+3, t)
    a(f"v_add_f32 {v(d)}, {v(t+1)}, {v(t+2)}")
    a(f"v_add_f32 {v(d)}, {v(d)}, {v(t+3)}")
    rnd1(a, d, t)
    a(f"v_add_f32 {v(d)}, 0x322bcc77, {v(d)}")
    rnd1(a, d, t)
    a(f"v_sqrt_f32 {v(d)}, {v(d)}")
    a("s_nop 0")
    rnd1(a, d, t)

def edge_role(a, opt):
    SPOS, SSRC, SDST, SDBG, SCNT, SREC = 40, 44, 48, 52, 56, 60
    sW = 64; sF = 66
    a.c("===== EDGE role =====")
    delay(a, opt.get('d_edge'), "L_d_edge")
    a("v_lshrrev_b32 v1, 6, v0")
    a("v_and_b32 v2, 63, v0")
    a("s_waitcnt lgkmcnt(0)")
    a("v_readfirstlane_b32 s64, v1")
    a(f"s_load_dwordx2 s[66:67], s[{P_FRQ}:{P_FRQ+1}], 0")
    srd(a, SPOS, P_POS, N * 6)
    srd(a, SSRC, P_SRC, E * 4)
    srd(a, SDST, P_DST, E * 4)
    srd(a, SDBG, P_DBG, 256)
    srd(a, SCNT, P_WS, CNT_SIZE, CNT_OFF)
    srd(a, SREC, P_WS, REC_SIZE, REC_OFF)
    a(f"s_mul_i32 s65, s2, {CHUNK*4}")
    a("v_lshlrev_b32 v3, 5, v0")
    a("v_add_u32 v3, s65, v3")
    vS, vD = 8, 16
    a("v_cmp_gt_u32 vcc, 500, v0")
    a("s_and_saveexec_b64 s[72:73], vcc")
    a("s_cbranch_execz L_e_noload")
    a(f"buffer_load_dwordx4 v[8:11], v3, {s(SSRC,4)}, 0 offen {opt.get('e_flags','')}")
    a(f"buffer_load_dwordx4 v[12:15], v3, {s(SSRC,4)}, 0 offen offset:16 {opt.get('e_flags','')}")
    a(f"buffer_load_dwordx4 v[16:19], v3, {s(SDST,4)}, 0 offen {opt.get('e_flags','')}")
    a(f"buffer_load_dwordx4 v[20:23], v3, {s(SDST,4)}, 0 offen offset:16 {opt.get('e_flags','')}")
    a.label("L_e_noload")
    a("s_mov_b64 exec, s[72:73]")
    a("v_lshlrev_b32 v4, 4, v2")
    a("s_cmp_ge_u32 s64, 8")
    a("s_cbranch_scc1 L_e_pf")
    for i in range(8):
        a(f"s_lshl_b32 s65, s64, 13")
        a(f"s_add_u32 s65, s65, {i*1024}")
        a(f"s_add_u32 s78, s65, {POS_LDS}")
        a("s_mov_b32 m0, s78")
        a("s_nop 0")
        a(f"buffer_load_dwordx4 v4, {s(SPOS,4)}, s65 offen {opt.get('e_flags','')} lds")
    a("s_branch L_e_nopos")
    a.label("L_e_pf")
    if opt.get('csplit') and opt.get('l2pf', 'c5') != '0':
        import k1c
        srd(a, 80, P_SV, N * 2048)
        a("s_sub_u32 s79, s64, 8")
        k1c.l2_prefetch(a, opt, 80, "s79", 4, first_reg=112)
    a.label("L_e_nopos")
    a("s_cmp_eq_u32 s64, 0")
    a("s_cbranch_scc0 L_e_nozero")
    a("v_mov_b32 v5, 0")
    a("v_lshlrev_b32 v6, 2, v2")
    a(f"ds_write_b32 v6, v5 offset:{BINC_LDS}")
    a(f"v_mov_b32 v6, {LCNT_LDS}")
    a("ds_write_b32 v6, v5")
    a.label("L_e_nozero")
    a("s_waitcnt vmcnt(0) lgkmcnt(0)")
    a("s_lshl_b32 s68, s66, 16")
    a("s_and_b32 s69, s66, 0xffff0000")
    a("s_lshl_b32 s70, s67, 16")
    a("s_and_b32 s71, s67, 0xffff0000")
    st(a, opt, 0)
    a("s_waitcnt lgkmcnt(0)")
    a("s_barrier")
    a("v_cmp_gt_u32 vcc, 500, v0")
    a("s_and_saveexec_b64 s[72:73], vcc")
    a("s_cbranch_execz L_e_pass1_done")
    vPA = 24
    vSH = 40
    vRAW = 56
    for e in range(8):
        pos_addr(a, vPA+2*e, vSH+2*e, vS+e)
        pos_addr(a, vPA+2*e+1, vSH+2*e+1, vD+e)
    for e in range(8):
        a(f"ds_read2_b32 {v(vRAW+4*e,2)}, {v(vPA+2*e)} offset0:0 offset1:1")
        a(f"ds_read2_b32 {v(vRAW+4*e+2,2)}, {v(vPA+2*e+1)} offset0:0 offset1:1")
    P, Q, Rr, Dd, T = 88, 91, 94, 97, 98
    vOne = 103; vBin = 104; vRank = 105; vLp = 106; vKey = 108
    a(f"v_mov_b32 {v(vOne)}, 1")
    for e in range(8):
        a(f"s_waitcnt lgkmcnt({min(15, 2*(7-e))})")
        pos_unpack(a, vRAW+4*e, vRAW+4*e+1, vSH+2*e, P, P+1, P+2)
        pos_unpack(a, vRAW+4*e+2, vRAW+4*e+3, vSH+2*e+1, Q, Q+1, Q+2)
        dist(a, P, Q, Rr, Dd, T)
        a(f"v_cmp_gt_f32 vcc, 0x40a00000, {v(Dd)}")
        a("s_and_saveexec_b64 s[74:75], vcc")
        a(f"s_cbranch_execz L_e_na{e}")
        a(f"v_mul_u32_u24 {v(vBin)}, {BMAGIC}, {v(vD+e)}")
        a(f"v_lshrrev_b32 {v(vBin)}, {BSHIFT}, {v(vBin)}")
        a(f"v_lshlrev_b32 {v(vLp)}, 2, {v(vBin)}")
        a(f"ds_add_rtn_u32 {v(vRank)}, {v(vLp)}, {v(vOne)} offset:{BINC_LDS}")
        a(f"v_mov_b32 {v(vLp)}, {LCNT_LDS}")
        a(f"ds_add_rtn_u32 {v(vLp)}, {v(vLp)}, {v(vOne)}")
        a(f"v_lshl_or_b32 {v(vKey)}, {v(vD+e)}, 14, {v(vS+e)}")
        a("s_waitcnt lgkmcnt(0)")
        a(f"v_mov_b32 {v(vKey+1)}, {v(vRank)}")
        a(f"v_lshlrev_b32 {v(vLp)}, 3, {v(vLp)}")
        a(f"ds_write_b64 {v(vLp)}, {v(vKey,2)} offset:{LIST_LDS}")
        a.label(f"L_e_na{e}")
        a("s_mov_b64 exec, s[74:75]")
    a.label("L_e_pass1_done")
    a("s_mov_b64 exec, s[72:73]")
    st(a, opt, 1)
    a("s_waitcnt lgkmcnt(0)")
    a("s_barrier")
    vCnt = 24; vOld = 25; vOff = 26
    a("s_cmp_eq_u32 s64, 0")
    a("s_cbranch_scc0 L_e_noatom")
    a(f"v_lshlrev_b32 {v(vOff)}, 2, v2")
    a(f"ds_read_b32 {v(vCnt)}, {v(vOff)} offset:{BINC_LDS}")
    a("s_waitcnt lgkmcnt(0)")
    a(f"v_mov_b32 {v(vOld)}, {v(vCnt)}")
    a(f"buffer_atomic_add {v(vOld)}, {v(vOff)}, {s(SDBG,4)}, 0 offen sc0")
    a(f"s_lshl_b32 s65, s2, 8")
    a(f"buffer_store_dword {v(vCnt)}, {v(vOff)}, {s(SCNT,4)}, s65 offen")
    a.label("L_e_noatom")
    a(f"v_mov_b32 v28, {LCNT_LDS}")
    a("ds_read_b32 v28, v28")
    a("s_waitcnt lgkmcnt(0)")
    a("v_readfirstlane_b32 s76, v28")
    a("v_mov_b32 v29, v0")
    a("s_mov_b32 s79, 0")
    a("s_mov_b32 s77, 0")
    a.label("L_e_loop")
    a("v_cmp_gt_u32 vcc, s76, v29")
    a("s_and_saveexec_b64 s[72:73], vcc")
    a("s_cbranch_execz L_e_geo_done")
    vE = 30
    a("v_lshlrev_b32 v32, 3, v29")
    a(f"ds_read_b64 v[30:31], v32 offset:{LIST_LDS}")
    a("s_waitcnt lgkmcnt(0)")
    vSrc, vDst = 33, 34
    a(f"v_and_b32 {v(vSrc)}, 0x3fff, v30")
    a(f"v_lshrrev_b32 {v(vDst)}, 14, v30")
    pos_addr(a, 36, 38, vSrc)
    pos_addr(a, 37, 39, vDst)
    a("ds_read2_b32 v[40:41], v36 offset0:0 offset1:1")
    a("ds_read2_b32 v[42:43], v37 offset0:0 offset1:1")
    a(f"v_mul_u32_u24 {v(vBin)}, {BMAGIC}, {v(vDst)}")
    a(f"v_lshrrev_b32 {v(vBin)}, {BSHIFT}, {v(vBin)}")
    a("s_waitcnt lgkmcnt(0)")
    pos_unpack(a, 40, 41, 38, P, P+1, P+2)
    pos_unpack(a, 42, 43, 39, Q, Q+1, Q+2)
    dist(a, P, Q, Rr, Dd, T)
    vInv = 44; vG = 46; vFc = 45
    a(f"v_rcp_f32 {v(vInv)}, {v(Dd)}")
    for k in range(4):
        a(f"v_mul_f32 {v(vG+k)}, s{68+k}, {v(Dd)}")
    rnd2(a, vG, vG+1, T); rnd2(a, vG+2, vG+3, T)
    for k in range(4):
        a(f"v_mul_f32 {v(vG+k)}, 0.15915494, {v(vG+k)}")
    for k in range(4):
        a(f"v_sin_f32 {v(vG+k)}, {v(vG+k)}")
    a(f"v_mul_f32 {v(vFc)}, 0x40490fdb, {v(Dd)}")
    rnd2(a, vG, vG+1, T); rnd2(a, vG+2, vG+3, T)
    rnd1(a, vFc, T)
    a(f"v_mul_f32 {v(vFc)}, 0x3e4ccccd, {v(vFc)}")
    rnd1(a, vFc, T)
    a(f"v_mul_f32 {v(vFc)}, 0.15915494, {v(vFc)}")
    a(f"v_cos_f32 {v(vFc)}, {v(vFc)}")
    for k in range(4):
        a(f"v_mul_f32 {v(vG+k)}, {v(vG+k)}, {v(vInv)}")
    rnd1(a, vFc, T)
    rnd2(a, vG, vG+1, T); rnd2(a, vG+2, vG+3, T)
    a(f"v_add_f32 {v(vFc)}, 1.0, {v(vFc)}")
    rnd1(a, vFc, T)
    a(f"v_mul_f32 {v(vFc)}, 0.5, {v(vFc)}")
    for i in range(3):
        a(f"v_mul_f32 {v(Rr+i)}, {v(Rr+i)}, {v(vInv)}")
    for k in range(4):
        a(f"v_mul_f32 {v(vG+k)}, {v(vG+k)}, {v(vFc)}")
    a(f"v_cvt_pk_bf16_f32 v53, {v(vG)}, {v(vG+1)}")
    a(f"v_cvt_pk_bf16_f32 v54, {v(vG+2)}, {v(vG+3)}")
    a(f"v_cvt_pk_bf16_f32 v55, {v(Rr)}, {v(Rr+1)}")
    a(f"v_cvt_pk_bf16_f32 v56, {v(Rr+2)}, {v(Rr+2)}")
    a(f"v_mul_u32_u24 v57, {BINW}, {v(vBin)}")
    a(f"v_sub_u32 v57, {v(vDst)}, v57")
    a(f"v_lshl_or_b32 v52, v57, 14, {v(vSrc)}")
    a.label("L_e_geo_done")
    a("s_mov_b64 exec, s[72:73]")
    a("s_cmp_eq_u32 s77, 0")
    a("s_cbranch_scc0 L_e_store")
    a("s_mov_b32 s77, 1")
    a("s_cmp_eq_u32 s64, 0")
    a("s_cbranch_scc0 L_e_nobase")
    a("s_waitcnt vmcnt(0)")
    a(f"ds_write_b32 {v(vOff)}, {v(vOld)} offset:{BASE_LDS}")
    a.label("L_e_nobase")
    st(a, opt, 2)
    a("s_waitcnt lgkmcnt(0)")
    a("s_barrier")
    st(a, opt, 3)
    a("s_waitcnt lgkmcnt(0)")
    a.label("L_e_store")
    a("v_cmp_gt_u32 vcc, s76, v29")
    a("s_and_saveexec_b64 s[72:73], vcc")
    a("s_cbranch_execz L_e_st_done")
    a(f"v_lshlrev_b32 v58, 2, {v(vBin)}")
    a(f"ds_read_b32 v58, v58 offset:{BASE_LDS}")
    a("s_waitcnt lgkmcnt(0)")
    a("v_add_u32 v58, v58, v31")
    a(f"v_lshl_add_u32 v59, {v(vBin)}, 10, v58")
    a(f"v_mul_u32_u24 v59, {RECB}, v59")
    a(f"s_mov_b32 s78, {COLD_BIN}")
    a(f"v_mul_lo_u32 v60, {v(vBin)}, s78")
    a(f"v_mul_u32_u24 v61, {RECB}, v58")
    a(f"v_add_u32 v60, v60, v61")
    a(f"v_add_u32 v60, {HOT_SIZE}, v60")
    a(f"v_cmp_gt_u32 vcc, {HOTCAP}, v58")
    a("s_nop 1")
    a("v_cndmask_b32 v59, v60, v59, vcc")
    a(f"buffer_store_dwordx4 v[52:55], v59, {s(SREC,4)}, 0 offen {opt.get('rec_flags','')}")
    a(f"buffer_store_dword v56, v59, {s(SREC,4)}, 0 offen offset:16 {opt.get('rec_flags','')}")
    a.label("L_e_st_done")
    a("s_mov_b64 exec, s[72:73]")
    blk = opt.get('k1blk', 512)
    a(f"v_add_u32 v29, {blk}, v29")
    a(f"s_add_u32 s79, s79, {blk}")
    a("s_cmp_lt_u32 s79, s76")
    a("s_cbranch_scc1 L_e_loop")
    if opt.get('fused'):
        a("s_waitcnt vmcnt(0)")
        a("s_barrier")
        a("s_cmp_eq_u32 s64, 0")
        a("s_cbranch_scc0 L_phaseB")
        a("s_mov_b64 exec, 1")
        a("v_mov_b32 v3, 1")
        a("v_mov_b32 v4, 128")
        a(f"global_atomic_add v4, v3, s[{P_DBG}:{P_DBG+1}]")
        a("s_mov_b64 exec, -1")
        a("s_branch L_phaseB")
    else:
        if opt.get('ewb'):
            a("s_cmp_lt_u32 s2, 8")
            a("s_cbranch_scc0 L_e_nowb")
            a("s_cmp_eq_u32 s64, 0")
            a("s_cbranch_scc0 L_e_nowb")
            a("s_waitcnt vmcnt(0)")
            a("buffer_wbl2 sc1")
            a("s_waitcnt vmcnt(0)")
            a.label("L_e_nowb")
        stamp_end(a, opt, 0, 'e')
        a("s_endpgm")
```

```python
from asmlib import *
from k1 import *
import k1w
from k1w import SLICEB, TAB_OFF, ROWB

K2_NWG = 256
RNG = 313
CNT_L = 0; START_L = 1280; ORDER_L = 2560; BKT_L = 3840; MISC_L = 3904
WPK_L = 4096
REC_L = 5632
NULL_L = REC_L + 1024 * 32
OWN_L = 38912
NOWN = 79
K2_LDS = OWN_L + NOWN * 1024
WORK_O, BUMP_O, C2_O, C3_O, RDY_O, OWN_O = 0, 4, 8, 12, 16, 20
OOBV = 0x7f000000
NULLSRC = 0x00100000

def dpp_scan(a, x, op="v_add_u32"):
    for sh in (1, 2, 4, 8):
        a("s_nop 1")
        a(f"{op}_dpp {v(x)}, {v(x)}, {v(x)} row_shr:{sh} row_mask:0xf bank_mask:0xf bound_ctrl:0")
    a("s_nop 1")
    a(f"{op}_dpp {v(x)}, {v(x)}, {v(x)} row_bcast:15 row_mask:0xa bank_mask:0xf")
    a("s_nop 1")
    a(f"{op}_dpp {v(x)}, {v(x)}, {v(x)} row_bcast:31 row_mask:0xc bank_mask:0xf")
    a("s_nop 1")

def spin(a, off, target, lbl, vt=7, st_="s69"):
    a(f"v_mov_b32 v{vt}, {MISC_L + off}")
    a.label(lbl)
    a(f"ds_read_b32 v1, v{vt}")
    a("s_waitcnt lgkmcnt(0)")
    a(f"v_readfirstlane_b32 {st_}, v1")
    a(f"s_cmp_ge_u32 {st_}, {target}")
    a(f"s_cbranch_scc0 {lbl}")
def signal(a, off, vt=7):
    a("s_waitcnt lgkmcnt(0)")
    a("s_mov_b64 exec, 1")
    a(f"v_mov_b32 v{vt}, {MISC_L + off}")
    a("v_mov_b32 v1, 1")
    a(f"ds_add_u32 v{vt}, v1")
    a("s_mov_b64 exec, -1")

def k2w(a, opt):
    TAB, SV, OUT, REC, CNT, WR = 40, 44, 48, 52, 56, 60
    ost = opt.get('out_store_flags', '')
    sres = opt.get('sres_flags', '')
    a(f"s_cmp_ge_u32 s2, {K2_NWG}")
    a("s_cbranch_scc1 L_k2_exit")
    stamp_begin(a, opt)
    if opt.get('delay'):
        a(f"s_mov_b32 s69, {int(opt['delay'])}")
        a.label("L_k2_delay")
        for i in range(16): a("s_nop 15")
        a("s_sub_u32 s69, s69, 1")
        a("s_cmp_lg_u32 s69, 0")
        a("s_cbranch_scc1 L_k2_delay")
    load_kernargs(a)
    a("v_lshrrev_b32 v1, 6, v0")
    a("v_and_b32 v2, 63, v0")
    a("s_and_b32 s65, s2, 7")
    a("s_and_b32 s38, s65, 1")
    a("s_lshr_b32 s65, s65, 1")
    a("s_lshr_b32 s66, s2, 3")
    a(f"s_mul_i32 s67, s66, {RNG}")
    a(f"s_sub_u32 s68, {N}, s67")
    a(f"s_min_u32 s68, s68, {RNG}")
    a("v_lshlrev_b32 v5, 2, v0")
    a("v_mov_b32 v6, 0")
    a("v_cmp_gt_u32 vcc, 320, v0")
    a("s_and_saveexec_b64 s[70:71], vcc")
    a(f"ds_write_b32 v5, v6 offset:{CNT_L}")
    a("s_mov_b64 exec, s[70:71]")
    a("v_cmp_gt_u32 vcc, 32, v0")
    a("s_and_saveexec_b64 s[70:71], vcc")
    a(f"ds_write_b32 v5, v6 offset:{BKT_L}")
    a("s_mov_b64 exec, s[70:71]")
    a("s_waitcnt lgkmcnt(0)")
    a("v_readfirstlane_b32 s64, v1")
    srd(a, REC, P_WS, REC_SIZE, REC_OFF)
    srd(a, CNT, P_WS, CNT_SIZE, CNT_OFF)
    a("v_lshlrev_b32 v4, 8, v2")
    a("s_lshl_b32 s69, s66, 2")
    a(f"buffer_load_dword v13, v4, {s(CNT,4)}, s69 offen")
    a("s_cmp_ge_u32 s64, 8")
    a("s_cbranch_scc1 L_k2_norec")
    a("s_lshl_b32 s69, s66, 10")
    a("v_add_u32 v3, s69, v0")
    a(f"v_mul_u32_u24 v3, {RECB}, v3")
    a(f"buffer_load_dwordx4 v[8:11], v3, {s(REC,4)}, 0 offen")
    a(f"buffer_load_dword v12, v3, {s(REC,4)}, 0 offen offset:16")
    a(f"v_add_u32 v3, {512*RECB}, v3")
    a(f"buffer_load_dwordx4 v[16:19], v3, {s(REC,4)}, 0 offen")
    a(f"buffer_load_dword v20, v3, {s(REC,4)}, 0 offen offset:16")
    a.label("L_k2_norec")
    a(f"s_mul_i32 s69, s65, {SLICEB}")
    a(f"s_add_u32 s{TAB}, s{P_WS}, s69")
    a(f"s_addc_u32 s{TAB+1}, s{P_WS+1}, 0")
    if TAB_OFF:
        a(f"s_add_u32 s{TAB}, s{TAB}, {TAB_OFF}")
        a(f"s_addc_u32 s{TAB+1}, s{TAB+1}, 0")
    a(f"s_mov_b32 s{TAB+2}, {SLICEB}")
    a(f"s_mov_b32 s{TAB+3}, 0x00020000")
    srd(a, SV, P_SV, N * 2048)
    srd(a, OUT, P_OUT, N * 2048)
    srd(a, WR, P_WR, 4 * 1536)
    a("s_barrier")
    def total():
        a("v_mov_b32 v14, v13")
        for sh in (1, 2, 4, 8):
            a("s_nop 1")
            a(f"v_add_u32_dpp v14, v14, v14 row_shr:{sh} row_mask:0xf bank_mask:0xf bound_ctrl:0")
        a("s_nop 1")
        a("v_readlane_b32 s72, v14, 15")
        a("v_readlane_b32 s73, v14, 31")
        a("v_readlane_b32 s74, v14, 47")
        a("s_add_u32 s72, s72, s73")
        a("s_add_u32 s72, s72, s74")
    a("s_cmp_ge_u32 s64, 8")
    a("s_cbranch_scc0 L_k2_sorter")
    delay(a, opt.get('d_pf'), "L_d_pf")
    a("s_cmp_eq_u32 s64, 8")
    a("s_cbranch_scc0 L_k2_now")
    vWraw = 64
    a("v_and_b32 v7, 15, v2")
    a("v_lshlrev_b32 v7, 2, v7")
    a("v_lshrrev_b32 v6, 4, v2")
    a("v_add_u32 v7, v7, v6")
    a("s_lshl_b32 s69, s65, 6")
    a("v_add_u32 v7, s69, v7")
    a("v_lshlrev_b32 v7, 1, v7")
    a("s_movk_i32 s69, 3072")
    for p in range(3):
        for k in range(4):
            off = k*1536 + p*512
            if off < 3072:
                a(f"buffer_load_ushort {v(vWraw+p*4+k)}, v7, {s(WR,4)}, 0 offen offset:{off}")
            else:
                a(f"buffer_load_ushort {v(vWraw+p*4+k)}, v7, {s(WR,4)}, s69 offen offset:{off-3072}")
    a("s_waitcnt vmcnt(0)")
    vW = 96
    for p in range(3):
        for h in range(2):
            a(f"v_lshl_or_b32 {v(vW+2*p+h)}, {v(vWraw+p*4+2*h+1)}, 16, {v(vWraw+p*4+2*h)}")
    a("v_mul_u32_u24 v7, 24, v2")
    for p in range(3):
        a(f"ds_write_b64 v7, {v(vW+2*p,2)} offset:{WPK_L + 8*p}")
    a("s_mov_b64 exec, 1")
    a(f"v_mov_b32 v42, {NULLSRC}")
    for r in (40, 41, 43, 44, 45): a(f"v_mov_b32 v{r}, 0")
    a(f"v_mov_b32 v7, {NULL_L}")
    a("ds_write_b128 v7, v[40:43]")
    a("ds_write_b64 v7, v[44:45] offset:16")
    a("s_mov_b64 exec, -1")
    signal(a, RDY_O)
    a.label("L_k2_now")
    a("v_lshrrev_b32 v6, 4, v2")
    a("v_add_u32 v6, s67, v6")
    a("v_lshlrev_b32 v6, 11, v6")
    a("v_bfe_u32 v7, v2, 3, 1")
    a("v_lshl_add_u32 v6, v7, 9, v6")
    a("v_and_b32 v7, 7, v2")
    a("v_lshl_add_u32 v6, v7, 4, v6")
    a("s_lshl_b32 s70, s38, 10")
    a("s_lshl_b32 s71, s65, 7")
    a("s_add_u32 s70, s70, s71")
    a("v_add_u32 v6, s70, v6")
    a("s_sub_u32 s69, s64, 8")
    a.label("L_k2_dmaloop")
    a("s_lshl_b32 s71, s69, 10")
    a(f"s_add_u32 s71, s71, {OWN_L}")
    a("s_mov_b32 m0, s71")
    a("s_lshl_b32 s71, s69, 13")
    a(f"buffer_load_dwordx4 v6, {s(SV,4)}, s71 offen {opt.get('res_flags','')} lds")
    a("s_add_u32 s69, s69, 8")
    a(f"s_cmp_lt_u32 s69, {NOWN}")
    a("s_cbranch_scc1 L_k2_dmaloop")
    a.label("L_k2_dmaskip")
    a("s_waitcnt vmcnt(0)")
    st(a, opt, 0)
    total()
    signal(a, OWN_O)
    spin(a, RDY_O, 9, "L_k2_sp_rdy")
    st(a, opt, 2)
    a("s_waitcnt lgkmcnt(0)")
    a(f"s_cmp_gt_u32 s72, {HOTCAP}")
    a("s_cbranch_scc1 L_k2_slow")
    a("s_branch L_k2_main")
    a.label("L_k2_sorter")
    delay(a, opt.get('d_sort'), "L_d_sort")
    a("s_waitcnt vmcnt(0)")
    st(a, opt, 0)
    total()
    if opt.get('stamps'): a("s_waitcnt lgkmcnt(0)")
    a(f"s_cmp_gt_u32 s72, {HOTCAP}")
    a("s_cbranch_scc0 L_k2_sort")
    signal(a, RDY_O)
    spin(a, RDY_O, 9, "L_k2_sp_rdy2")
    a("s_branch L_k2_slow")
    a.label("L_k2_sort")
    a("v_lshrrev_b32 v14, 14, v8")
    a("v_lshrrev_b32 v15, 14, v16")
    a("v_lshlrev_b32 v30, 2, v14")
    a("v_lshlrev_b32 v31, 2, v15")
    a("v_mov_b32 v21, 1")
    a("v_mov_b32 v22, 1")
    a("v_add_u32 v23, 512, v0")
    a("v_cmp_gt_u32 s[76:77], s72, v0")
    a("v_cmp_gt_u32 s[78:79], s72, v23")
    a("s_mov_b64 exec, s[76:77]")
    a(f"ds_add_rtn_u32 v21, v30, v21 offset:{CNT_L}")
    a("s_mov_b64 exec, s[78:79]")
    a(f"ds_add_rtn_u32 v22, v31, v22 offset:{CNT_L}")
    a("s_mov_b64 exec, -1")
    for (raw, last, dst) in ((8, 12, 32), (16, 20, 40)):
        a(f"v_and_b32 v{dst+2}, 0x3fff, v{raw}")
        a(f"v_mov_b32 v{dst}, v{raw+1}")
        a(f"v_mov_b32 v{dst+1}, v{raw+2}")
        a(f"v_lshlrev_b32 v{dst+3}, 16, v{raw+3}")
        a(f"v_and_b32 v{dst+4}, 0xffff0000, v{raw+3}")
        a(f"v_lshlrev_b32 v{dst+5}, 16, v{last}")
    signal(a, C2_O)
    spin(a, C2_O, 8, "L_k2_sp_c2")
    st(a, opt, 1)
    a("s_waitcnt lgkmcnt(0)")
    a("s_cmp_lt_u32 s64, 5")
    a("s_cbranch_scc0 L_k2_nonode")
    a(f"ds_read_b32 v26, v5 offset:{CNT_L}")
    a("v_cmp_gt_u32 s[80:81], s68, v0")
    a("s_waitcnt lgkmcnt(0)")
    a("v_cndmask_b32 v26, 0, v26, s[80:81]")
    a("v_mov_b32 v27, v26")
    dpp_scan(a, 27)
    a("v_readlane_b32 s82, v27, 63")
    a("s_mov_b64 exec, 1")
    a(f"v_mov_b32 v28, {MISC_L+BUMP_O}")
    a("v_mov_b32 v29, s82")
    a("ds_add_rtn_u32 v29, v28, v29")
    a("s_mov_b64 exec, -1")
    a("v_min_u32 v48, 15, v26")
    a("v_sub_u32 v48, 15, v48")
    a("v_lshlrev_b32 v49, 2, v48")
    a("v_mov_b32 v50, 1")
    a("s_mov_b64 exec, s[80:81]")
    a(f"ds_add_rtn_u32 v50, v49, v50 offset:{BKT_L}")
    a("s_mov_b64 exec, -1")
    a("s_waitcnt lgkmcnt(0)")
    a("v_readfirstlane_b32 s82, v29")
    a("v_sub_u32 v27, v27, v26")
    a("v_add_u32 v27, s82, v27")
    a("s_mov_b64 exec, s[80:81]")
    a(f"ds_write_b32 v5, v27 offset:{START_L}")
    a("s_mov_b64 exec, -1")
    a.label("L_k2_nonode")
    signal(a, C3_O)
    spin(a, C3_O, 8, "L_k2_sp_c3")
    a("s_cmp_lt_u32 s64, 5")
    a("s_cbranch_scc0 L_k2_noord")
    a("v_lshlrev_b32 v51, 2, v2")
    a(f"ds_read_b32 v51, v51 offset:{BKT_L}")
    a("s_waitcnt lgkmcnt(0)")
    a("v_mov_b32 v52, v51")
    for sh in (1, 2, 4, 8):
        a("s_nop 1")
        a(f"v_add_u32_dpp v52, v52, v52 row_shr:{sh} row_mask:0xf bank_mask:0xf bound_ctrl:0")
    a("s_nop 1")
    a("v_sub_u32 v52, v52, v51")
    a("ds_bpermute_b32 v52, v49, v52")
    a("s_waitcnt lgkmcnt(0)")
    a("v_add_u32 v52, v52, v50")
    a("v_lshlrev_b32 v52, 2, v52")
    a("s_mov_b64 exec, s[80:81]")
    a(f"ds_write_b32 v52, v0 offset:{ORDER_L}")
    a("s_mov_b64 exec, -1")
    a.label("L_k2_noord")
    a(f"ds_read_b32 v53, v30 offset:{START_L}")
    a(f"ds_read_b32 v54, v31 offset:{START_L}")
    a("s_waitcnt lgkmcnt(0)")
    a("v_add_u32 v53, v53, v21")
    a("v_add_u32 v54, v54, v22")
    a("v_lshlrev_b32 v53, 5, v53")
    a("v_lshlrev_b32 v54, 5, v54")
    a("s_mov_b64 exec, s[76:77]")
    a(f"ds_write_b128 v53, v[32:35] offset:{REC_L}")
    a(f"ds_write_b64 v53, v[36:37] offset:{REC_L+16}")
    a("s_mov_b64 exec, s[78:79]")
    a(f"ds_write_b128 v54, v[40:43] offset:{REC_L}")
    a(f"ds_write_b64 v54, v[44:45] offset:{REC_L+16}")
    a("s_mov_b64 exec, -1")
    signal(a, RDY_O)
    spin(a, RDY_O, 9, "L_k2_sp_rdy3")
    st(a, opt, 2)
    a("s_waitcnt lgkmcnt(0)")
    a.label("L_k2_main")

    X1S = 80
    vW = 96
    vG = 104
    vMk = 106; vSb2 = 107; vDeg2 = 108; vNul = 109
    vAcc = 8
    vRaw = [16, 24, 32]
    vRC = [40, 48, 56]
    vWf = 64
    vU = 120
    vXu = 112
    vJ16 = 3; vSb = 4; vDeg = 5; vOV = 6; vOwn = 7; vT = 78; vE = 80; vAd = 81; vJ8 = 82; vA1 = 83; vA2 = 84; vRes = 86
    D = int(opt.get('depth', 3))
    SX1 = 92
    def load_w():
        a("v_mul_u32_u24 v7, 24, v2")
        for p in range(3):
            a(f"ds_read_b64 {v(vW+2*p,2)}, v7 offset:{WPK_L + 8*p}")
        a(f"v_lshrrev_b32 {v(vMk)}, 4, v2")
        a(f"v_and_b32 {v(vNul)}, 3, v2")
        a(f"v_cmp_eq_u32 vcc, {v(vMk)}, {v(vNul)}")
        a("s_nop 1")
        a(f"v_cndmask_b32 {v(vMk)}, 0, -1, vcc")
        a(f"v_mov_b32 {v(vNul)}, {NULL_L}")
        a("v_and_b32 v3, 15, v2")
        a(f"v_lshlrev_b32 {v(vJ8)}, 3, v3")
        a("v_lshlrev_b32 v3, 4, v3")
        a("s_cmp_eq_u32 s38, 0")
        for i in range(4):
            a(f"s_cselect_b32 s{SX1+i}, s{TAB+i}, s{SV+i}")
        a("s_movk_i32 s39, 2048")
        a("s_cselect_b32 s39, 384, s39")
        a("s_lshl_b32 s77, s65, 7")
        a("s_add_u32 s78, s77, 1024")
        a("s_cselect_b32 s78, 256, s78") if False else None
        a("s_cmp_eq_u32 s38, 0")
        a("s_cselect_b32 s78, 256, s78")
        a("s_lshl_b32 s79, s38, 10")
        a("s_add_u32 s79, s79, s77")
        a("s_add_u32 s79, s79, 512")
        a(f"v_add_u32 {v(vA1)}, s78, {v(vJ8)}")
        a(f"v_add_u32 {v(vA2)}, s79, {v(vJ8)}")
    def compute(role, R, RC):
        a(f"v_and_b32 {v(vG)}, {v(RC)}, {v(vMk)}")
        a(f"v_and_b32 {v(vG+1)}, {v(RC+1)}, {v(vMk)}")
        a(f"v_lshlrev_b32 {v(vU)}, 16, {v(R)}")
        a(f"v_and_b32 {v(vU+1)}, 0xffff0000, {v(R)}")
        parts = (1, 2, 0) if role == 0 else (1, 2)
        for p in parts:
            a(f"v_mfma_f32_16x16x16_bf16 {v(vWf+4*p,4)}, {v(vG,2)}, {v(vW+2*p,2)}, 0")
        a(f"v_lshlrev_b32 {v(vU+2)}, 16, {v(R+1)}")
        a(f"v_and_b32 {v(vU+3)}, 0xffff0000, {v(R+1)}")
        for d in range(2):
            a(f"v_lshlrev_b32 {v(vU+4+2*d)}, 16, {v(R+2+d)}")
            a(f"v_and_b32 {v(vU+5+2*d)}, 0xffff0000, {v(R+2+d)}")
        for which in range(2):
            for d in range(2):
                a(f"v_lshlrev_b32 {v(vXu+4*which+2*d)}, 16, {v(R+4+2*which+d)}")
                a(f"v_and_b32 {v(vXu+4*which+2*d+1)}, 0xffff0000, {v(R+4+2*which+d)}")
        for c in range(4): a(f"v_mul_f32 {v(vWf+4+c)}, {v(vU+c)}, {v(vWf+4+c)}")
        for c in range(4): a(f"v_mul_f32 {v(vWf+8+c)}, {v(vU+4+c)}, {v(vWf+8+c)}")
        for which in range(2):
            for c in range(4):
                A = vAcc + 4*which + c
                X = vXu + 4*which + c
                if role == 0 and which == 0:
                    a(f"v_fmac_f32 {v(A)}, {v(X)}, {v(vWf+c)}")
                else:
                    rho = RC + 3 if role == 0 else RC + 4 + which
                    a(f"v_fmac_f32 {v(A)}, {v(X)}, {v(vWf+4+c)}")
                    a(f"v_fmac_f32 {v(A)}, {v(rho)}, {v(vWf+8+c)}")
    def issue_rows(R, RC):
        S = RC + 2
        a(f"v_mul_u32_u24 {v(vAd)}, 384, {v(S)}")
        a(f"v_add_u32 {v(vAd)}, {v(vAd)}, {v(vJ16)}")
        a(f"buffer_load_dwordx4 {v(R,4)}, {v(vAd)}, {s(TAB,4)}, 0 offen")
        a(f"v_mad_u32_u24 {v(vAd)}, {v(S)}, s39, {v(vA1)}")
        a(f"buffer_load_dwordx2 {v(R+4,2)}, {v(vAd)}, {s(SX1,4)}, 0 offen")
        a(f"v_lshl_add_u32 {v(vAd)}, {v(S)}, 11, {v(vA2)}")
        a(f"buffer_load_dwordx2 {v(R+6,2)}, {v(vAd)}, {s(SV,4)}, 0 offen")
    def fetch_rec(RC, e_sgpr):
        a(f"s_lshl_b32 s87, {e_sgpr}, 5")
        a(f"v_add_u32 {v(vAd)}, s87, {v(vSb)}")
        a(f"v_cmp_lt_u32 vcc, {e_sgpr}, {v(vDeg)}")
        a(f"v_add_u32 {v(vT)}, s87, {v(vSb2)}")
        a(f"v_cmp_lt_u32 s[90:91], {e_sgpr}, {v(vDeg2)}")
        a(f"v_cndmask_b32 {v(vAd)}, {v(vNul)}, {v(vAd)}, vcc")
        a(f"ds_read_b64 {v(RC+2,2)}, {v(vAd)} offset:8")
        a(f"ds_read_b64 {v(RC+4,2)}, {v(vAd)} offset:16")
        a(f"v_cndmask_b32 {v(vT)}, {v(vNul)}, {v(vT)}, s[90:91]")
        a(f"ds_read_b64 {v(RC,2)}, {v(vT)}")
        a("s_waitcnt lgkmcnt(0)")
    def zero_acc():
        for r in range(8): a(f"v_mov_b32 {v(vAcc+r)}, 0")
    def own_residual(lbl):
        a("s_cmp_eq_u32 s75, 1")
        a(f"s_cbranch_scc1 {lbl}_ok")
        spin(a, OWN_O, 8, lbl + "_sp", vt=vT, st_="s75")
        a("s_mov_b32 s75, 1")
        a.label(lbl + "_ok")
        a(f"ds_read_b64 {v(vRes,2)}, {v(vOwn)}")
        a(f"ds_read_b64 {v(vRes+2,2)}, {v(vOwn)} offset:128")
        a("s_waitcnt lgkmcnt(0)")
    def finish_store():
        for c in range(2):
            for d in range(2):
                U = vU + 2*((2*c+d) & 3)
                a(f"v_lshlrev_b32 {v(U)}, 16, {v(vRes+2*c+d)}")
                a(f"v_and_b32 {v(U+1)}, 0xffff0000, {v(vRes+2*c+d)}")
                a(f"v_add_f32 {v(vAcc+4*c+2*d)}, {v(vAcc+4*c+2*d)}, {v(U)}")
                a(f"v_add_f32 {v(vAcc+4*c+2*d+1)}, {v(vAcc+4*c+2*d+1)}, {v(U+1)}")
        for c in range(2):
            for d in range(2):
                a(f"v_cvt_pk_bf16_f32 {v(vWf+2*c+d)}, {v(vAcc+c*4+2*d)}, {v(vAcc+c*4+2*d+1)}")
        for c in range(2):
            a(f"buffer_store_dwordx2 {v(vWf+2*c,2)}, {v(vOV)}, {s(OUT,4)}, 0 offen offset:{c*512} {ost}")

    load_w()
    a("s_mov_b32 s75, 0")
    a.label("L_k2_next")
    a("s_mov_b64 exec, 1")
    a(f"v_mov_b32 {v(vT)}, {MISC_L}")
    a(f"v_mov_b32 {v(vU)}, 1")
    a(f"ds_add_rtn_u32 {v(vT)}, {v(vT)}, {v(vU)}")
    a("s_waitcnt lgkmcnt(0)")
    a(f"v_readfirstlane_b32 s80, {v(vT)}")
    a("s_mov_b64 exec, -1")
    a("s_lshl_b32 s80, s80, 2")
    a("s_cmp_ge_u32 s80, s68")
    a("s_cbranch_scc1 L_k2_exit")
    a(f"v_lshrrev_b32 {v(vT)}, 4, v2")
    a(f"v_add_u32 {v(vT)}, s80, {v(vT)}")
    a(f"v_cmp_gt_u32 s[82:83], s68, {v(vT)}")
    a(f"v_lshlrev_b32 {v(vT+1)}, 2, {v(vT)}")
    a(f"ds_read_b32 {v(vT+1)}, {v(vT+1)} offset:{ORDER_L}")
    a("s_waitcnt lgkmcnt(0)")
    a(f"v_cndmask_b32 {v(vT+1)}, 0, {v(vT+1)}, s[82:83]")
    a(f"v_lshlrev_b32 {v(vT)}, 2, {v(vT+1)}")
    a(f"ds_read_b32 {v(vDeg)}, {v(vT)} offset:{CNT_L}")
    a(f"ds_read_b32 {v(vSb)}, {v(vT)} offset:{START_L}")
    a(f"v_add_u32 {v(vOV)}, s67, {v(vT+1)}")
    a(f"v_lshlrev_b32 {v(vOV)}, 11, {v(vOV)}")
    a(f"v_add_u32 {v(vOV)}, {v(vOV)}, {v(vJ8)}")
    a("s_lshl_b32 s84, s38, 10")
    a("s_add_u32 s84, s84, s77")
    a(f"v_add_u32 {v(vOV)}, s84, {v(vOV)}")
    a(f"v_mov_b32 {v(vT)}, {OOBV}")
    a(f"v_cndmask_b32 {v(vOV)}, {v(vT)}, {v(vOV)}, s[82:83]")
    a(f"v_lshlrev_b32 {v(vOwn)}, 8, {v(vT+1)}")
    a(f"v_add_u32 {v(vOwn)}, {v(vOwn)}, {v(vJ8)}")
    a(f"v_add_u32 {v(vOwn)}, {OWN_L}, {v(vOwn)}")
    a("s_waitcnt lgkmcnt(0)")
    a(f"v_cndmask_b32 {v(vDeg)}, 0, {v(vDeg)}, s[82:83]")
    a(f"v_lshlrev_b32 {v(vSb)}, 5, {v(vSb)}")
    a(f"v_add_u32 {v(vSb)}, {REC_L}, {v(vSb)}")
    a(f"v_bfe_u32 {v(vT)}, v2, 2, 2")
    a(f"v_lshlrev_b32 {v(vT)}, 6, {v(vT)}")
    a(f"ds_bpermute_b32 {v(vSb2)}, {v(vT)}, {v(vSb)}")
    a(f"ds_bpermute_b32 {v(vDeg2)}, {v(vT)}, {v(vDeg)}")
    a("s_waitcnt lgkmcnt(0)")
    a(f"v_readlane_b32 s85, {v(vDeg)}, 0")
    a(f"v_readlane_b32 s86, {v(vDeg)}, 16")
    a("s_max_u32 s85, s85, s86")
    a(f"v_readlane_b32 s86, {v(vDeg)}, 32")
    a("s_max_u32 s85, s85, s86")
    a(f"v_readlane_b32 s86, {v(vDeg)}, 48")
    a("s_max_u32 s85, s85, s86")
    zero_acc()
    a("s_cmp_eq_u32 s85, 0")
    a("s_cbranch_scc1 L_k2_fin")
    for k in range(D):
        if k:
            a(f"s_cmp_gt_u32 s85, {k}")
            a("s_cbranch_scc0 L_k2_primed")
        a(f"s_mov_b32 s81, {k}")
        fetch_rec(vRC[k], "s81")
        issue_rows(vRaw[k], vRC[k])
    a.label("L_k2_primed")
    a("s_mov_b32 s89, 0")
    a("s_cmp_eq_u32 s38, 0")
    a("s_cbranch_scc0 L_k2_loopB")
    for role in range(2):
        tg = "AB"[role]
        a.label(f"L_k2_loop{tg}")
        for k in range(D):
            a("s_sub_u32 s81, s85, s89")
            for c in range(D-1, 0, -1):
                a(f"s_cmp_gt_u32 s81, {c}")
                a(f"s_cbranch_scc1 L_k2_w{c}_{tg}{k}")
            a("s_waitcnt vmcnt(0)")
            if D > 1: a(f"s_branch L_k2_wd_{tg}{k}")
            for c in range(D-1, 0, -1):
                a.label(f"L_k2_w{c}_{tg}{k}")
                a(f"s_waitcnt vmcnt({3*c})")
                if c > 1: a(f"s_branch L_k2_wd_{tg}{k}")
            a.label(f"L_k2_wd_{tg}{k}")
            compute(role, vRaw[k], vRC[k])
            a(f"s_add_u32 s81, s89, {D}")
            a("s_cmp_lt_u32 s81, s85")
            a(f"s_cbranch_scc0 L_k2_ni_{tg}{k}")
            fetch_rec(vRC[k], "s81")
            issue_rows(vRaw[k], vRC[k])
            a.label(f"L_k2_ni_{tg}{k}")
            a("s_add_u32 s89, s89, 1")
            a("s_cmp_lt_u32 s89, s85")
            if k < D-1: a("s_cbranch_scc0 L_k2_fin")
            else: a(f"s_cbranch_scc1 L_k2_loop{tg}")
        a("s_branch L_k2_fin")
    a.label("L_k2_fin")
    own_residual("L_k2_own1")
    finish_store()
    a("s_branch L_k2_next")

    a.label("L_k2_slow")
    load_w()
    a("s_mov_b32 s75, 0")
    a("s_mov_b32 s80, s64")
    a.label("L_k2_snext")
    a("s_cmp_ge_u32 s80, s68")
    a("s_cbranch_scc1 L_k2_exit")
    a("s_add_u32 s81, s67, s80")
    a("s_lshl_b32 s81, s81, 11")
    a("s_lshl_b32 s84, s38, 10")
    a("s_add_u32 s84, s84, s77")
    a("s_add_u32 s81, s81, s84")
    a(f"v_add_u32 {v(vOV)}, s81, {v(vJ8)}")
    a("s_lshl_b32 s81, s80, 8")
    a(f"s_add_u32 s81, s81, {OWN_L}")
    a(f"v_add_u32 {v(vOwn)}, s81, {v(vJ8)}")
    zero_acc()
    a("s_mov_b32 s85, 0")
    a(f"s_mul_i32 s90, s66, {COLD_BIN}")
    a(f"s_add_u32 s90, s90, {HOT_SIZE}")
    a("s_lshl_b32 s91, s66, 10")
    a.label("L_k2_sscan")
    a("s_cmp_ge_u32 s85, s72")
    a("s_cbranch_scc1 L_k2_sfin")
    a(f"v_add_u32 {v(vT)}, s85, v2")
    a(f"v_add_u32 {v(vT+1)}, s91, {v(vT)}")
    a(f"v_mul_u32_u24 {v(vT+1)}, {RECB}, {v(vT+1)}")
    a(f"v_mul_u32_u24 {v(vE)}, {RECB}, {v(vT)}")
    a(f"v_add_u32 {v(vE)}, s90, {v(vE)}")
    a(f"v_cmp_gt_u32 vcc, {HOTCAP}, {v(vT)}")
    a("s_nop 1")
    a(f"v_cndmask_b32 {v(vE)}, {v(vE)}, {v(vT+1)}, vcc")
    a(f"buffer_load_dword {v(vT+1)}, {v(vE)}, {s(REC,4)}, 0 offen")
    a("s_waitcnt vmcnt(0)")
    a(f"v_lshrrev_b32 {v(vT+1)}, 14, {v(vT+1)}")
    a(f"v_cmp_eq_u32 vcc, s80, {v(vT+1)}")
    a(f"v_cmp_gt_u32 s[86:87], s72, {v(vT)}")
    a("s_and_b64 s[86:87], s[86:87], vcc")
    a.label("L_k2_smatch")
    a("s_cmp_eq_u64 s[86:87], 0")
    a("s_cbranch_scc1 L_k2_sadv")
    a("s_ff1_i32_b64 s88, s[86:87]")
    a("s_bitset0_b64 s[86:87], s88")
    a(f"v_readlane_b32 s89, {v(vE)}, s88")
    a("s_nop 3")
    a(f"v_mov_b32 {v(vT)}, s89")
    RA = vRC[0]
    a(f"buffer_load_dwordx4 {v(vXu,4)}, {v(vT)}, {s(REC,4)}, 0 offen")
    a(f"buffer_load_dword {v(RA+5)}, {v(vT)}, {s(REC,4)}, 0 offen offset:16")
    a("s_waitcnt vmcnt(0)")
    a(f"v_and_b32 {v(RA+2)}, 0x3fff, {v(vXu)}")
    a(f"v_mov_b32 {v(RA)}, {v(vXu+1)}")
    a(f"v_mov_b32 {v(RA+1)}, {v(vXu+2)}")
    a(f"v_and_b32 {v(RA+4)}, 0xffff0000, {v(vXu+3)}")
    a(f"v_lshlrev_b32 {v(RA+3)}, 16, {v(vXu+3)}")
    a(f"v_lshlrev_b32 {v(RA+5)}, 16, {v(RA+5)}")
    issue_rows(vRaw[0], RA)
    a("s_waitcnt vmcnt(0)")
    a("s_cmp_eq_u32 s38, 0")
    a("s_cbranch_scc0 L_k2_sB")
    compute(0, vRaw[0], RA)
    a("s_branch L_k2_smatch")
    a.label("L_k2_sB")
    compute(1, vRaw[0], RA)
    a("s_branch L_k2_smatch")
    a.label("L_k2_sadv")
    a("s_add_u32 s85, s85, 64")
    a("s_branch L_k2_sscan")
    a.label("L_k2_sfin")
    own_residual("L_k2_own2")
    a("s_mov_b64 exec, 0xffff")
    finish_store()
    a("s_mov_b64 exec, -1")
    a("s_add_u32 s80, s80, 16")
    a("s_branch L_k2_snext")
    a.label("L_k2_exit")
    if opt.get('stamps'):
        a(f"s_cmp_ge_u32 s2, {K2_NWG}")
        a("s_cbranch_scc1 L_k2_exit2")
        stamp_end(a, opt, 1, 'k2')
        a.label("L_k2_exit2")
    a("s_endpgm")
```

```python
import sys
from asmlib import *
import k1, k1edge, k2x, k1w, k2w, k1w2, k2w2, k1w3, k2f, k1w4, k1w5, k1c, k2c
W = (k1.DESIGN == 'W')

HDR = open("standalone__molecular_angular_painn__graph.s.ref").read().split("; Override launch")[0]

def kernel_desc(name, vgpr, sgpr):
    acc = (vgpr + 3)//4*4
    return f""".amdhsa_kernel {name}
  .amdhsa_next_free_vgpr {vgpr}
  .amdhsa_next_free_sgpr {sgpr}
  .amdhsa_accum_offset {acc}
  .amdhsa_group_segment_fixed_size 0
  .amdhsa_kernarg_size 88
  .amdhsa_user_sgpr_count 2
  .amdhsa_user_sgpr_kernarg_segment_ptr 1
  .amdhsa_system_sgpr_workgroup_id_x 1
  .amdhsa_float_denorm_mode_32 3
  .amdhsa_float_denorm_mode_16_64 3
.end_amdhsa_kernel
"""

def code_prefetch(a, start, end, nw, tag):
    a("s_getpc_b64 s[90:91]")
    a.label(f"L_pc_{tag}")
    a(f"s_sub_u32 s90, s90, (L_pc_{tag} - {start})")
    a("s_subb_u32 s91, s91, 0")
    a("v_lshrrev_b32 v160, 6, v0" if nw != 16 else "v_lshrrev_b32 v120, 6, v0")
    R = 160 if nw != 16 else 120
    a("s_lshr_b32 s92, s2, 3")
    a(f"s_mul_i32 s92, s92, {nw}")
    a(f"v_add_u32 v{R}, s92, v{R}")
    a(f"v_lshlrev_b32 v{R}, 10, v{R}")
    a(f"v_and_b32 v{R+1}, 63, v0")
    a(f"v_lshl_add_u32 v{R}, v{R+1}, 4, v{R}")
    a(f"v_cmp_gt_u32 vcc, (({end} - {start}) & 0xfffffff0), v{R}")
    a("s_and_saveexec_b64 s[92:93], vcc")
    a(f"s_cbranch_execz L_pf_{tag}")
    a(f"global_load_dwordx4 v[{R+4}:{R+7}], v{R}, s[90:91]")
    a.label(f"L_pf_{tag}")
    a("s_mov_b64 exec, s[92:93]")

def gen_fused(opt):
    opt['fused'] = 1
    opt['k1blk'] = 768
    opt.setdefault('tab_store_flags', 'sc1'); opt.setdefault('l2_store_flags', 'sc1'); opt.setdefault('rec_flags', 'sc1')
    a = Asm()
    a.raw(HDR.rstrip("\n"))
    name = "standalone__molecular_angular_painn__graph_kernel"
    lds = max(k1w3.K1_LDS3, k2f.K2_LDS)
    a.raw(f"; @launch grid=(256,1,1) block=(768,1,1) lds={lds}")
    a.raw('.amdgcn_target "amdgcn-amd-amdhsa--gfx950"')
    a.raw(".text")
    a.raw(f".globl {name}")
    a.raw(".p2align 8")
    a.raw(f".type {name},@function")
    a.label(name)
    a("s_cmp_ge_u32 s2, 256")
    a("s_cbranch_scc1 L_exit")
    k1.stamp_begin(a, opt)
    k1.load_kernargs(a)
    a(f"s_cmp_lt_u32 s2, {k1.NCH}")
    a("s_cbranch_scc1 L_k1_edge")
    a(f"s_cmp_lt_u32 s2, {k1.NCH + k1w.NGEMM}")
    a("s_cbranch_scc1 L_k1_gemm")
    a("s_waitcnt lgkmcnt(0)")
    a("s_branch L_phaseB")
    a.label("L_k1_gemm")
    k1w3.gemm_role(a, opt)
    a.label("L_k1_edge")
    k1edge.edge_role(a, opt)
    k2f.k2w(a, opt)
    a.label("L_exit")
    a("s_endpgm")
    a.raw('.section .rodata,"a"')
    a.raw(".p2align 6")
    a.raw(kernel_desc(name, 168, 102))
    return a.text()

def gen(opt):
    if opt.get('fusedk'): return gen_fused(opt)
    a = Asm()
    a.raw(HDR.rstrip("\n"))
    ngemm = k1w.NGEMM if W else k1.NGEMM
    k1lds = k1w.K1_LDS if W else k1.K1_LDS
    k2n = k2w.K2_NWG if W else k2x.K2_NWG
    k2m = k2w2 if opt.get('k2v','2') == '2' else k2w
    if opt.get('csplit'): k2m = k2c
    k2lds = k2m.K2_LDS if W else k2x.K2_LDS
    v2 = W and opt.get('k1v', '5') in ('2', '3', '4', '5')
    k1m = {'2': k1w2, '3': k1w3, '4': k1w4, '5': k1w5}.get(opt.get('k1v', '5'), k1w5)
    if opt.get('csplit'): k1m = k1c
    if v2: k1lds = k1m.K1_LDS3
    k1blk = 768 if v2 else 512
    opt['k1blk'] = k1blk
    k1grid = 256 if (opt.get('csplit') and opt.get('l2pf', 'c5') != '0') else k1.NCH + ngemm
    a.raw(f"; @launch kernel=painn_k1_kernel grid=({k1grid},1,1) block=({k1blk},1,1) lds={k1lds}")
    a.raw(f"; @launch kernel=painn_k2_kernel grid=({k2n},1,1) block=(1024,1,1) lds={k2lds}")
    if opt.get('red') or opt.get('amp'):
        a.raw("; @launch kernel=painn_red_kernel grid=(1,1,1) block=(256,1,1) lds=0")
    nempty = int(opt.get('nempty', 0))
    for i in range(nempty):
        a.raw("; @launch kernel=painn_nop_kernel grid=(1,1,1) block=(64,1,1) lds=0")
    a.raw('.amdgcn_target "amdgcn-amd-amdhsa--gfx950"')
    a.raw(".text")
    for name in ("painn_k1_kernel", "painn_k2_kernel"):
        a.raw(f".globl {name}")
        a.raw(".p2align 8")
        a.raw(f".type {name},@function")
        a.label(name)
        if name == "painn_k1_kernel":
            a(f"s_cmp_ge_u32 s2, {k1grid}")
            a("s_cbranch_scc1 L_k1_exit")
            k1.stamp_begin(a, opt)
            k1.load_kernargs(a)
            if opt.get('pf', '1') == '1': code_prefetch(a, "painn_k1_kernel", "L_code_end", 12 if v2 else 8, "k1")
            a(f"s_cmp_lt_u32 s2, {k1.NCH}")
            a("s_cbranch_scc1 L_k1_edge")
            if k1grid > k1.NCH + ngemm:
                a(f"s_cmp_lt_u32 s2, {k1.NCH + ngemm}")
                a("s_cbranch_scc1 L_k1_gemm")
                a("v_and_b32 v2, 63, v0")
                a("v_lshrrev_b32 v1, 6, v0")
                a("s_waitcnt lgkmcnt(0)")
                a("v_readfirstlane_b32 s79, v1")
                srd(a, 80, k1.P_SV, k1.N * 2048)
                k1c.l2_prefetch(a, opt, 80, "s79", 12, first_reg=16)
                a("s_endpgm")
                a.label("L_k1_gemm")
            (k1m if v2 else (k1w if W else k1)).gemm_role(a, opt)
            a.label("L_k1_edge")
            k1edge.edge_role(a, opt)
            a.label("L_k1_exit")
            a("s_endpgm")
        else:
            (k2m.k2w if W else k2x.k2x)(a, opt)
    a.label("L_code_end")
    if opt.get('amp'):
        kA, wA, cA, kB, wB, cB = [int(x) for x in opt['amp'].split(',')]
        a.raw(".globl painn_red_kernel\n.p2align 8\n.type painn_red_kernel,@function")
        a.label("painn_red_kernel")
        a("s_cmp_ge_u32 s2, 1"); a("s_cbranch_scc1 L_red_exit")
        a("s_load_dwordx4 s[4:7], s[0:1], 72")
        a("s_waitcnt lgkmcnt(0)")
        a(f"s_add_u32 s8, s6, {k1.STAMP_OFF}"); a("s_addc_u32 s9, s7, 0")
        a(f"s_load_dword s10, s[8:9], {kA*256*16*32 + wA*512 + cA*4}")
        a(f"s_load_dword s11, s[8:9], {kB*256*16*32 + wB*512 + cB*4}")
        a("s_memrealtime s[12:13]")
        a("s_waitcnt lgkmcnt(0)")
        a("s_sub_u32 s10, s11, s10")
        a("s_mul_i32 s10, s10, 5")
        a("s_min_u32 s10, s10, 100000")
        a("s_add_u32 s10, s10, s12")
        a.label("L_amp")
        a("s_memrealtime s[14:15]")
        a("s_waitcnt lgkmcnt(0)")
        a("s_sub_u32 s16, s14, s10")
        a("s_cmp_lt_i32 s16, 0")
        a("s_cbranch_scc1 L_amp")
        a.label("L_red_exit")
        a("s_endpgm")
    if opt.get('red'):
        a.raw(".globl painn_red_kernel\n.p2align 8\n.type painn_red_kernel,@function")
        a.label("painn_red_kernel")
        a("s_cmp_ge_u32 s2, 1"); a("s_cbranch_scc1 L_red_exit")
        a("s_load_dwordx4 s[4:7], s[0:1], 72")
        a("s_waitcnt lgkmcnt(0)")
        a(f"s_add_u32 s8, s6, {k1.STAMP_OFF}"); a("s_addc_u32 s9, s7, 0")
        a("v_lshlrev_b32 v1, 9, v0")
        a("global_load_dwordx4 v[4:7], v1, s[8:9]"); a("global_load_dwordx4 v[8:11], v1, s[8:9] offset:16")
        a(f"v_add_u32 v2, {256*16*32}, v1")
        a("global_load_dwordx4 v[12:15], v2, s[8:9]"); a("global_load_dwordx4 v[16:19], v2, s[8:9] offset:16")
        a("s_waitcnt vmcnt(0)")
        def amax(dw, reg, neg=False):
            if neg: a(f"v_not_b32 v20, v{reg}")
            else: a(f"v_mov_b32 v20, v{reg}")
            a(f"v_mov_b32 v21, {4*dw}")
            a("global_atomic_umax v21, v20, s[4:5]")
        a("v_cmp_gt_u32 vcc, 250, v0"); a("s_and_saveexec_b64 s[10:11], vcc")
        amax(0, 4, True); amax(1, 4)
        a("s_mov_b64 exec, s[10:11]")
        a("v_cmp_gt_u32 vcc, 250, v0"); a("v_cmp_le_u32 s[12:13], 40, v0"); a("s_and_b64 vcc, vcc, s[12:13]"); a("s_and_saveexec_b64 s[10:11], vcc")
        for c in range(6): amax(2 + c, 5 + c)
        amax(8, 11)
        a("s_mov_b64 exec, s[10:11]")
        a("v_cmp_gt_u32 vcc, 40, v0"); a("s_and_saveexec_b64 s[10:11], vcc")
        amax(9, 11)
        a("s_mov_b64 exec, s[10:11]")
        amax(10, 12, True); amax(11, 15); amax(12, 19); amax(13, 19, True); amax(14, 13)
        a.label("L_red_exit")
        a("s_endpgm")
    if nempty:
        a.raw(".globl painn_nop_kernel\n.p2align 8\n.type painn_nop_kernel,@function")
        a.label("painn_nop_kernel")
        a("s_endpgm")
    a.raw('.section .rodata,"a"')
    a.raw(".p2align 6")
    a.raw(kernel_desc("painn_k1_kernel", 168 if v2 else 256, 102))
    a.raw(".p2align 6")
    a.raw(kernel_desc("painn_k2_kernel", 128, 102))
    if opt.get('red') or opt.get('amp'):
        a.raw(".p2align 6")
        a.raw(kernel_desc("painn_red_kernel", 32, 32))
    if nempty:
        a.raw(".p2align 6")
        a.raw(kernel_desc("painn_nop_kernel", 8, 16))
    return a.text()

if __name__ == "__main__":
    out = sys.argv[1] if len(sys.argv) > 1 else "standalone__molecular_angular_painn__graph.s"
    opt = {}
    for kv in sys.argv[2:]:
        k, val = kv.split("=", 1); opt[k] = val
    open(out, "w").write(gen(opt))
    print("wrote", out)
```
